```python
import torch

def _softmax(x, axis=-1):
    return torch.softmax(x, dim=axis)
def _gelu(x):
    return torch.nn.functional.gelu(x, approximate="tanh")
def _silu(x):
    return torch.nn.functional.silu(x)
def _sigmoid(x):
    return torch.sigmoid(x)
def _layernorm(x, axis=-1, eps=1e-5):
    m = x.mean(dim=axis, keepdim=True)
    v = x.var(dim=axis, keepdim=True, unbiased=False)
    return (x - m) / torch.sqrt(v + eps)
def _scatter_add(tgt, idx, src, axis=0):
    return tgt.clone().index_add_(axis, idx, src)
def _segment_sum(src, seg, n):
    out = torch.zeros((n,) + src.shape[1:], dtype=src.dtype)
    return out.index_add_(0, seg, src)
def _pad(x, pw):
    flat = tuple(v for pair in reversed(pw) for v in pair)
    return torch.nn.functional.pad(x, flat)

kernel_name = 'concat_heads__sliding_block_cached__mha_block_cached__decode'

def setup_inputs():

    _w = (lambda a: (lambda t: t.to(torch.bfloat16) if t.is_floating_point() else t)(torch.as_tensor(a)))
    def _A_setup():
        B, Sq, D = 2, 1, 512
        Hq, Hkv, Sk, Dh = 32, 8, 8192, 128
        assert Hq % Hkv == 0, (Hq, Hkv)
        return {
            "x": _w((lambda *s: torch.randn(*s, dtype=torch.bfloat16) * 0.8)(B, Sq, D)),
            "k_cache": _w((lambda *s: torch.randn(*s, dtype=torch.bfloat16) * 1.6)(B, Hkv, Sk, Dh)),
            "v_cache": _w((lambda *s: torch.randn(*s, dtype=torch.bfloat16) * 0.2)(B, Hkv, Sk, Dh)),
            "wq": _w((lambda *s: torch.randn(*s, dtype=torch.bfloat16) * 1.6)(D, Hq * Dh) * (D ** -0.5)),
            "wo": _w((lambda *s: torch.randn(*s, dtype=torch.bfloat16) * 0.2)(Hq * Dh, D) * ((Hq * Dh) ** -0.5)),
        }
    _A_in = _A_setup()

    def _B_setup():
        B, Sq, D = 2, 1, 512
        H, Sk, Dh = 32, 8192, 128
        return {
            "x": _w((lambda *s: torch.randn(*s, dtype=torch.bfloat16) * 0.8)(B, Sq, D)),
            "k_cache": _w((lambda *s: torch.randn(*s, dtype=torch.bfloat16) * 1.6)(B, H, Sk, Dh)),
            "v_cache": _w((lambda *s: torch.randn(*s, dtype=torch.bfloat16) * 0.2)(B, H, Sk, Dh)),
            "wq": _w((lambda *s: torch.randn(*s, dtype=torch.bfloat16) * 1.6)(D, H * Dh) * (D ** -0.5)),
            "wo": _w((lambda *s: torch.randn(*s, dtype=torch.bfloat16) * 0.2)(H * Dh, D) * ((H * Dh) ** -0.5)),
        }
    _B_in = _B_setup()

    return {
        "A_x": _A_in["x"],
        "A_k_cache": _A_in["k_cache"],
        "A_v_cache": _A_in["v_cache"],
        "A_wq": _A_in["wq"],
        "A_wo": _A_in["wo"],
        "B_x": _B_in["x"],
        "B_k_cache": _B_in["k_cache"],
        "B_v_cache": _B_in["v_cache"],
        "B_wq": _B_in["wq"],
        "B_wo": _B_in["wo"],
    }

def reference(A_x, A_k_cache, A_v_cache, A_wq, A_wo, B_x, B_k_cache, B_v_cache, B_wq, B_wo):
    def _A_ref(x, k_cache, v_cache, wq, wo):
        B, Sq, D = x.shape
        Hq, Dh = 32, 128
        Hkv, Sk = k_cache.shape[1], k_cache.shape[2]
        W = min(4096, max(256, Sk // 4))
        rep = Hq // Hkv
        q = (lambda x, *d: x.permute(*d))((x @ wq).reshape(B, Sq, Hq, Dh), 0, 2, 1, 3)
        k = (lambda x, n, axis: torch.repeat_interleave(x, n, dim=axis))(k_cache[:, :, Sk - W:, :], rep, axis=1)
        v = (lambda x, n, axis: torch.repeat_interleave(x, n, dim=axis))(v_cache[:, :, Sk - W:, :], rep, axis=1)
        scores = torch.einsum("bhqd,bhkd->bhqk", q, k) * (Dh ** -0.5)
        p = _softmax(scores, axis=-1)
        o = torch.einsum("bhqk,bhkd->bhqd", p, v)
        return (lambda x, *d: x.permute(*d))(o, 0, 2, 1, 3).reshape(B, Sq, Hq * Dh) @ wo

    def _B_ref(x, k_cache, v_cache, wq, wo):
        B, Sq, D = x.shape
        H, Dh = 32, 128
        q = (lambda x, *d: x.permute(*d))((x @ wq).reshape(B, Sq, H, Dh), 0, 2, 1, 3)
        scores = torch.einsum("bhqd,bhkd->bhqk", q, k_cache) * (Dh ** -0.5)
        p = _softmax(scores, axis=-1)
        o = torch.einsum("bhqk,bhkd->bhqd", p, v_cache)
        return (lambda x, *d: x.permute(*d))(o, 0, 2, 1, 3).reshape(B, Sq, H * Dh) @ wo

    a = _A_ref(A_x, A_k_cache, A_v_cache, A_wq, A_wo)
    b = _B_ref(B_x, B_k_cache, B_v_cache, B_wq, B_wo)
    return torch.concatenate([a, b], axis=-1)
```

```python
import re

TRANS = ("v_exp_f32", "v_log_f32", "v_rcp_f32", "v_rsq_f32", "v_sqrt_f32", "v_sin_f32", "v_cos_f32")

def _regs(tok):
    tok = tok.strip()
    neg = tok.lstrip("-")
    m = re.fullmatch(r"abs\((.*)\)", neg)
    if m: neg = m.group(1)
    m = re.fullmatch(r"([vsa])\[(\d+):(\d+)\]", neg)
    if m: return {f"{m.group(1)}{i}" for i in range(int(m.group(2)), int(m.group(3)) + 1)}
    m = re.fullmatch(r"([vsa])(\d+)", neg)
    if m: return {neg}
    if neg in ("vcc", "vcc_lo", "vcc_hi"): return {"vcc"}
    if neg in ("exec", "exec_lo", "exec_hi"): return {"exec"}
    if neg == "m0": return {"m0"}
    return set()

class Ins:
    def __init__(self, text):
        self.text = text
        t = text.split(";")[0].strip()
        self.label = t.endswith(":")
        self.directive = t.startswith(".")
        self.op = ""
        self.defs = set(); self.uses = set()
        if self.label or self.directive or not t:
            return
        parts = t.split(None, 1)
        self.op = parts[0]
        rest = parts[1] if len(parts) > 1 else ""
        ops = []; depth = 0; cur = ""
        for ch in rest:
            if ch in "[(": depth += 1
            if ch in "])": depth -= 1
            if ch == "," and depth == 0:
                ops.append(cur); cur = ""
            else: cur += ch
        if cur.strip(): ops.append(cur)
        mods = ""
        if ops:
            lp = ops[-1].strip().split(None, 1)
            ops[-1] = lp[0]
            mods = lp[1] if len(lp) > 1 else ""
        self.ops = [o.strip() for o in ops]; self.mods = mods
        op = self.op
        self.valu = op.startswith("v_")
        self.mfma = op.startswith("v_mfma")
        self.dot = op.startswith("v_dot")
        self.dpp = "_dpp" in op or any(k in mods for k in ("row_", "quad_perm", "wave_"))
        self.trans = any(op.startswith(x) for x in TRANS)
        self.perml = op.startswith("v_permlane")
        self.rdlane = op.startswith("v_readlane") or op.startswith("v_readfirstlane")
        self.vmem = op.startswith("buffer_") or op.startswith("global_")
        self.ds = op.startswith("ds_")
        self.salu = op.startswith("s_")
        R = [_regs(o) for o in self.ops]
        if self.valu:
            if op.startswith("v_cmp"):
                self.defs |= R[0]; [self.uses.update(r) for r in R[1:]]
                if op.startswith("v_cmpx"): self.defs.add("exec")
            elif self.perml or op.startswith("v_swap"):
                self.defs |= R[0] | R[1]; self.uses |= R[0] | R[1]
            else:
                self.defs |= R[0]
                k = 1
                if "_co_" in op: self.defs |= R[1]; k = 2
                [self.uses.update(r) for r in R[k:]]
                if op.startswith("v_dot2c") or op.startswith("v_fmac") or self.dpp: self.uses |= R[0]
        elif self.vmem:
            if "_load" in op: self.defs |= R[0]; [self.uses.update(r) for r in R[1:]]
            else: [self.uses.update(r) for r in R]
            self.widestore = ("store_dwordx4" in op or "store_dwordx3" in op)
            self.sdata = R[0] if op.startswith("buffer_store") else (R[1] if op.startswith("global_store") else set())
        elif self.ds:
            if "read" in op or "rtn" in op or "permute" in op or "swizzle" in op:
                self.defs |= R[0]; [self.uses.update(r) for r in R[1:]]
            else: [self.uses.update(r) for r in R]
        elif self.salu:
            if op.startswith("s_cmp") or op.startswith("s_cbranch") or op in ("s_waitcnt", "s_nop", "s_barrier", "s_branch", "s_sleep", "s_setprio", "s_endpgm", "s_setpc_b64"):
                [self.uses.update(r) for r in R]
            else:
                if R: self.defs |= R[0]
                [self.uses.update(r) for r in R[1:]]
                if "saveexec" in op: self.defs.add("exec")
    def states(self):
        if self.label or self.directive or not self.op: return 0
        if self.op == "s_nop": return int(self.ops[0], 0) + 1
        return 1

def need(prod, cons):
    n = 0
    v = lambda S: {r for r in S if r[0] in "va" and r != "vcc"}
    s = lambda S: {r for r in S if r[0] == "s" or r == "vcc"}
    if prod.op == "" or cons.op == "": return 0
    if prod.valu:
        pv = v(prod.defs); ps = s(prod.defs)
        raw = pv & cons.uses; waw = pv & cons.defs
        if prod.mfma:
            passes = 8 if "32x32" in prod.op else 4
            if cons.mfma:
                srcc = _regs(cons.ops[3]); ab = _regs(cons.ops[1]) | _regs(cons.ops[2])
                if pv & ab: n = max(n, {4: 8, 8: 12}[passes])
                if pv & srcc and srcc != pv: n = max(n, {4: 6, 8: 10}[passes])
                if waw and not (pv & srcc): n = max(n, {4: 8, 8: 12}[passes])
            elif raw or waw: n = max(n, {4: 8, 8: 12}[passes])
            if cons.valu and not cons.mfma and (_regs(prod.ops[3]) & cons.defs): n = max(n, {4: 3, 8: 7}[passes])
        else:
            if cons.valu:
                if cons.mfma and raw: n = max(n, 2)
                if cons.dpp and raw: n = max(n, 2)
                if cons.perml and raw: n = max(n, 2)
                if cons.rdlane and raw: n = max(n, 1)
                if prod.trans and raw and not cons.trans: n = max(n, 1)
                if ps & cons.uses: n = max(n, 4 if cons.rdlane else 2)
                if "exec" in prod.defs: n = max(n, 5)
            if prod.dot and (raw or waw):
                same = cons.op.replace("_e32", "").replace("_dpp", "") == prod.op.replace("_e32", "").replace("_dpp", "")
                if same:
                    ab = set()
                    for o in cons.ops[1:3]: ab |= _regs(o)
                    if pv & ab: n = max(n, 3)
                else: n = max(n, 3)
            if cons.vmem and (ps & cons.uses): n = max(n, 5)
            if cons.salu and (ps & cons.uses): n = max(n, 1)
    if prod.vmem and getattr(prod, "widestore", False):
        if prod.sdata & cons.defs: n = max(n, 2)
    if prod.salu and "m0" in prod.defs and (cons.vmem or cons.ds): n = max(n, 1)
    return n

class Asm:
    def __init__(self):
        self.lines = []
    def __call__(self, text):
        for l in text.split("\n"):
            l = l.strip()
            if l: self.lines.append(l)
    def label(self, name): self.lines.append(name + ":")
    def render(self, window=14):
        out = []; inserted = 0
        for l in self.lines:
            ins = Ins(l)
            if ins.op:
                dist = 0; req = 0
                for p in reversed(out):
                    if dist >= window: break
                    if p.op:
                        k = need(p, ins) - dist
                        if k > req: req = k
                    dist += p.states()
                if req > 0:
                    out.append(Ins(f"s_nop {req-1}")); inserted += 1
            out.append(ins)
        txt = []
        for i in out:
            txt.append(i.text if (i.label or i.directive or i.text.startswith(";")) else "  " + i.text)
        return "\n".join(txt) + "\n", inserted
```

```python
import sys, json
sys.path.insert(0, "dev")
from asmlib import Asm
NAME = "concat_heads__sliding_block_cached__mha_block_cached__decode"

WS_QP, WS_PART, WS_ML, WS_Y = 0, 1 << 20, 2 << 20, (2 << 20) + (64 << 10)
WS_SIZE = 512 << 20
STAMP_OFF = 64 << 20
L_QB, L_QA, L_TAG, L_CNT, L_MLA, L_WT, L_OA, L_YR = 0, 256, 1280, 1296, 1408, 1536, 2048, 10240
LDS_BYTES = 16384
vLane, vO0, vO1 = 1, 2, 3
vT = [4, 5, 6, 7]
vQ = 8
vAcc = 12
vt = 20
vZ0, vZ1, vZA = 28, 29, 30
vP = 32
vLo, vHi = 34, 35
vS = 36
vG4 = 44
vM, vL, vC, vG = 48, 49, 50, 51
vU = [52, 53, 54, 55]
vW = 56
vRing = 64
vRaw = 192
vBop = 208
NVGPR = 224
sWave, sW, sX, sI, sH, sB, sS, sR = 3, 4, 5, 6, 7, 8, 9, 10
sOff = 24
sT = [25, 26, 27, 11]
sTag = 28
sRet = 30
sMc1, sMc0 = 34, 36
sScale, sLog2e, sHiMask = 38, 39, 40
sSpin, sBr, sHH = 41, 42, 43
sSel0, sSel1 = 46, 47
sPub = 44
sU = 45
K_AX, K_AK, K_AV, K_AWQ, K_AWO, K_BX, K_BK, K_BV, K_BWQ, K_BWO, K_OUT, K_DBG, K_WS = [64 + 2 * i for i in range(13)]
SPIN = 1 << 18

def slot(G, s): return vRing + (G * 8 + s) * 4

def gen(diag=False):
    a = Asm()
    nst = [0]
    def stamp(i):
        if diag: a(f"s_memrealtime s[{48+2*i}:{49+2*i}]")
    def srd(base, ptr, size):
        a(f"s_mov_b32 s{base}, s{ptr}\ns_mov_b32 s{base+1}, s{ptr+1}\ns_mov_b32 s{base+2}, {size}\ns_mov_b32 s{base+3}, 0x00020000")
    def issue(G):
        for s in range(8):
            r = slot(G, s)
            a(f"buffer_load_dwordx4 v[{r}:{r+3}], v{vO0 + (s >> 2)}, s[12:15], s{sOff} offen offset:{(s & 3) * 1024} nt")
        a(f"s_add_u32 s{sOff}, s{sOff}, 0x8000\ns_and_b32 s{sOff}, s{sOff}, 0x7ffff")
    def call(lbl): a(f"s_call_b64 s[{sRet}:{sRet+1}], {lbl}")
    def ret(): a(f"s_setpc_b64 s[{sRet}:{sRet+1}]")
    def row_allreduce(op, regs):
        for m in ("row_mirror", "row_half_mirror", "quad_perm:[2,3,0,1]", "quad_perm:[1,0,3,2]"):
            for x in regs: a(f"{op}_dpp v{x}, v{x}, v{x} {m} row_mask:0xf bank_mask:0xf")
    def xrow(op, x, tmp, which):
        a(f"v_mov_b32 v{tmp}, v{x}\nv_permlane{which}_swap_b32 v{x}, v{tmp}\n{op} v{x}, v{x}, v{tmp}")
    def wave_allreduce(op, x, tmp):
        row_allreduce(op, [x]); xrow(op, x, tmp, 16); xrow(op, x, tmp, 32)
    def round_scores(x, y, t):
        a(f"""v_cvt_pk_bf16_f32 v{t}, v{x}, v{y}
              v_lshlrev_b32 v{x}, 16, v{t}
              v_and_b32 v{y}, s{sHiMask}, v{t}
              v_mul_f32 v{x}, s{sScale}, v{x}
              v_mul_f32 v{y}, s{sScale}, v{y}
              v_cvt_pk_bf16_f32 v{t}, v{x}, v{y}
              v_lshlrev_b32 v{x}, 16, v{t}
              v_and_b32 v{y}, s{sHiMask}, v{t}""")
    def tagcheck(bufs, lbl_retry, lbl_ok):
        acc = vU[0]
        first = True
        for b in bufs:
            a(f"v_xor_b32 v{vU[1]}, s{sTag}, v{b+1}\nv_xor_b32 v{vU[2]}, s{sTag+1}, v{b+3}")
            if first: a(f"v_or_b32 v{acc}, v{vU[1]}, v{vU[2]}")
            else: a(f"v_or3_b32 v{acc}, v{acc}, v{vU[1]}, v{vU[2]}")
            first = False
        a(f"""v_cmp_ne_u32 vcc, 0, v{acc}
              s_cbranch_vccz {lbl_ok}
              s_sub_u32 s{sSpin}, s{sSpin}, 1
              s_cbranch_scc0 {lbl_retry}""")
        a.label(lbl_ok)
    def helper_sync(cnt_off, name):
        a(f"""v_mov_b32 v{vU[0]}, {L_CNT + cnt_off}
              v_mov_b32 v{vU[1]}, 1
              s_mov_b64 exec, 1
              ds_add_u32 v{vU[0]}, v{vU[1]}
              s_mov_b64 exec, -1
              s_mov_b32 s{sSpin}, {SPIN * 16}""")
        a.label(name)
        a(f"""ds_read_b32 v{vU[1]}, v{vU[0]}
              s_waitcnt lgkmcnt(0)
              v_readfirstlane_b32 s{sT[0]}, v{vU[1]}
              s_cmp_ge_u32 s{sT[0]}, 4
              s_cbranch_scc1 {name}_ok
              s_sub_u32 s{sSpin}, s{sSpin}, 1
              s_cbranch_scc0 {name}""")
        a.label(name + "_ok")

    a.label(f"{NAME}_kernel")
    a(f"""s_cmp_ge_u32 s2, 256
          s_cbranch_scc1 L_end
          s_load_dwordx16 s[64:79], s[0:1], 0
          s_load_dwordx8 s[80:87], s[0:1], 64
          s_load_dwordx2 s[88:89], s[0:1], 96""")
    stamp(0)
    a(f"""v_lshrrev_b32 v{vT[0]}, 6, v0
          v_and_b32 v{vLane}, 63, v0
          v_readfirstlane_b32 s{sWave}, v{vT[0]}
          s_and_b32 s{sX}, s2, 7
          s_lshr_b32 s{sI}, s2, 3
          s_lshr_b32 s{sH}, s{sI}, 3
          s_lshl_b32 s{sT[0]}, s{sX}, 2
          s_add_u32 s{sH}, s{sH}, s{sT[0]}
          s_bfe_u32 s{sB}, s{sI}, 0x10002
          s_and_b32 s{sS}, s{sI}, 3
          s_and_b32 s{sR}, s{sI}, 7
          s_and_b32 s{sW}, s{sWave}, 3
          v_and_b32 v{vC}, 15, v{vLane}
          v_lshrrev_b32 v{vG}, 4, v{vLane}
          s_cmp_lt_u32 s{sWave}, 4
          s_cbranch_scc1 L_helper""")

    def consts():
        a(f"""s_mov_b32 s{sMc1}, 0xcccccccc
              s_mov_b32 s{sMc1+1}, 0xcccccccc
              s_mov_b32 s{sMc0}, 0xaaaaaaaa
              s_mov_b32 s{sMc0+1}, 0xaaaaaaaa
              s_mov_b32 s{sScale}, 0x3db504f3
              s_mov_b32 s{sLog2e}, 0x3fb8aa3b
              s_mov_b32 s{sHiMask}, 0xffff0000""")
        srd(16, K_WS, WS_SIZE)

    a(f"""s_lshl_b32 s{sT[0]}, s{sW}, 13
          v_lshlrev_b32 v{vO0}, 4, v{vLane}
          v_add_u32 v{vO0}, s{sT[0]}, v{vO0}
          v_add_u32 v{vO1}, 0x1000, v{vO0}
          s_lshl_b32 s{sU}, s{sB}, 5
          s_add_u32 s{sU}, s{sU}, s{sH}
          s_lshl_b32 s{sU}, s{sU}, 2
          s_add_u32 s{sU}, s{sU}, s{sS}
          s_lshl_b32 s{sU}, s{sU}, 19
          s_and_b32 s{sOff}, s{sI}, 15
          s_lshl_b32 s{sOff}, s{sOff}, 15
          s_mov_b32 s14, 0x80000
          s_mov_b32 s15, 0x00020000
          s_lshl_b32 s{sT[0]}, s2, 3
          s_add_u32 s{sT[0]}, s{sT[0]}, s{sWave}
          s_cmp_eq_u32 s{sT[0]}, 4
          s_cbranch_scc0 L_s_nonce_done
          s_memrealtime s[{sTag}:{sTag+1}]
          s_waitcnt lgkmcnt(0)
          s_or_b32 s{sTag}, s{sTag}, 1
          s_mul_i32 s{sT[0]}, s{sTag}, 0x9e3779b1
          s_add_u32 s{sT[0]}, s{sT[0]}, s{sTag+1}
          v_mov_b32 v{vG4}, s{sTag}
          v_mov_b32 v{vG4+1}, s{sT[0]}
          v_mov_b32 v{vT[0]}, 0""")
    srd(20, K_DBG, 256)
    a(f"""s_mov_b64 exec, 1
          buffer_store_dwordx2 v[{vG4}:{vG4+1}], v{vT[0]}, s[20:23], 0 offen sc1
          s_mov_b64 exec, -1""")
    a.label("L_s_nonce_done")
    a(f"""s_waitcnt lgkmcnt(0)
          s_add_u32 s12, s{K_BK}, s{sU}
          s_addc_u32 s13, s{K_BK+1}, 0""")
    for G in range(4): issue(G)
    stamp(1)
    consts()
    a(f"""v_lshlrev_b32 v{vT[0]}, 4, v{vC}
          v_mov_b32 v{vT[1]}, {L_TAG}
          s_barrier
          ds_read_b128 v[{vQ}:{vQ+3}], v{vT[0]} offset:{L_QB}
          ds_read_b64 v[{vT[2]}:{vT[3]}], v{vT[1]}
          s_mov_b64 vcc, 0
          s_waitcnt lgkmcnt(0)
          v_readfirstlane_b32 s{sTag}, v{vT[2]}
          v_readfirstlane_b32 s{sTag+1}, v{vT[3]}""")
    stamp(2)
    for c in range(4):
        if c == 3:
            a(f"s_add_u32 s12, s{K_BV}, s{sU}\ns_addc_u32 s13, s{K_BV+1}, 0")
        call("L_KB0")
        call("L_ISS3")
        a(f"v_mov_b32 v{vS+2*c}, v{vZ0}\nv_mov_b32 v{vS+2*c+1}, v{vZ1}")
    stamp(3)
    for k in range(0, 8, 2): round_scores(vS + k, vS + k + 1, vT[0])
    a(f"""v_max3_f32 v{vM}, v{vS}, v{vS+1}, v{vS+2}
          v_max3_f32 v{vM}, v{vM}, v{vS+3}, v{vS+4}
          v_max3_f32 v{vM}, v{vM}, v{vS+5}, v{vS+6}
          v_max_f32 v{vM}, v{vM}, v{vS+7}""")
    wave_allreduce("v_max_f32", vM, vT[0])
    for k in range(8): a(f"v_sub_f32 v{vS+k}, v{vS+k}, v{vM}")
    for k in range(8): a(f"v_mul_f32 v{vS+k}, s{sLog2e}, v{vS+k}")
    for k in range(8): a(f"v_exp_f32 v{vS+k}, v{vS+k}")
    a(f"v_add_f32 v{vL}, v{vS}, v{vS+1}")
    for k in range(2, 8): a(f"v_add_f32 v{vL}, v{vL}, v{vS+k}")
    for k in range(8): a(f"v_cvt_pk_bf16_f32 v{vS+k}, v{vS+k}, 0")
    wave_allreduce("v_add_f32", vL, vT[0])
    a(f"""s_add_u32 s{sPub}, s{sH}, 32
          s_lshl_b32 s{sPub}, s{sPub}, 1
          s_add_u32 s{sPub}, s{sPub}, s{sB}
          s_lshl_b32 s{sPub}, s{sPub}, 2
          s_add_u32 s{sPub}, s{sPub}, s{sS}
          s_lshl_b32 s{sPub}, s{sPub}, 2
          s_add_u32 s{sPub}, s{sPub}, s{sW}""")
    call("L_PUBML")
    for k in range(8): a(f"v_mov_b32 v{vAcc+k}, 0")
    a("s_mov_b64 vcc, 0")
    stamp(4)
    for c in range(4):
        if c == 3: a("s_mov_b32 s14, 0")
        a(f"v_mov_b32 v{vP}, v{vS+2*c}\nv_mov_b32 v{vP+1}, v{vS+2*c+1}")
        call("L_WS0")
        if c < 3: call("L_ISS3")
    stamp(5)
    call("L_RED8")
    call("L_PUBPART")
    stamp(6)
    a("s_barrier")
    a("s_branch L_exit")

    a.label("L_ISS3")
    issue(3); ret()

    for G in range(4):
        a.label(f"L_KB{G}")
        for s in range(8): a(f"v_mov_b32 v{vt+s}, 0")
        for s in range(8):
            r = slot(G, s)
            a(f"s_waitcnt vmcnt({31-s})")
            for j in range(4): a(f"v_dot2c_f32_bf16 v{vt+s}, v{r+j}, v{vQ+j}")
        if G < 3 and G != 2: issue(G)
        for k in range(4):
            a(f"v_add_f32_dpp v{vt+k}, v{vt+k}, v{vt+k} row_mirror row_mask:0xf bank_mask:0x3")
        for k in range(4):
            a(f"v_add_f32_dpp v{vt+k}, v{vt+k+4}, v{vt+k+4} row_mirror row_mask:0xf bank_mask:0xc")
        for k in range(2):
            a(f"v_add_f32_dpp v{vt+k}, v{vt+k}, v{vt+k} row_half_mirror row_mask:0xf bank_mask:0x5")
        for k in range(2):
            a(f"v_add_f32_dpp v{vt+k}, v{vt+k+2}, v{vt+k+2} row_half_mirror row_mask:0xf bank_mask:0xa")
        for k in range(2):
            a(f"v_add_f32_dpp v{vt+k}, v{vt+k}, v{vt+k} quad_perm:[2,3,0,1] row_mask:0xf bank_mask:0xf")
        a(f"v_cndmask_b32 v{vt}, v{vt}, v{vt+1}, s[{sMc1}:{sMc1+1}]")
        if G % 2 == 0:
            a(f"v_add_f32_dpp v{vZA}, v{vt}, v{vt} quad_perm:[1,0,3,2] row_mask:0xf bank_mask:0xf")
        else:
            a(f"v_add_f32_dpp v{vt}, v{vt}, v{vt} quad_perm:[1,0,3,2] row_mask:0xf bank_mask:0xf")
            a(f"v_cndmask_b32 v{vZ0 + G // 2}, v{vZA}, v{vt}, s[{sMc0}:{sMc0+1}]")
        if G == 2:
            a("s_cbranch_vccnz L_KBret")
            issue(2)
    a.label("L_KBret")
    ret()

    for G in range(4):
        a.label(f"L_WS{G}")
        a("s_nop 1")
        for s in range(8):
            r = slot(G, s)
            a(f"v_mov_b32_dpp v{vLo}, v{vP + G // 2} row_newbcast:{2*s + (G & 1)} row_mask:0xf bank_mask:0xf")
            a(f"v_lshlrev_b32 v{vHi}, 16, v{vLo}")
            a(f"s_waitcnt vmcnt({31-s})")
            for j in range(4):
                a(f"v_dot2c_f32_bf16 v{vAcc+2*j}, v{r+j}, v{vLo}")
                a(f"v_dot2c_f32_bf16 v{vAcc+2*j+1}, v{r+j}, v{vHi}")
        if G < 2: a("s_cbranch_vccnz L_WSret")
        if G < 3: issue(G)
    a.label("L_WSret")
    a("s_nop 1")
    ret()

    a.label("L_RED8")
    a("s_nop 1")
    for e in range(4): a(f"v_permlane32_swap_b32 v{vAcc+e}, v{vAcc+e+4}")
    for e in range(4): a(f"v_add_f32 v{vAcc+e}, v{vAcc+e}, v{vAcc+e+4}")
    for e in range(2): a(f"v_permlane16_swap_b32 v{vAcc+e}, v{vAcc+e+2}")
    for e in range(2): a(f"v_add_f32 v{vAcc+e}, v{vAcc+e}, v{vAcc+e+2}")
    ret()

    a.label("L_PUBML")
    a(f"""v_mov_b32 v{vG4}, v{vM}
          v_mov_b32 v{vG4+1}, s{sTag}
          v_mov_b32 v{vG4+2}, v{vL}
          v_mov_b32 v{vG4+3}, s{sTag+1}
          v_mov_b32 v{vT[0]}, 0
          s_lshl_b32 s{sT[0]}, s{sPub}, 4
          s_add_u32 s{sT[0]}, s{sT[0]}, {WS_ML}
          s_mov_b64 exec, 1
          buffer_store_dwordx4 v[{vG4}:{vG4+3}], v{vT[0]}, s[16:19], s{sT[0]} offen sc1
          s_mov_b64 exec, -1
          s_nop 0""")
    ret()

    a.label("L_PUBPART")
    a(f"""v_rcp_f32 v{vT[0]}, v{vL}
          v_lshrrev_b32 v{vT[1]}, 1, v{vG}
          v_lshlrev_b32 v{vT[1]}, 4, v{vT[1]}
          v_add_lshl_u32 v{vT[1]}, v{vT[1]}, v{vC}, 4
          v_mul_f32 v{vAcc}, v{vAcc}, v{vT[0]}
          v_mul_f32 v{vAcc+1}, v{vAcc+1}, v{vT[0]}
          v_cvt_pk_bf16_f32 v{vG4}, v{vAcc}, v{vAcc+1}
          v_mov_b32 v{vG4+1}, s{sTag}
          v_mov_b32 v{vG4+2}, v{vG4}
          v_mov_b32 v{vG4+3}, s{sTag+1}
          s_lshl_b32 s{sT[0]}, s{sPub}, 9
          s_add_u32 s{sT[0]}, s{sT[0]}, {WS_PART}
          v_permlane16_swap_b32 v{vG4}, v{vG4+2}
          s_mov_b32 exec_lo, 0xffff
          s_mov_b32 exec_hi, 0xffff
          buffer_store_dwordx4 v[{vG4}:{vG4+3}], v{vT[1]}, s[16:19], s{sT[0]} offen sc1
          s_mov_b64 exec, -1
          s_nop 0""")
    ret()

    a.label("L_QC")
    a(f"""v_lshlrev_b32 v{vO0}, 4, v{vLane}
          v_add_u32 v{vO1}, 0x1000, v{vO0}
          s_mov_b32 s{sSpin}, {SPIN}""")
    a.label("L_QC_poll")
    for p in range(8):
        r = vRing + 4 * p
        a(f"buffer_load_dwordx4 v[{r}:{r+3}], v{vO0 + (p >> 2)}, s[16:19], s{sT[1]} offen offset:{(p & 3) * 1024} sc1")
    a("s_waitcnt vmcnt(0)")
    tagcheck([vRing + 4 * p for p in range(8)], "L_QC_poll", "L_QC_ok")
    for p in range(1, 8):
        a(f"v_add_f32 v{vRing}, v{vRing}, v{vRing+4*p}\nv_add_f32 v{vRing+2}, v{vRing+2}, v{vRing+4*p+2}")
    a(f"""v_cvt_pk_bf16_f32 v{vT[0]}, v{vRing}, v{vRing+2}
          v_lshl_add_u32 v{vT[1]}, v{vC}, 2, v{vG}
          v_lshlrev_b32 v{vT[1]}, 2, v{vT[1]}
          v_add_u32 v{vT[1]}, s{sT[2]}, v{vT[1]}
          ds_write_b32 v{vT[1]}, v{vT[0]}""")
    ret()

    a.label("L_helper")
    a(f"""s_and_b32 s{sT[0]}, s{sW}, 1
          s_lshl_b32 s{sT[0]}, s{sT[0]}, 9
          s_lshl_b32 s{sT[1]}, s{sR}, 6
          s_add_u32 s{sT[0]}, s{sT[0]}, s{sT[1]}
          v_add_lshl_u32 v{vT[0]}, s{sT[0]}, v{vLane}, 1
          v_lshlrev_b32 v{vO0}, 17, v{vG}
          v_lshl_add_u32 v{vO0}, v{vC}, 4, v{vO0}
          s_lshl_b32 s{sOff}, s{sR}, 19
          s_lshl_b32 s{sT[0]}, s{sH}, 8
          s_add_u32 s{sOff}, s{sOff}, s{sT[0]}
          s_mov_b32 s14, 0x400000
          s_mov_b32 s15, 0x00020000
          s_mov_b32 s22, 2048
          s_mov_b32 s23, 0x00020000
          s_waitcnt lgkmcnt(0)
          s_cmp_lt_u32 s{sW}, 2
          s_cselect_b32 s12, s{K_BWQ}, s{K_AWQ}
          s_cselect_b32 s13, s{K_BWQ+1}, s{K_AWQ+1}
          s_cselect_b32 s20, s{K_BX}, s{K_AX}
          s_cselect_b32 s21, s{K_BX+1}, s{K_AX+1}
          buffer_load_ushort v{vP}, v{vT[0]}, s[20:23], 0 offen""")
    for k in range(16):
        r = slot(k & 1, k >> 1)
        a(f"buffer_load_dwordx4 v[{r}:{r+3}], v{vO0}, s[12:15], s{sOff} offen nt")
        if k < 15: a(f"s_add_u32 s{sOff}, s{sOff}, 0x2000")
    srd(20, K_DBG, 256)
    a(f"""v_mov_b32 v{vT[1]}, 0
          buffer_load_dwordx2 v[{vT[2]}:{vT[3]}], v{vT[1]}, s[20:23], 0 offen sc1""")
    a(f"""s_lshr_b32 s{sT[0]}, s{sI}, 4
          s_lshl_b32 s{sT[0]}, s{sT[0]}, 3
          s_add_u32 s{sT[0]}, s{sT[0]}, s{sX}
          s_lshl_b32 s{sOff}, s{sT[0]}, 21
          s_and_b32 s{sT[0]}, s{sI}, 15
          s_lshl_b32 s{sT[0]}, s{sT[0]}, 15
          s_add_u32 s{sOff}, s{sOff}, s{sT[0]}
          s_lshl_b32 s{sT[0]}, s{sW}, 13
          s_add_u32 s{sOff}, s{sOff}, s{sT[0]}
          s_add_u32 s{sOff}, s{sOff}, {6144*256}
          v_lshlrev_b32 v{vO0}, 4, v{vLane}
          v_add_u32 v{vO1}, 0x1000, v{vO0}
          s_mov_b32 s14, 0x2000000""")
    for G, p in ((2, K_AK), (3, K_AV)):
        a(f"s_mov_b32 s12, s{p}\ns_mov_b32 s13, s{p+1}")
        for s in range(8):
            r = slot(G, s)
            a(f"buffer_load_dwordx4 v[{r}:{r+3}], v{vO0 + (s >> 2)}, s[12:15], s{sOff} offen offset:{(s & 3) * 1024} nt")
    consts()
    a(f"""s_mov_b32 s{sSel0}, 0x05040100
          s_mov_b32 s{sSel1}, 0x07060302
          v_mov_b32 v{vU[0]}, {L_CNT}
          v_mov_b32 v{vG4}, 0
          v_mov_b32 v{vG4+1}, 0
          v_mov_b32 v{vG4+2}, 0
          v_mov_b32 v{vG4+3}, 0
          ds_write_b128 v{vU[0]}, v[{vG4}:{vG4+3}]""")
    for k in range(8): a(f"v_mov_b32 v{vAcc+k}, 0")
    a("s_mov_b64 vcc, -1")
    a("s_waitcnt vmcnt(17)")
    stamp(1)
    call("L_WS0"); call("L_WS1"); call("L_RED8")
    a(f"s_mov_b32 s{sSpin}, {SPIN}")
    a("s_waitcnt vmcnt(16)")
    a.label("L_h_nonce")
    a(f"""v_readfirstlane_b32 s{sTag}, v{vT[2]}
          v_readfirstlane_b32 s{sTag+1}, v{vT[3]}
          s_cmp_lg_u32 s{sTag}, 0
          s_cbranch_scc1 L_h_nonce_ok
          buffer_load_dwordx2 v[{vT[2]}:{vT[3]}], v{vT[1]}, s[20:23], 0 offen sc1
          s_waitcnt vmcnt(0)
          s_sub_u32 s{sSpin}, s{sSpin}, 1
          s_cbranch_scc0 L_h_nonce""")
    a.label("L_h_nonce_ok")
    a(f"""s_lshr_b32 s{sT[0]}, s{sW}, 1
          s_xor_b32 s{sT[0]}, s{sT[0]}, 1
          s_lshl_b32 s{sT[0]}, s{sT[0]}, 5
          s_add_u32 s{sT[0]}, s{sT[0]}, s{sH}
          s_lshl_b32 s{sT[0]}, s{sT[0]}, 1
          s_and_b32 s{sT[1]}, s{sW}, 1
          s_add_u32 s{sT[0]}, s{sT[0]}, s{sT[1]}
          s_lshl_b32 s{sT[0]}, s{sT[0]}, 3
          s_add_u32 s{sT[0]}, s{sT[0]}, s{sR}
          s_lshl_b32 s{sT[0]}, s{sT[0]}, 10
          v_mov_b32 v{vG4}, v{vAcc}
          v_mov_b32 v{vG4+1}, s{sTag}
          v_mov_b32 v{vG4+2}, v{vAcc+1}
          v_mov_b32 v{vG4+3}, s{sTag+1}
          buffer_store_dwordx4 v[{vG4}:{vG4+3}], v{vO0}, s[16:19], s{sT[0]} offen sc1""")
    stamp(2)
    a(f"""s_cmp_eq_u32 s{sW}, 0
          s_cbranch_scc0 L_h_bar1
          v_mov_b32 v{vT[1]}, {L_TAG}
          ds_write_b64 v{vT[1]}, v[{vT[2]}:{vT[3]}]
          s_add_u32 s{sT[1]}, s{sH}, 32
          s_lshl_b32 s{sT[1]}, s{sT[1]}, 1
          s_add_u32 s{sT[1]}, s{sT[1]}, s{sB}
          s_lshl_b32 s{sT[1]}, s{sT[1]}, 13
          s_mov_b32 s{sT[2]}, {L_QB}""")
    call("L_QC")
    a.label("L_h_bar1")
    a("s_waitcnt lgkmcnt(0)\ns_barrier")
    stamp(3)
    a(f"""s_lshl_b32 s{sU}, s{sX}, 2
          s_add_u32 s{sU}, s{sU}, s{sW}
          s_lshl_b32 s{sU}, s{sU}, 1
          s_lshr_b32 s{sT[0]}, s{sI}, 4
          s_add_u32 s{sU}, s{sU}, s{sT[0]}
          s_lshl_b32 s{sT[1]}, s{sU}, 13
          s_lshl_b32 s{sT[2]}, s{sW}, 8
          s_add_u32 s{sT[2]}, s{sT[2]}, {L_QA}""")
    call("L_QC")
    helper_sync(0, "L_hs0")
    a(f"s_mov_b32 s{sHH}, 0")
    a.label("L_A_loop")
    a(f"""s_lshl_b32 s{sT[0]}, s{sHH}, 8
          v_lshlrev_b32 v{vT[0]}, 4, v{vC}
          v_add_u32 v{vT[0]}, s{sT[0]}, v{vT[0]}
          ds_read_b128 v[{vQ}:{vQ+3}], v{vT[0]} offset:{L_QA}
          s_mov_b64 vcc, -1
          s_waitcnt lgkmcnt(0)""")
    call("L_KB2")
    a(f"v_mov_b32 v{vS+1}, v{vZA}\nv_mov_b32 v{vS}, v{vZA}")
    round_scores(vS, vS + 1, vT[0])
    a(f"v_mov_b32 v{vM}, v{vS}")
    wave_allreduce("v_max_f32", vM, vT[0])
    a(f"""v_sub_f32 v{vS}, v{vS}, v{vM}
          v_mul_f32 v{vS}, s{sLog2e}, v{vS}
          v_exp_f32 v{vS}, v{vS}
          v_mul_f32 v{vL}, 0.5, v{vS}
          v_cvt_pk_bf16_f32 v{vP+1}, v{vS}, 0""")
    wave_allreduce("v_add_f32", vL, vT[0])
    for k in range(8): a(f"v_mov_b32 v{vAcc+k}, 0")
    call("L_WS3"); call("L_RED8")
    a(f"""s_lshl_b32 s{sT[0]}, s{sHH}, 2
          s_add_u32 s{sT[0]}, s{sT[0]}, s{sW}
          s_lshl_b32 s{sT[1]}, s{sT[0]}, 9
          s_lshl_b32 s{sT[0]}, s{sT[0]}, 3
          v_lshlrev_b32 v{vT[0]}, 3, v{vLane}
          v_add_u32 v{vT[0]}, s{sT[1]}, v{vT[0]}
          v_mov_b32 v{vT[1]}, s{sT[0]}
          ds_write_b64 v{vT[0]}, v[{vAcc}:{vAcc+1}] offset:{L_OA}
          s_mov_b64 exec, 1
          ds_write_b64 v{vT[1]}, v[{vM}:{vM+1}] offset:{L_MLA}
          s_mov_b64 exec, -1
          s_add_u32 s{sHH}, s{sHH}, 1
          s_cmp_lt_u32 s{sHH}, 4
          s_cbranch_scc1 L_A_loop""")
    helper_sync(4, "L_hs1")
    R0 = vRing
    a(f"""s_lshl_b32 s{sT[0]}, s{sW}, 5
          v_mov_b32 v{vT[1]}, s{sT[0]}
          s_lshl_b32 s{sT[1]}, s{sW}, 11
          v_lshlrev_b32 v{vT[0]}, 3, v{vLane}
          v_add_u32 v{vT[0]}, s{sT[1]}, v{vT[0]}
          ds_read_b128 v[{R0}:{R0+3}], v{vT[1]} offset:{L_MLA}
          ds_read_b128 v[{R0+4}:{R0+7}], v{vT[1]} offset:{L_MLA+16}""")
    for k in range(4): a(f"ds_read_b64 v[{R0+8+2*k}:{R0+9+2*k}], v{vT[0]} offset:{L_OA + 512*k}")
    a(f"""s_waitcnt lgkmcnt(0)
          v_max3_f32 v{vM}, v{R0}, v{R0+2}, v{R0+4}
          v_max_f32 v{vM}, v{vM}, v{R0+6}""")
    for k in range(4): a(f"v_sub_f32 v{R0+2*k}, v{R0+2*k}, v{vM}")
    for k in range(4): a(f"v_mul_f32 v{R0+2*k}, s{sLog2e}, v{R0+2*k}")
    for k in range(4): a(f"v_exp_f32 v{R0+2*k}, v{R0+2*k}")
    a(f"""v_mul_f32 v{vL}, v{R0}, v{R0+1}
          v_mul_f32 v{vAcc}, v{R0}, v{R0+8}
          v_mul_f32 v{vAcc+1}, v{R0}, v{R0+9}""")
    for k in range(1, 4):
        a(f"""v_fmac_f32 v{vL}, v{R0+2*k}, v{R0+2*k+1}
              v_fmac_f32 v{vAcc}, v{R0+2*k}, v{R0+8+2*k}
              v_fmac_f32 v{vAcc+1}, v{R0+2*k}, v{R0+9+2*k}""")
    a(f"""s_lshl_b32 s{sPub}, s{sU}, 4
          s_and_b32 s{sT[0]}, s{sI}, 15
          s_add_u32 s{sPub}, s{sPub}, s{sT[0]}""")
    call("L_PUBML"); call("L_PUBPART")
    stamp(4)

    a(f"s_mov_b32 s{sBr}, 0")
    a.label("L_FIN")
    a(f"""s_cmp_eq_u32 s{sBr}, 0
          s_cselect_b32 s12, s{K_AWO}, s{K_BWO}
          s_cselect_b32 s13, s{K_AWO+1}, s{K_BWO+1}
          s_mov_b32 s14, 0x400000
          v_lshlrev_b32 v{vO0}, 13, v{vG}
          v_lshl_add_u32 v{vO0}, v{vC}, 3, v{vO0}
          v_add_u32 v{vO1}, 0x1000, v{vO0}
          s_lshl_b32 s{sOff}, s{sH}, 2
          s_add_u32 s{sOff}, s{sOff}, s{sW}
          s_lshl_b32 s{sOff}, s{sOff}, 15
          s_lshl_b32 s{sT[0]}, s{sR}, 7
          s_add_u32 s{sOff}, s{sOff}, s{sT[0]}""")
    for e in range(8):
        a(f"buffer_load_dwordx2 v[{vRaw+2*e}:{vRaw+2*e+1}], v{vO0 + (e >> 2)}, s[12:15], s{sOff} offen offset:{(e & 3) * 1024} nt")
    a(f"""s_lshl_b32 s{sU}, s{sBr}, 5
          s_add_u32 s{sU}, s{sU}, s{sH}
          v_and_b32 v{vT[2]}, 31, v{vLane}
          v_lshlrev_b32 v{vT[3]}, 4, v{vT[2]}
          v_lshlrev_b32 v{vO0}, 9, v{vC}
          v_lshl_add_u32 v{vO0}, v{vG}, 4, v{vO0}
          v_add_u32 v{vO1}, 0x2000, v{vO0}
          s_waitcnt vmcnt(0)""")
    for ct in range(4):
        for k, (ea, eb) in enumerate(((0, 1), (4, 5), (2, 3), (6, 7))):
            a(f"v_perm_b32 v{vBop+4*ct+k}, v{vRaw+2*eb+(ct>>1)}, v{vRaw+2*ea+(ct>>1)}, s{sSel0 + (ct & 1)}")
    a(f"""s_cmp_eq_u32 s{sBr}, 0
          s_cbranch_scc1 L_F_nobar""")
    stamp(6)
    a("s_barrier")
    a.label("L_F_nobar")
    a(f"""s_lshl_b32 s{sT[1]}, s{sU}, 9
          s_add_u32 s{sT[1]}, s{sT[1]}, {WS_ML}
          s_lshl_b32 s{sT[2]}, s{sU}, 14
          s_lshl_b32 s{sT[0]}, s{sW}, 6
          s_add_u32 s{sT[2]}, s{sT[2]}, s{sT[0]}
          s_add_u32 s{sT[2]}, s{sT[2]}, {WS_PART}
          s_mov_b32 s{sSpin}, {SPIN}""")
    a.label("L_F_mlpoll")
    a(f"""buffer_load_dwordx4 v[{vG4}:{vG4+3}], v{vT[3]}, s[16:19], s{sT[1]} offen sc1
          s_waitcnt vmcnt(0)""")
    tagcheck([vG4], "L_F_mlpoll", "L_F_mlok")
    PB = vRing
    def part_loads():
        for b in range(2):
            for t in range(2):
                r = PB + (b * 2 + t) * 4
                a(f"buffer_load_dwordx4 v[{r}:{r+3}], v{vO0 + b}, s[16:19], s{sT[2]} offen offset:{t * 256} sc1")
    part_loads()
    a(f"v_mov_b32 v{vM}, v{vG4}")
    row_allreduce("v_max_f32", [vM])
    a(f"""v_sub_f32 v{vG4}, v{vG4}, v{vM}
          v_mul_f32 v{vG4}, s{sLog2e}, v{vG4}
          v_exp_f32 v{vG4}, v{vG4}
          v_mul_f32 v{vG4}, v{vG4}, v{vG4+2}
          v_mov_b32 v{vL}, v{vG4}""")
    row_allreduce("v_add_f32", [vL])
    a(f"""v_rcp_f32 v{vL}, v{vL}
          s_lshl_b32 s{sT[0]}, s{sW}, 7
          v_lshl_add_u32 v{vT[0]}, v{vT[2]}, 2, s{sT[0]}
          v_mul_f32 v{vG4}, v{vG4}, v{vL}
          v_lshl_add_u32 v{vT[1]}, v{vG}, 4, s{sT[0]}
          ds_write_b32 v{vT[0]}, v{vG4} offset:{L_WT}
          ds_read_b128 v[{vW}:{vW+3}], v{vT[1]} offset:{L_WT}
          ds_read_b128 v[{vW+4}:{vW+7}], v{vT[1]} offset:{L_WT+64}
          s_mov_b32 s{sSpin}, {SPIN}
          s_branch L_F_pwait""")
    a.label("L_F_ppoll")
    part_loads()
    a.label("L_F_pwait")
    a("s_waitcnt vmcnt(0)")
    tagcheck([PB + 4 * k for k in range(4)], "L_F_ppoll", "L_F_pok")
    for b in range(2):
        a(f"v_mov_b32 v{PB+8*b+1}, v{PB+8*b+4}\nv_mov_b32 v{PB+8*b+3}, v{PB+8*b+6}")
    D = vRing + 32
    for b in range(2):
        for ct in range(4):
            d = D + (b * 4 + ct) * 4
            a(f"v_mfma_f32_16x16x32_bf16 v[{d}:{d+3}], v[{PB+8*b}:{PB+8*b+3}], v[{vBop+4*ct}:{vBop+4*ct+3}], 0")
    a(f"""s_lshl_b32 s{sT[0]}, s{sBr}, 2
          s_add_u32 s{sT[0]}, s{sT[0]}, s{sW}
          s_lshl_b32 s{sT[0]}, s{sT[0]}, 9
          v_lshrrev_b32 v{vT[0]}, 1, v{vG}
          v_lshlrev_b32 v{vT[0]}, 5, v{vT[0]}
          v_and_b32 v{vT[1]}, 1, v{vG}
          v_lshl_add_u32 v{vT[1]}, v{vC}, 1, v{vT[1]}
          v_add_lshl_u32 v{vT[0]}, v{vT[0]}, v{vT[1]}, 3
          v_add_u32 v{vT[0]}, s{sT[0]}, v{vT[0]}
          s_waitcnt lgkmcnt(0)""")
    for i in range(4):
        for b in range(2):
            for ct in range(4):
                d = D + (b * 4 + ct) * 4
                if i == 0: a(f"v_mul_f32 v{vAcc+b*4+ct}, v{vW+4*b}, v{d}")
                else: a(f"v_fmac_f32 v{vAcc+b*4+ct}, v{vW+4*b+i}, v{d+i}")
    call("L_RED8")
    a(f"""ds_write_b64 v{vT[0]}, v[{vAcc}:{vAcc+1}] offset:{L_YR}
          s_lshl_b32 s{sT[0]}, s{sBr}, 2
          s_add_u32 s{sT[0]}, s{sT[0]}, {L_CNT + 8}
          v_mov_b32 v{vU[0]}, s{sT[0]}
          v_mov_b32 v{vU[1]}, 1
          s_mov_b64 exec, 1
          ds_add_rtn_u32 v{vU[2]}, v{vU[0]}, v{vU[1]}
          s_mov_b64 exec, -1
          s_lshl_b32 s{sT[0]}, s{sBr}, 11
          v_lshl_add_u32 v{vT[0]}, v{vLane}, 3, s{sT[0]}
          s_waitcnt lgkmcnt(0)
          v_readfirstlane_b32 s{sT[0]}, v{vU[2]}
          s_cmp_eq_u32 s{sT[0]}, 3
          s_cbranch_scc0 L_F_next""")
    for k in range(4): a(f"ds_read_b64 v[{R0+2*k}:{R0+2*k+1}], v{vT[0]} offset:{L_YR + 512*k}")
    a(f"""s_lshl_b32 s{sT[0]}, s{sBr}, 3
          s_add_u32 s{sT[1]}, s{sT[0]}, s{sR}
          s_lshl_b32 s{sT[1]}, s{sT[1]}, 5
          s_add_u32 s{sT[1]}, s{sT[1]}, s{sH}
          s_lshl_b32 s{sT[1]}, s{sT[1]}, 10
          s_add_u32 s{sT[1]}, s{sT[1]}, {WS_Y}
          v_lshlrev_b32 v{vT[1]}, 4, v{vLane}
          v_mov_b32 v{vG4+1}, s{sTag}
          v_mov_b32 v{vG4+3}, s{sTag+1}
          s_waitcnt lgkmcnt(0)
          v_add_f32 v{vG4}, v{R0}, v{R0+2}
          v_add_f32 v{vG4+2}, v{R0+1}, v{R0+3}
          v_add_f32 v{R0+4}, v{R0+4}, v{R0+6}
          v_add_f32 v{R0+5}, v{R0+5}, v{R0+7}
          v_add_f32 v{vG4}, v{vG4}, v{R0+4}
          v_add_f32 v{vG4+2}, v{vG4+2}, v{R0+5}
          buffer_store_dwordx4 v[{vG4}:{vG4+3}], v{vT[1]}, s[16:19], s{sT[1]} offen sc1""")
    a(f"""s_bfe_u32 s{sT[1]}, s2, 0x30004
          s_add_u32 s{sT[1]}, s{sT[1]}, s{sT[0]}
          s_lshl_b32 s{sT[1]}, s{sT[1]}, 15
          s_lshr_b32 s{sT[2]}, s2, 7
          s_lshl_b32 s{sT[0]}, s{sT[2]}, 9
          s_add_u32 s{sT[1]}, s{sT[1]}, s{sT[0]}
          s_and_b32 s{sT[0]}, s2, 15
          s_lshl_b32 s{sT[0]}, s{sT[0]}, 5
          s_add_u32 s{sT[1]}, s{sT[1]}, s{sT[0]}
          s_add_u32 s{sT[1]}, s{sT[1]}, {WS_Y}
          v_lshrrev_b32 v{vT[0]}, 5, v{vLane}
          v_lshlrev_b32 v{vT[1]}, 10, v{vT[2]}
          v_lshl_add_u32 v{vT[1]}, v{vT[0]}, 4, v{vT[1]}
          v_lshlrev_b32 v{vT[0]}, 2, v{vT[0]}
          s_lshl_b32 s{sT[2]}, s{sT[2]}, 11
          s_lshl_b32 s{sT[0]}, s{sBr}, 10
          s_add_u32 s{sT[2]}, s{sT[2]}, s{sT[0]}
          s_and_b32 s{sT[0]}, s2, 127
          s_lshl_b32 s{sT[0]}, s{sT[0]}, 3
          s_add_u32 s{sT[2]}, s{sT[2]}, s{sT[0]}
          s_mov_b32 s{sSpin}, {SPIN}""")
    srd(20, K_OUT, 4096)
    a.label("L_F_ypoll")
    a(f"""buffer_load_dwordx4 v[{R0}:{R0+3}], v{vT[1]}, s[16:19], s{sT[1]} offen sc1
          s_waitcnt vmcnt(0)""")
    tagcheck([R0], "L_F_ypoll", "L_F_yok")
    row_allreduce("v_add_f32", [R0, R0 + 2])
    a(f"""v_mov_b32 v{R0+1}, v{R0}
          v_mov_b32 v{R0+3}, v{R0+2}
          v_permlane16_swap_b32 v{R0}, v{R0+1}
          v_permlane16_swap_b32 v{R0+2}, v{R0+3}
          v_add_f32 v{R0}, v{R0}, v{R0+1}
          v_add_f32 v{R0+2}, v{R0+2}, v{R0+3}
          v_cvt_pk_bf16_f32 v{R0}, v{R0}, v{R0+2}
          s_mov_b32 exec_lo, 1
          s_mov_b32 exec_hi, 1
          buffer_store_dword v{R0}, v{vT[0]}, s[20:23], s{sT[2]} offen
          s_mov_b64 exec, -1""")
    a.label("L_F_next")
    if diag:
        a(f"s_cmp_eq_u32 s{sBr}, 0\ns_cbranch_scc0 L_F_nost")
        stamp(5)
        a.label("L_F_nost")
    a(f"""s_add_u32 s{sBr}, s{sBr}, 1
          s_cmp_lt_u32 s{sBr}, 2
          s_cbranch_scc1 L_FIN""")

    a.label("L_exit")
    if diag:
        stamp(7)
        a(f"""s_lshl_b32 s{sT[0]}, s2, 3
              s_add_u32 s{sT[0]}, s{sT[0]}, s{sWave}
              s_lshl_b32 s{sT[0]}, s{sT[0]}, 6
              s_add_u32 s{sT[0]}, s{sT[0]}, {STAMP_OFF}
              s_waitcnt vmcnt(0) lgkmcnt(0)
              v_mov_b32 v{vT[0]}, 0""")
        for k in range(16): a(f"v_mov_b32 v{vRing+k}, s{48+k}")
        a("s_mov_b64 exec, 1")
        for k in range(4): a(f"buffer_store_dwordx4 v[{vRing+4*k}:{vRing+4*k+3}], v{vT[0]}, s[16:19], s{sT[0]} offen offset:{16*k}")
    a.label("L_end")
    a("s_endpgm")

    body, nops = a.render()
    head = open(f"cdna_kernels/{NAME}.s.ref").read().split("; Override launch")[0]
    txt = head + f"""; Generated by dev/gen.py (hand-written generator). One workgroup per CU: waves 0-3 helpers, waves 4-7 stream branch-B K/V.
; @launch grid=(256,1,1) block=(512,1,1) lds={LDS_BYTES}
.amdgcn_target "amdgcn-amd-amdhsa--gfx950"
.text
.globl {NAME}_kernel
.p2align 8
.type {NAME}_kernel,@function
{body}.section .rodata,"a"
.p2align 6
.amdhsa_kernel {NAME}_kernel
  .amdhsa_next_free_vgpr {NVGPR}
  .amdhsa_next_free_sgpr 96
  .amdhsa_accum_offset {NVGPR}
  .amdhsa_group_segment_fixed_size 0
  .amdhsa_kernarg_size 104
  .amdhsa_user_sgpr_count 2
  .amdhsa_user_sgpr_kernarg_segment_ptr 1
  .amdhsa_system_sgpr_workgroup_id_x 1
  .amdhsa_float_denorm_mode_32 3
.end_amdhsa_kernel
"""
    return txt, nops

if __name__ == "__main__":
    out = sys.argv[1]
    kw = json.loads(sys.argv[2]) if len(sys.argv) > 2 else {}
    txt, nops = gen(**kw)
    open(out, "w").write(txt)
    print(out, "lines", txt.count("\n"), "auto nops", nops)
```

```python
import re

TRANS = ("v_exp_f32", "v_log_f32", "v_rcp_f32", "v_rsq_f32", "v_sqrt_f32", "v_sin_f32", "v_cos_f32")

def _regs(tok):
    tok = tok.strip()
    neg = tok.lstrip("-")
    m = re.fullmatch(r"abs\((.*)\)", neg)
    if m: neg = m.group(1)
    m = re.fullmatch(r"([vsa])\[(\d+):(\d+)\]", neg)
    if m: return {f"{m.group(1)}{i}" for i in range(int(m.group(2)), int(m.group(3)) + 1)}
    m = re.fullmatch(r"([vsa])(\d+)", neg)
    if m: return {neg}
    if neg in ("vcc", "vcc_lo", "vcc_hi"): return {"vcc"}
    if neg in ("exec", "exec_lo", "exec_hi"): return {"exec"}
    if neg == "m0": return {"m0"}
    return set()

class Ins:
    def __init__(self, text):
        self.text = text
        t = text.split(";")[0].strip()
        self.label = t.endswith(":")
        self.directive = t.startswith(".")
        self.op = ""
        self.defs = set(); self.uses = set()
        if self.label or self.directive or not t:
            return
        parts = t.split(None, 1)
        self.op = parts[0]
        rest = parts[1] if len(parts) > 1 else ""
        ops = []; depth = 0; cur = ""
        for ch in rest:
            if ch in "[(": depth += 1
            if ch in "])": depth -= 1
            if ch == "," and depth == 0:
                ops.append(cur); cur = ""
            else: cur += ch
        if cur.strip(): ops.append(cur)
        mods = ""
        if ops:
            lp = ops[-1].strip().split(None, 1)
            ops[-1] = lp[0]
            mods = lp[1] if len(lp) > 1 else ""
        self.ops = [o.strip() for o in ops]; self.mods = mods
        op = self.op
        self.valu = op.startswith("v_")
        self.mfma = op.startswith("v_mfma")
        self.dot = op.startswith("v_dot")
        self.dpp = "_dpp" in op or any(k in mods for k in ("row_", "quad_perm", "wave_"))
        self.trans = any(op.startswith(x) for x in TRANS)
        self.perml = op.startswith("v_permlane")
        self.rdlane = op.startswith("v_readlane") or op.startswith("v_readfirstlane")
        self.vmem = op.startswith("buffer_") or op.startswith("global_")
        self.ds = op.startswith("ds_")
        self.salu = op.startswith("s_")
        R = [_regs(o) for o in self.ops]
        if self.valu:
            if op.startswith("v_cmp"):
                self.defs |= R[0]; [self.uses.update(r) for r in R[1:]]
                if op.startswith("v_cmpx"): self.defs.add("exec")
            elif self.perml or op.startswith("v_swap"):
                self.defs |= R[0] | R[1]; self.uses |= R[0] | R[1]
            else:
                self.defs |= R[0]
                k = 1
                if "_co_" in op: self.defs |= R[1]; k = 2
                [self.uses.update(r) for r in R[k:]]
                if op.startswith("v_dot2c") or op.startswith("v_fmac") or self.dpp: self.uses |= R[0]
        elif self.vmem:
            if "_load" in op: self.defs |= R[0]; [self.uses.update(r) for r in R[1:]]
            else: [self.uses.update(r) for r in R]
            self.widestore = ("store_dwordx4" in op or "store_dwordx3" in op)
            self.sdata = R[0] if op.startswith("buffer_store") else (R[1] if op.startswith("global_store") else set())
        elif self.ds:
            if "read" in op or "rtn" in op or "permute" in op or "swizzle" in op:
                self.defs |= R[0]; [self.uses.update(r) for r in R[1:]]
            else: [self.uses.update(r) for r in R]
        elif self.salu:
            if op.startswith("s_cmp") or op.startswith("s_cbranch") or op in ("s_waitcnt", "s_nop", "s_barrier", "s_branch", "s_sleep", "s_setprio", "s_endpgm", "s_setpc_b64"):
                [self.uses.update(r) for r in R]
            else:
                if R: self.defs |= R[0]
                [self.uses.update(r) for r in R[1:]]
                if "saveexec" in op: self.defs.add("exec")
    def states(self):
        if self.label or self.directive or not self.op: return 0
        if self.op == "s_nop": return int(self.ops[0], 0) + 1
        return 1

def need(prod, cons):
    n = 0
    v = lambda S: {r for r in S if r[0] in "va" and r != "vcc"}
    s = lambda S: {r for r in S if r[0] == "s" or r == "vcc"}
    if prod.op == "" or cons.op == "": return 0
    if prod.valu:
        pv = v(prod.defs); ps = s(prod.defs)
        raw = pv & cons.uses; waw = pv & cons.defs
        if prod.mfma:
            passes = 8 if "32x32" in prod.op else 4
            if cons.mfma:
                srcc = _regs(cons.ops[3]); ab = _regs(cons.ops[1]) | _regs(cons.ops[2])
                if pv & ab: n = max(n, {4: 8, 8: 12}[passes])
                if pv & srcc and srcc != pv: n = max(n, {4: 6, 8: 10}[passes])
                if waw and not (pv & srcc): n = max(n, {4: 8, 8: 12}[passes])
            elif raw or waw: n = max(n, {4: 8, 8: 12}[passes])
            if cons.valu and not cons.mfma and (_regs(prod.ops[3]) & cons.defs): n = max(n, {4: 3, 8: 7}[passes])
        else:
            if cons.valu:
                if cons.mfma and raw: n = max(n, 2)
                if cons.dpp and raw: n = max(n, 2)
                if cons.perml and raw: n = max(n, 2)
                if cons.rdlane and raw: n = max(n, 1)
                if prod.trans and raw and not cons.trans: n = max(n, 1)
                if ps & cons.uses: n = max(n, 4 if cons.rdlane else 2)
                if "exec" in prod.defs: n = max(n, 5)
            if prod.dot and (raw or waw):
                same = cons.op.replace("_e32", "").replace("_dpp", "") == prod.op.replace("_e32", "").replace("_dpp", "")
                if same:
                    ab = set()
                    for o in cons.ops[1:3]: ab |= _regs(o)
                    if pv & ab: n = max(n, 3)
                else: n = max(n, 3)
            if cons.vmem and (ps & cons.uses): n = max(n, 5)
            if cons.salu and (ps & cons.uses): n = max(n, 1)
    if prod.vmem and getattr(prod, "widestore", False):
        if prod.sdata & cons.defs: n = max(n, 2)
    if prod.salu and "m0" in prod.defs and (cons.vmem or cons.ds): n = max(n, 1)
    return n

class Asm:
    def __init__(self):
        self.lines = []
    def __call__(self, text):
        for l in text.split("\n"):
            l = l.strip()
            if l: self.lines.append(l)
    def label(self, name): self.lines.append(name + ":")
    def render(self, window=14, nstub=0, total=0):
        out = []; inserted = 0
        for l in self.lines:
            ins = Ins(l)
            if ins.op:
                dist = 0; req = 0
                for p in reversed(out):
                    if dist >= window: break
                    if p.op:
                        k = need(p, ins) - dist
                        if k > req: req = k
                    dist += p.states()
                if req > 0:
                    out.append(Ins(f"s_nop {req-1}")); inserted += 1
            out.append(ins)
        if total:
            out = self._stubs(out, nstub, total)
        txt = []
        for i in out:
            txt.append(i.text if (i.label or i.directive or i.text.startswith(";")) else "  " + i.text)
        return "\n".join(txt) + "\n", inserted

    def _stubs(self, out, nstub, total):
        import subprocess, tempfile, os
        src = '.amdgcn_target "amdgcn-amd-amdhsa--gfx950"\n.text\n' + "\n".join(i.text for i in out) + "\n" + "".join(f"L_stub{k}:\n" for k in range(total))
        with tempfile.TemporaryDirectory() as d:
            open(d + "/a.s", "w").write(src)
            subprocess.run(["clang", "-x", "assembler", "-target", "amdgcn-amd-amdhsa", "-mcpu=gfx950", "-c", d + "/a.s", "-o", d + "/a.o"], check=True)
            dis = subprocess.run(["llvm-objdump", "-d", "--mcpu=gfx950", d + "/a.o"], capture_output=True, text=True, check=True).stdout
        sizes = [4 * len(l.split("//")[1].split(":")[1].split()) for l in dis.splitlines() if "//" in l]
        real = [i for i in out if i.op]
        assert len(sizes) == len(real), (len(sizes), len(real))
        res = []; off = 0; k = 0; n = 0; prev = None
        for i in out:
            if i.op and k < nstub and off >= (k + 1) * 1024:
                res.append(Ins(f"s_branch L_skip{k}")); res.append(Ins(f"L_stub{k}:")); res.append(Ins("s_setpc_b64 s[30:31]")); res.append(Ins(f"L_skip{k}:"))
                off += 8; k += 1
            res.append(i)
            if i.op: off += sizes[n]; n += 1
        while k < total:
            res.append(Ins(f"L_stub{k}:")); res.append(Ins("s_setpc_b64 s[30:31]")); k += 1
        self.code_bytes = off
        return res
```

```python
import sys, json
sys.path.insert(0, "dev")
from asmlib import Asm
NAME = "concat_heads__sliding_block_cached__mha_block_cached__decode"

WS_EPOCH, WS_Y, WS_QP, WS_PART, WS_PB = 0, 64 << 10, 1 << 20, 2 << 20, (3 << 20) + (512 << 10)
REC = 640
WS_SIZE = 512 << 20
STAMP_OFF = 64 << 20
L_QB, L_QA, L_CNT, L_MLA, L_WT, L_OA, L_YR = 0, 256, 1280, 1408, 1536, 2048, 10240
LDS_BYTES = 16384
vLane, vO0, vO1 = 1, 2, 3
vT = [4, 5, 6, 7]
vQ = 8
vAcc = 12
vt = 20
vZ0, vZ1, vZA = 28, 29, 30
vP = 32
vLo, vHi = 34, 35
vS = 36
vG4 = 44
vM, vL, vC, vG = 48, 49, 50, 51
vU = [52, 53, 54, 55]
vW = 56
vRing = 64
vRaw = 192
vAd = 208
vBop = 208
NVGPR = 224
sWave, sW, sX, sI, sH, sB, sS, sR = 3, 4, 5, 6, 7, 8, 9, 10
sOff = 24
sT = [25, 26, 27, 11]
sTag = 28
sRet = 30
sEp = 32
sMc1, sMc0 = 34, 36
sScale, sLog2e, sHiMask = 38, 39, 40
sSpin, sBr, sHH = 41, 42, 43
sPub, sU = 44, 45
sSel0, sSel1 = 46, 47
sPubO, sShift = 90, 91
sP = [92, 93, 94, 95]
K_AX, K_AK, K_AV, K_AWQ, K_AWO, K_BX, K_BK, K_BV, K_BWQ, K_BWO, K_OUT, K_DBG, K_WS = [64 + 2 * i for i in range(13)]
SPIN = 1 << 18
NSTUB = 9

def slot(G, s): return vRing + (G * 8 + s) * 4

def gen(diag=False, bar0=True, asleep=32, stubs=True, abl_noA=False, abl_noq=False, abl_notail=False,
        TK=(5,), TV=(12,), vfrom=7, TH=0, early_bar=False, masked=True, pre=-1, midbar=2, wo_at="mid", pat=2, pata=1, pld="nt", ya="h3", tsleep=0, local=True, slow=256, perm=0, ldf="nt", yld="sc1", yst="sc1", sprio=0, abl_Apoll=False, abl_Acomp=False, abl_Akv=False, fixdur=0):
    assert max(TK) <= 12 and max(TV) <= 12
    two = tuple(TK) != tuple(TV)
    def iss(c, G): call(f"L_ISS{'V' if (two and c >= vfrom) else 'K'}{G}")
    a = Asm()
    stf = "" if local else "sc1"
    def tstamp(i):
        if diag == 3: a(f"s_memrealtime s[{48+2*i}:{49+2*i}]")
    def stamp(i):
        if diag == 2 and i in (1, 2): return
        if diag: a(f"s_memrealtime s[{48+2*i}:{49+2*i}]")
        if diag == 2 and i == 0: a("s_memtime s[50:51]")
        if diag == 2 and i == 5: a("s_memtime s[52:53]")
    def srd(base, ptr, size):
        a(f"s_mov_b32 s{base}, s{ptr}\ns_mov_b32 s{base+1}, s{ptr+1}\ns_mov_b32 s{base+2}, {size}\ns_mov_b32 s{base+3}, 0x00020000")
    def addr(s, p):
        if p == 8: return (vAd + (s >> 2), (s & 3) * 1024)
        return (vAd + s // p, (s % p) * 1024)
    def addr_setup(p):
        a(f"""s_lshl_b32 s{sT[0]}, s{sW}, {10 + p.bit_length() - 1}
              v_lshlrev_b32 v{vAd}, 4, v{vLane}
              v_add_u32 v{vAd}, s{sT[0]}, v{vAd}""")
        if p == 8: a(f"v_add_u32 v{vAd+1}, 0x1000, v{vAd}")
        else:
            for k in range(1, 8 // p): a(f"v_add_u32 v{vAd+k}, {k * p * 4096}, v{vAd}")
    def issue(G, tp):
        for s in range(8):
            r = slot(G, s)
            t = tp[s % len(tp)]
            if t: a(f"s_waitcnt vmcnt({t - 1})")
            va, imm = addr(s, pat)
            a(f"buffer_load_dwordx4 v[{r}:{r+3}], v{va}, s[12:15], s{sOff} offen offset:{imm} nt")
        a(f"s_add_u32 s{sOff}, s{sOff}, 0x8000\ns_and_b32 s{sOff}, s{sOff}, 0x7ffff")
    def call(lbl): a(f"s_call_b64 s[{sRet}:{sRet+1}], {lbl}")
    def ret(): a(f"s_setpc_b64 s[{sRet}:{sRet+1}]")
    def row_allreduce(op, regs):
        for m in ("row_mirror", "row_half_mirror", "quad_perm:[2,3,0,1]", "quad_perm:[1,0,3,2]"):
            for x in regs: a(f"{op}_dpp v{x}, v{x}, v{x} {m} row_mask:0xf bank_mask:0xf")
    def xrow(op, x, tmp, which):
        a(f"v_mov_b32 v{tmp}, v{x}\nv_permlane{which}_swap_b32 v{x}, v{tmp}\n{op} v{x}, v{x}, v{tmp}")
    def wave_allreduce(op, x, tmp):
        row_allreduce(op, [x]); xrow(op, x, tmp, 16); xrow(op, x, tmp, 32)
    def round_scores(x, y, t):
        a(f"""v_cvt_pk_bf16_f32 v{t}, v{x}, v{y}
              v_lshlrev_b32 v{x}, 16, v{t}
              v_and_b32 v{y}, s{sHiMask}, v{t}
              v_mul_f32 v{x}, s{sScale}, v{x}
              v_mul_f32 v{y}, s{sScale}, v{y}
              v_cvt_pk_bf16_f32 v{t}, v{x}, v{y}
              v_lshlrev_b32 v{x}, 16, v{t}
              v_and_b32 v{y}, s{sHiMask}, v{t}""")
    def tagcheck(bufs, lbl_retry, lbl_ok, backoff=False):
        acc = vU[0]
        first = True
        for b in bufs:
            a(f"v_xor_b32 v{vU[1]}, s{sTag}, v{b+1}\nv_xor_b32 v{vU[2]}, s{sTag+1}, v{b+3}")
            if first: a(f"v_or_b32 v{acc}, v{vU[1]}, v{vU[2]}")
            else: a(f"v_or3_b32 v{acc}, v{acc}, v{vU[1]}, v{vU[2]}")
            first = False
        a(f"""v_cmp_ne_u32 vcc, 0, v{acc}
              s_cbranch_vccz {lbl_ok}""")
        if backoff == "always": a(f"s_sleep {asleep}")
        elif backoff and asleep:
            a(f"s_cmp_eq_u32 s{sBr}, 0\ns_cbranch_scc0 {lbl_ok}_nb\ns_sleep {asleep}\n{lbl_ok}_nb:")
        if tsleep: a(f"s_sleep {tsleep}")
        if local:
            a(f"""s_cmp_gt_u32 s{sSpin}, {SPIN - slow}
                  s_cbranch_scc1 {lbl_ok}_fast
                  buffer_wbl2 sc1
                  s_waitcnt vmcnt(0)
                  s_sleep 16
                  {lbl_ok}_fast:""")
        a(f"""s_sub_u32 s{sSpin}, s{sSpin}, 1
              s_cbranch_scc0 {lbl_retry}""")
        a.label(lbl_ok)
    def lds_wait(off, atleast, name, sleep=0):
        a(f"v_mov_b32 v{vU[0]}, {L_CNT + off}\ns_mov_b32 s{sSpin}, {SPIN * 64}")
        a.label(name)
        a(f"""ds_read_b32 v{vU[1]}, v{vU[0]}
              s_waitcnt lgkmcnt(0)
              v_readfirstlane_b32 s{sT[0]}, v{vU[1]}
              s_cmp_ge_u32 s{sT[0]}, {atleast}
              s_cbranch_scc1 {name}_ok""")
        if sleep: a(f"s_sleep {sleep}")
        a(f"""s_sub_u32 s{sSpin}, s{sSpin}, 1
              s_cbranch_scc0 {name}""")
        a.label(name + "_ok")
    def helper_sync(off, name):
        a(f"""v_mov_b32 v{vU[0]}, {L_CNT + off}
              v_mov_b32 v{vU[1]}, 1
              s_mov_b64 exec, 1
              ds_add_u32 v{vU[0]}, v{vU[1]}
              s_mov_b64 exec, -1""")
        lds_wait(off, 4, name, 1)
    def epoch_load():
        a(f"s_load_dwordx2 s[{sEp}:{sEp+1}], s[{K_WS}:{K_WS+1}], {WS_EPOCH}")
    def epoch_tag():
        a(f"""s_waitcnt lgkmcnt(0)
              s_add_u32 s{sEp}, s{sEp}, 1
              s_xor_b32 s{sTag}, s{sEp}, 0x5bd1e995
              s_mul_i32 s{sTag+1}, s{sEp}, 0x9e3779b1
              s_add_u32 s{sTag+1}, s{sTag+1}, s{sEp+1}""")
    def consts():
        a(f"""s_mov_b32 s{sMc1}, 0xcccccccc
              s_mov_b32 s{sMc1+1}, 0xcccccccc
              s_mov_b32 s{sMc0}, 0xaaaaaaaa
              s_mov_b32 s{sMc0+1}, 0xaaaaaaaa
              s_mov_b32 s{sScale}, 0x3db504f3
              s_mov_b32 s{sLog2e}, 0x3fb8aa3b
              s_mov_b32 s{sHiMask}, 0xffff0000""")
        srd(16, K_WS, WS_SIZE)
    R0 = vRing

    a.label(f"{NAME}_kernel")
    a(f"""s_cmp_ge_u32 s2, 256
          s_cbranch_scc1 L_end
          s_load_dwordx16 s[64:79], s[0:1], 0
          s_load_dwordx8 s[80:87], s[0:1], 64
          s_load_dwordx2 s[88:89], s[0:1], 96""")
    stamp(0)
    if fixdur: a("s_memrealtime s[48:49]")
    if perm:
        a(f"s_mul_i32 s2, s2, {perm}\ns_lshr_b32 s{sT[0]}, s2, 8\ns_and_b32 s2, s2, 255")
        a(f"s_lshr_b32 s{sT[0]}, s2, 3\ns_xor_b32 s2, s2, s{sT[0]}")
    a(f"""v_lshrrev_b32 v{vT[0]}, 6, v0
          v_and_b32 v{vLane}, 63, v0
          v_readfirstlane_b32 s{sWave}, v{vT[0]}
          s_and_b32 s{sX}, s2, 7
          s_lshr_b32 s{sI}, s2, 3
          s_lshr_b32 s{sH}, s{sI}, 3
          s_lshl_b32 s{sT[0]}, s{sX}, 2
          s_add_u32 s{sH}, s{sH}, s{sT[0]}
          s_bfe_u32 s{sB}, s{sI}, 0x10002
          s_and_b32 s{sS}, s{sI}, 3
          s_and_b32 s{sR}, s{sI}, 7
          s_and_b32 s{sW}, s{sWave}, 3
          v_and_b32 v{vC}, 15, v{vLane}
          v_lshrrev_b32 v{vG}, 4, v{vLane}""")
    for k in range(NSTUB):
        a(f"s_cmp_eq_u32 s{sWave}, {k if k < 8 else (k - 8 + 2)}\ns_cbranch_scc1 L_stub{k}")
        if k % 8 == 7 or k == NSTUB - 1: a.label(f"L_back{k // 8}")
    a(f"""s_cmp_lt_u32 s{sWave}, 4
          s_cbranch_scc0 L_stream""")

    a(f"""s_and_b32 s{sT[0]}, s{sW}, 1
          s_lshl_b32 s{sT[0]}, s{sT[0]}, 9
          s_lshl_b32 s{sT[1]}, s{sR}, 6
          s_add_u32 s{sT[0]}, s{sT[0]}, s{sT[1]}
          v_add_lshl_u32 v{vT[0]}, s{sT[0]}, v{vLane}, 1
          v_lshlrev_b32 v{vO0}, 17, v{vG}
          v_lshl_add_u32 v{vO0}, v{vC}, 4, v{vO0}
          s_lshl_b32 s{sOff}, s{sR}, 19
          s_lshl_b32 s{sT[0]}, s{sH}, 8
          s_add_u32 s{sOff}, s{sOff}, s{sT[0]}
          s_mov_b32 s14, 0x400000
          s_mov_b32 s15, 0x00020000
          s_mov_b32 s22, 2048
          s_mov_b32 s23, 0x00020000
          v_lshlrev_b32 v{vU[0]}, 2, v{vC}
          v_mov_b32 v{vU[1]}, 0
          ds_write_b32 v{vU[0]}, v{vU[1]} offset:{L_CNT}
          s_waitcnt lgkmcnt(0)
          s_cmp_lt_u32 s{sW}, 2
          s_cselect_b32 s12, s{K_BWQ}, s{K_AWQ}
          s_cselect_b32 s13, s{K_BWQ+1}, s{K_AWQ+1}
          s_cselect_b32 s20, s{K_BX}, s{K_AX}
          s_cselect_b32 s21, s{K_BX+1}, s{K_AX+1}""")
    epoch_load()
    if bar0: a(f"s_cbranch_scc1 L_h_go\ns_barrier\nL_h_go:")
    else: a("s_barrier")
    a(f"buffer_load_ushort v{vP}, v{vT[0]}, s[20:23], 0 offen nt")
    for k in range(16):
        r = slot(k & 1, k >> 1)
        a(f"buffer_load_dwordx4 v[{r}:{r+3}], v{vO0}, s[12:15], s{sOff} offen nt")
        if k < 15: a(f"s_add_u32 s{sOff}, s{sOff}, 0x2000")
    if bar0: a(f"s_cmp_lt_u32 s{sW}, 2\ns_cbranch_scc0 L_helper2\ns_barrier")
    a("s_branch L_helper2")

    a.label("L_stream")
    if sprio: a(f"s_setprio {sprio}")
    addr_setup(pat)
    a(f"""s_lshl_b32 s{sU}, s{sB}, 5
          s_add_u32 s{sU}, s{sU}, s{sH}
          s_lshl_b32 s{sU}, s{sU}, 2
          s_add_u32 s{sU}, s{sU}, s{sS}
          s_lshl_b32 s{sU}, s{sU}, 19
          s_and_b32 s{sOff}, s{sI}, 15
          s_lshl_b32 s{sOff}, s{sOff}, 15
          s_mov_b32 s14, 0x80000
          s_mov_b32 s15, 0x00020000
          s_waitcnt lgkmcnt(0)
          s_add_u32 s12, s{K_BK}, s{sU}
          s_addc_u32 s13, s{K_BK+1}, 0""")
    epoch_load()
    a("s_barrier")
    issue(0, TK)
    for G in range(1, 4): iss(0, G)
    stamp(1)
    consts()
    epoch_tag()
    if not abl_noq: lds_wait(16, 1, "L_s_qwait", 1)
    a(f"""v_lshlrev_b32 v{vT[0]}, 4, v{vC}
          ds_read_b128 v[{vQ}:{vQ+3}], v{vT[0]} offset:{L_QB}
          s_waitcnt lgkmcnt(0)""")
    stamp(2)
    for c in range(3):
        for G in range(4):
            call(f"L_KB{G}"); iss(c + 1, G)
        a(f"v_mov_b32 v{vS+2*c}, v{vZ0}\nv_mov_b32 v{vS+2*c+1}, v{vZ1}")
    a(f"s_add_u32 s12, s{K_BV}, s{sU}\ns_addc_u32 s13, s{K_BV+1}, 0")
    call("L_KB0"); iss(4, 0); call("L_KB1")
    a("s_waitcnt vmcnt(16)")
    call("L_KB2"); iss(4, 1)
    a("s_waitcnt vmcnt(16)")
    call("L_KB3")
    a(f"v_mov_b32 v{vS+6}, v{vZ0}\nv_mov_b32 v{vS+7}, v{vZ1}")
    stamp(3)
    for k in range(0, 8, 2): round_scores(vS + k, vS + k + 1, vT[0])
    a(f"""v_max3_f32 v{vM}, v{vS}, v{vS+1}, v{vS+2}
          v_max3_f32 v{vM}, v{vM}, v{vS+3}, v{vS+4}
          v_max3_f32 v{vM}, v{vM}, v{vS+5}, v{vS+6}
          v_max_f32 v{vM}, v{vM}, v{vS+7}""")
    wave_allreduce("v_max_f32", vM, vT[0])
    iss(4, 2)
    for k in range(8): a(f"v_sub_f32 v{vS+k}, v{vS+k}, v{vM}")
    for k in range(8): a(f"v_mul_f32 v{vS+k}, s{sLog2e}, v{vS+k}")
    for k in range(8): a(f"v_exp_f32 v{vS+k}, v{vS+k}")
    a(f"v_add_f32 v{vL}, v{vS}, v{vS+1}")
    for k in range(2, 8): a(f"v_add_f32 v{vL}, v{vL}, v{vS+k}")
    for k in range(8): a(f"v_cvt_pk_bf16_f32 v{vS+k}, v{vS+k}, 0")
    wave_allreduce("v_add_f32", vL, vT[0])
    a(f"""s_add_u32 s{sPub}, s{sH}, 32
          s_lshl_b32 s{sPub}, s{sPub}, 1
          s_add_u32 s{sPub}, s{sPub}, s{sB}
          s_lshl_b32 s{sPub}, s{sPub}, 2
          s_add_u32 s{sPub}, s{sPub}, s{sS}
          s_lshl_b32 s{sPubO}, s{sPub}, 11
          s_add_u32 s{sPubO}, s{sPubO}, {WS_PB - (256 << 11)}
          s_lshl_b32 s{sPub}, s{sPub}, 2
          s_add_u32 s{sPub}, s{sPub}, s{sW}
          s_mul_i32 s{sPub}, s{sPub}, {REC}
          s_add_u32 s{sPub}, s{sPub}, {WS_PART}
          s_mov_b32 s{sShift}, 6""")
    call("L_PUBML")
    iss(4, 3)
    for k in range(8): a(f"v_mov_b32 v{vAcc+k}, 0")
    stamp(4)
    for c in range(4):
        a(f"v_mov_b32 v{vP}, v{vS+2*c}\nv_mov_b32 v{vP+1}, v{vS+2*c+1}")
        if c == pre:
            a(f"""v_not_b32 v{vG4+1}, s{sTag}
                  v_not_b32 v{vG4+3}, s{sTag+1}
                  s_lshl_b32 s{sT[0]}, s{sW}, 9
                  v_lshl_add_u32 v{vT[0]}, v{vLane}, 4, s{sT[0]}
                  s_mov_b32 exec_hi, 0
                  buffer_store_dwordx4 v[{vG4}:{vG4+3}], v{vT[0]}, s[16:19], s{sPubO} offen {stf}
                  s_mov_b32 exec_hi, -1""")
        if c == midbar:
            a(f"s_barrier\ns_lshl_b32 s{sT[0]}, s{sW}, 4\ns_add_u32 s{sPubO}, s{sPubO}, s{sT[0]}")
        if c < 3:
            for G in range(4):
                call(f"L_WS{G}"); iss(c + 5, G)
        else:
            if early_bar: a("s_barrier")
            call("L_WS0"); a("s_waitcnt vmcnt(16)"); call("L_WS1"); a("s_waitcnt vmcnt(8)"); call("L_WS2"); call("L_WS3L")
    stamp(5)
    call("L_RED8")
    call("L_PUBPART")
    stamp(6)
    if not early_bar: a("s_barrier")
    if ya == "s0" and not abl_noA:
        a(f"""s_cmp_eq_u32 s{sW}, 0
              s_cbranch_scc0 L_exit
              s_mov_b32 s{sBr}, 0""")
        call("L_PUBY")
    a("s_branch L_exit")

    for nm, tp in ((("K", TK), ("V", TV)) if two else (("K", TK),)):
        for G in range(4):
            a.label(f"L_ISS{nm}{G}")
            issue(G, tp); ret()

    for G in range(4):
        a.label(f"L_KB{G}")
        for s in range(8): a(f"v_mov_b32 v{vt+s}, 0")
        for j in range(4):
            for s in range(8): a(f"v_dot2c_f32_bf16 v{vt+s}, v{slot(G, s)+j}, v{vQ+j}")
        for k in range(4):
            a(f"v_add_f32_dpp v{vt+k}, v{vt+k}, v{vt+k} row_mirror row_mask:0xf bank_mask:0x3")
        for k in range(4):
            a(f"v_add_f32_dpp v{vt+k}, v{vt+k+4}, v{vt+k+4} row_mirror row_mask:0xf bank_mask:0xc")
        for k in range(2):
            a(f"v_add_f32_dpp v{vt+k}, v{vt+k}, v{vt+k} row_half_mirror row_mask:0xf bank_mask:0x5")
        for k in range(2):
            a(f"v_add_f32_dpp v{vt+k}, v{vt+k+2}, v{vt+k+2} row_half_mirror row_mask:0xf bank_mask:0xa")
        for k in range(2):
            a(f"v_add_f32_dpp v{vt+k}, v{vt+k}, v{vt+k} quad_perm:[2,3,0,1] row_mask:0xf bank_mask:0xf")
        a(f"v_cndmask_b32 v{vt}, v{vt}, v{vt+1}, s[{sMc1}:{sMc1+1}]")
        if G % 2 == 0:
            a(f"v_add_f32_dpp v{vZA}, v{vt}, v{vt} quad_perm:[1,0,3,2] row_mask:0xf bank_mask:0xf")
        else:
            a(f"v_add_f32_dpp v{vt}, v{vt}, v{vt} quad_perm:[1,0,3,2] row_mask:0xf bank_mask:0xf")
            a(f"v_cndmask_b32 v{vZ0 + G // 2}, v{vZA}, v{vt}, s[{sMc0}:{sMc0+1}]")
        ret()

    for G, last in ((0, False), (1, False), (2, False), (3, False), (3, True)):
        a.label(f"L_WS{G}" + ("L" if last else ""))
        a("s_nop 1")
        for s in range(8):
            r = slot(G, s)
            a(f"v_mov_b32_dpp v{vLo}, v{vP + G // 2} row_newbcast:{2*s + (G & 1)} row_mask:0xf bank_mask:0xf")
            a(f"v_lshlrev_b32 v{vHi}, 16, v{vLo}")
            if last: a(f"s_waitcnt vmcnt({7-s})")
            for j in range(4):
                a(f"v_dot2c_f32_bf16 v{vAcc+2*j}, v{r+j}, v{vLo}")
                a(f"v_dot2c_f32_bf16 v{vAcc+2*j+1}, v{r+j}, v{vHi}")
        a("s_nop 1")
        ret()

    a.label("L_RED8")
    a("s_nop 1")
    for e in range(4): a(f"v_permlane32_swap_b32 v{vAcc+e}, v{vAcc+e+4}")
    for e in range(4): a(f"v_add_f32 v{vAcc+e}, v{vAcc+e}, v{vAcc+e+4}")
    for e in range(2): a(f"v_permlane16_swap_b32 v{vAcc+e}, v{vAcc+e+2}")
    for e in range(2): a(f"v_add_f32 v{vAcc+e}, v{vAcc+e}, v{vAcc+e+2}")
    ret()

    a.label("L_PUBML")
    a(f"""v_mov_b32 v{vG4}, v{vM}
          v_mov_b32 v{vG4+1}, s{sTag}
          v_mov_b32 v{vG4+2}, v{vL}
          v_mov_b32 v{vG4+3}, s{sTag+1}
          v_lshlrev_b32 v{vT[0]}, 4, v{vLane}
          s_mov_b64 exec, 0xff
          buffer_store_dwordx4 v[{vG4}:{vG4+3}], v{vT[0]}, s[16:19], s{sPub} offen offset:512 {stf}
          s_mov_b64 exec, -1
          s_nop 0""")
    ret()

    a.label("L_PUBPART")
    a(f"""v_rcp_f32 v{vT[0]}, v{vL}
          v_lshrrev_b32 v{vT[1]}, 1, v{vG}
          v_lshlrev_b32 v{vT[1]}, 4, v{vT[1]}
          v_add_lshl_u32 v{vT[1]}, v{vT[1]}, v{vC}, s{sShift}
          v_mul_f32 v{vAcc}, v{vAcc}, v{vT[0]}
          v_mul_f32 v{vAcc+1}, v{vAcc+1}, v{vT[0]}
          v_cvt_pk_bf16_f32 v{vG4}, v{vAcc}, v{vAcc+1}
          v_mov_b32 v{vG4+1}, s{sTag}
          v_mov_b32 v{vG4+2}, v{vG4}
          v_mov_b32 v{vG4+3}, s{sTag+1}
          v_permlane16_swap_b32 v{vG4}, v{vG4+2}
          s_mov_b32 exec_lo, 0xffff
          s_mov_b32 exec_hi, 0xffff
          buffer_store_dwordx4 v[{vG4}:{vG4+3}], v{vT[1]}, s[16:19], s{sPubO} offen {stf}
          s_mov_b64 exec, -1
          s_nop 0""")
    ret()

    a.label("L_PUBY")
    a(f"""s_lshl_b32 s{sT[0]}, s{sBr}, 11
          v_lshl_add_u32 v{vT[0]}, v{vLane}, 3, s{sT[0]}""")
    for k in range(4): a(f"ds_read_b64 v[{vt+2*k}:{vt+2*k+1}], v{vT[0]} offset:{L_YR + 512*k}")
    a(f"""s_lshl_b32 s{sT[0]}, s{sBr}, 3
          s_add_u32 s{sT[1]}, s{sT[0]}, s{sR}
          s_lshl_b32 s{sT[1]}, s{sT[1]}, 5
          s_add_u32 s{sT[1]}, s{sT[1]}, s{sH}
          s_lshl_b32 s{sT[1]}, s{sT[1]}, 10
          s_add_u32 s{sT[1]}, s{sT[1]}, {WS_Y}
          v_lshlrev_b32 v{vT[1]}, 4, v{vLane}
          v_mov_b32 v{vG4+1}, s{sTag}
          v_mov_b32 v{vG4+3}, s{sTag+1}
          s_waitcnt lgkmcnt(0)
          v_add_f32 v{vG4}, v{vt}, v{vt+2}
          v_add_f32 v{vG4+2}, v{vt+1}, v{vt+3}
          v_add_f32 v{vt+4}, v{vt+4}, v{vt+6}
          v_add_f32 v{vt+5}, v{vt+5}, v{vt+7}
          v_add_f32 v{vG4}, v{vG4}, v{vt+4}
          v_add_f32 v{vG4+2}, v{vG4+2}, v{vt+5}
          buffer_store_dwordx4 v[{vG4}:{vG4+3}], v{vT[1]}, s[16:19], s{sT[1]} offen {yst}
          s_nop 0""")
    ret()

    a.label("L_QC")
    a(f"""v_lshlrev_b32 v{vO0}, 4, v{vLane}
          v_add_u32 v{vO1}, 0x1000, v{vO0}
          s_add_u32 s{sT[1]}, s{sT[1]}, {WS_QP}
          s_mov_b32 s{sSpin}, {SPIN}
          s_cmp_eq_u32 s{sBr}, 0
          s_cbranch_scc0 L_QC_poll
          v_and_b32 v{vT[0]}, 7, v{vLane}
          v_lshlrev_b32 v{vT[0]}, 10, v{vT[0]}""")
    a.label("L_QC_hint")
    a(f"""buffer_load_dwordx4 v[{vRing}:{vRing+3}], v{vT[0]}, s[16:19], s{sT[1]} offen offset:1008 {ldf}
          s_waitcnt vmcnt(0)""")
    tagcheck([vRing], "L_QC_hint", "L_QC_hok", True)
    a.label("L_QC_poll")
    for p in range(8):
        r = vRing + 4 * p
        a(f"buffer_load_dwordx4 v[{r}:{r+3}], v{vO0 + (p >> 2)}, s[16:19], s{sT[1]} offen offset:{(p & 3) * 1024} {ldf}")
    a("s_waitcnt vmcnt(0)")
    tagcheck([vRing + 4 * p for p in range(8)], "L_QC_poll", "L_QC_ok")
    for p in range(1, 8):
        a(f"v_add_f32 v{vRing}, v{vRing}, v{vRing+4*p}\nv_add_f32 v{vRing+2}, v{vRing+2}, v{vRing+4*p+2}")
    a(f"""v_cvt_pk_bf16_f32 v{vT[0]}, v{vRing}, v{vRing+2}
          v_lshl_add_u32 v{vT[1]}, v{vC}, 2, v{vG}
          v_lshlrev_b32 v{vT[1]}, 2, v{vT[1]}
          v_add_u32 v{vT[1]}, s{sT[2]}, v{vT[1]}
          ds_write_b32 v{vT[1]}, v{vT[0]}""")
    ret()

    a.label("L_helper2")
    consts()
    a(f"""s_mov_b32 s{sSel0}, 0x05040100
          s_mov_b32 s{sSel1}, 0x07060302
          v_lshlrev_b32 v{vO0}, 4, v{vLane}""")
    for k in range(8): a(f"v_mov_b32 v{vAcc+k}, 0")
    a("s_waitcnt vmcnt(0)")
    stamp(1)
    call("L_WS0"); call("L_WS1"); call("L_RED8")
    epoch_tag()
    a(f"""s_lshr_b32 s{sT[0]}, s{sW}, 1
          s_xor_b32 s{sT[0]}, s{sT[0]}, 1
          s_lshl_b32 s{sT[0]}, s{sT[0]}, 5
          s_add_u32 s{sT[0]}, s{sT[0]}, s{sH}
          s_lshl_b32 s{sT[0]}, s{sT[0]}, 1
          s_and_b32 s{sT[1]}, s{sW}, 1
          s_add_u32 s{sT[0]}, s{sT[0]}, s{sT[1]}
          s_lshl_b32 s{sT[0]}, s{sT[0]}, 3
          s_add_u32 s{sT[0]}, s{sT[0]}, s{sR}
          s_lshl_b32 s{sT[0]}, s{sT[0]}, 10
          s_add_u32 s{sT[0]}, s{sT[0]}, {WS_QP}
          v_mov_b32 v{vG4}, v{vAcc}
          v_mov_b32 v{vG4+1}, s{sTag}
          v_mov_b32 v{vG4+2}, v{vAcc+1}
          v_mov_b32 v{vG4+3}, s{sTag+1}
          buffer_store_dwordx4 v[{vG4}:{vG4+3}], v{vO0}, s[16:19], s{sT[0]} offen {stf}""")
    stamp(2)
    a(f"""s_cmp_eq_u32 s{sW}, 0
          s_cbranch_scc0 L_h_A
          s_add_u32 s{sT[1]}, s{sH}, 32
          s_lshl_b32 s{sT[1]}, s{sT[1]}, 1
          s_add_u32 s{sT[1]}, s{sT[1]}, s{sB}
          s_lshl_b32 s{sT[1]}, s{sT[1]}, 13
          s_mov_b32 s{sT[2]}, {L_QB}
          s_mov_b32 s{sBr}, 1""")
    call("L_QC")
    a(f"""v_mov_b32 v{vU[0]}, {L_CNT + 16}
          v_mov_b32 v{vU[1]}, 1
          ds_write_b32 v{vU[0]}, v{vU[1]}""")
    a.label("L_h_A")
    stamp(3)
    if abl_noA: a(f"s_mov_b32 s{sBr}, 1\ns_branch L_FIN")
    a(f"""s_lshr_b32 s{sT[0]}, s{sI}, 4
          s_lshl_b32 s{sT[0]}, s{sT[0]}, 3
          s_add_u32 s{sT[0]}, s{sT[0]}, s{sX}
          s_lshl_b32 s{sOff}, s{sT[0]}, 21
          s_and_b32 s{sT[0]}, s{sI}, 15
          s_lshl_b32 s{sT[0]}, s{sT[0]}, 15
          s_add_u32 s{sOff}, s{sOff}, s{sT[0]}
          s_add_u32 s{sOff}, s{sOff}, {6144*256}
          s_mov_b32 s14, 0x2000000""")
    addr_setup(pata)
    for G, p in (() if abl_Akv else ((2, K_AK), (3, K_AV))):
        a(f"s_mov_b32 s12, s{p}\ns_mov_b32 s13, s{p+1}")
        for s in range(8):
            r = slot(G, s)
            if TH: a(f"s_waitcnt vmcnt({TH - 1})")
            va, imm = addr(s, pata)
            a(f"buffer_load_dwordx4 v[{r}:{r+3}], v{va}, s[12:15], s{sOff} offen offset:{imm} nt")
    a(f"""s_mov_b32 s{sBr}, 0
          s_lshl_b32 s{sU}, s{sX}, 2
          s_add_u32 s{sU}, s{sU}, s{sW}
          s_lshl_b32 s{sU}, s{sU}, 1
          s_lshr_b32 s{sT[0]}, s{sI}, 4
          s_add_u32 s{sU}, s{sU}, s{sT[0]}
          s_lshl_b32 s{sT[1]}, s{sU}, 13
          s_lshl_b32 s{sT[2]}, s{sW}, 8
          s_add_u32 s{sT[2]}, s{sT[2]}, {L_QA}""")
    if not abl_Apoll: call("L_QC")
    else: a("s_waitcnt vmcnt(0)")
    helper_sync(0, "L_hs0")
    a(f"s_mov_b32 s{sHH}, 0")
    if abl_Acomp: a("s_branch L_A_done")
    a.label("L_A_loop")
    a(f"""s_lshl_b32 s{sT[0]}, s{sHH}, 8
          v_lshlrev_b32 v{vT[0]}, 4, v{vC}
          v_add_u32 v{vT[0]}, s{sT[0]}, v{vT[0]}
          ds_read_b128 v[{vQ}:{vQ+3}], v{vT[0]} offset:{L_QA}
          s_waitcnt lgkmcnt(0)""")
    call("L_KB2")
    a(f"v_mov_b32 v{vS+1}, v{vZA}\nv_mov_b32 v{vS}, v{vZA}")
    round_scores(vS, vS + 1, vT[0])
    a(f"v_mov_b32 v{vM}, v{vS}")
    wave_allreduce("v_max_f32", vM, vT[0])
    a(f"""v_sub_f32 v{vS}, v{vS}, v{vM}
          v_mul_f32 v{vS}, s{sLog2e}, v{vS}
          v_exp_f32 v{vS}, v{vS}
          v_mul_f32 v{vL}, 0.5, v{vS}
          v_cvt_pk_bf16_f32 v{vP+1}, v{vS}, 0""")
    wave_allreduce("v_add_f32", vL, vT[0])
    for k in range(8): a(f"v_mov_b32 v{vAcc+k}, 0")
    call("L_WS3L"); call("L_RED8")
    a(f"""s_lshl_b32 s{sT[0]}, s{sHH}, 2
          s_add_u32 s{sT[0]}, s{sT[0]}, s{sW}
          s_lshl_b32 s{sT[1]}, s{sT[0]}, 9
          s_lshl_b32 s{sT[0]}, s{sT[0]}, 3
          v_lshlrev_b32 v{vT[0]}, 3, v{vLane}
          v_add_u32 v{vT[0]}, s{sT[1]}, v{vT[0]}
          v_mov_b32 v{vT[1]}, s{sT[0]}
          ds_write_b64 v{vT[0]}, v[{vAcc}:{vAcc+1}] offset:{L_OA}
          s_mov_b64 exec, 1
          ds_write_b64 v{vT[1]}, v[{vM}:{vM+1}] offset:{L_MLA}
          s_mov_b64 exec, -1
          s_add_u32 s{sHH}, s{sHH}, 1
          s_cmp_lt_u32 s{sHH}, 4
          s_cbranch_scc1 L_A_loop""")
    a.label("L_A_done")
    helper_sync(4, "L_hs1")
    a(f"""s_lshl_b32 s{sT[0]}, s{sW}, 5
          v_mov_b32 v{vT[1]}, s{sT[0]}
          s_lshl_b32 s{sT[1]}, s{sW}, 11
          v_lshlrev_b32 v{vT[0]}, 3, v{vLane}
          v_add_u32 v{vT[0]}, s{sT[1]}, v{vT[0]}
          ds_read_b128 v[{R0}:{R0+3}], v{vT[1]} offset:{L_MLA}
          ds_read_b128 v[{R0+4}:{R0+7}], v{vT[1]} offset:{L_MLA+16}""")
    for k in range(4): a(f"ds_read_b64 v[{R0+8+2*k}:{R0+9+2*k}], v{vT[0]} offset:{L_OA + 512*k}")
    a(f"""s_waitcnt lgkmcnt(0)
          v_max3_f32 v{vM}, v{R0}, v{R0+2}, v{R0+4}
          v_max_f32 v{vM}, v{vM}, v{R0+6}""")
    for k in range(4): a(f"v_sub_f32 v{R0+2*k}, v{R0+2*k}, v{vM}")
    for k in range(4): a(f"v_mul_f32 v{R0+2*k}, s{sLog2e}, v{R0+2*k}")
    for k in range(4): a(f"v_exp_f32 v{R0+2*k}, v{R0+2*k}")
    a(f"""v_mul_f32 v{vL}, v{R0}, v{R0+1}
          v_mul_f32 v{vAcc}, v{R0}, v{R0+8}
          v_mul_f32 v{vAcc+1}, v{R0}, v{R0+9}""")
    for k in range(1, 4):
        a(f"""v_fmac_f32 v{vL}, v{R0+2*k}, v{R0+2*k+1}
              v_fmac_f32 v{vAcc}, v{R0+2*k}, v{R0+8+2*k}
              v_fmac_f32 v{vAcc+1}, v{R0+2*k}, v{R0+9+2*k}""")
    a(f"""s_lshl_b32 s{sPub}, s{sU}, 4
          s_and_b32 s{sT[0]}, s{sI}, 15
          s_add_u32 s{sPub}, s{sPub}, s{sT[0]}
          s_mul_i32 s{sPub}, s{sPub}, {REC}
          s_add_u32 s{sPub}, s{sPub}, {WS_PART}
          s_mov_b32 s{sPubO}, s{sPub}
          s_mov_b32 s{sShift}, 4""")
    call("L_PUBPART"); call("L_PUBML")
    stamp(4)

    a.label("L_FIN")
    a(f"""s_cmp_eq_u32 s{sBr}, 0
          s_cselect_b32 s12, s{K_AWO}, s{K_BWO}
          s_cselect_b32 s13, s{K_AWO+1}, s{K_BWO+1}
          s_mov_b32 s14, 0x400000
          v_lshlrev_b32 v{vO0}, 13, v{vG}
          v_lshl_add_u32 v{vO0}, v{vC}, 3, v{vO0}
          v_add_u32 v{vO1}, 0x1000, v{vO0}
          s_lshl_b32 s{sOff}, s{sH}, 2
          s_add_u32 s{sOff}, s{sOff}, s{sW}
          s_lshl_b32 s{sOff}, s{sOff}, 15
          s_lshl_b32 s{sT[0]}, s{sR}, 7
          s_add_u32 s{sOff}, s{sOff}, s{sT[0]}""")
    PB = vRing
    vA0 = vLo
    a(f"""s_lshl_b32 s{sU}, s{sBr}, 5
          s_add_u32 s{sU}, s{sU}, s{sH}
          s_mul_i32 s{sT[1]}, s{sU}, {32 * REC}
          s_add_u32 s{sT[1]}, s{sT[1]}, {WS_PART}
          v_and_b32 v{vT[2]}, 31, v{vLane}
          v_mul_u32_u24 v{vT[3]}, {REC}, v{vT[2]}
          s_mov_b32 s{sSpin}, {SPIN}
          s_cmp_eq_u32 s{sBr}, 0
          s_cbranch_scc0 L_F_addrB
          s_lshl_b32 s{sT[0]}, s{sW}, 6
          s_add_u32 s{sP[0]}, s{sT[1]}, s{sT[0]}
          s_add_u32 s{sP[1]}, s{sP[0]}, 256
          s_add_u32 s{sP[2]}, s{sP[0]}, {16 * REC}
          s_add_u32 s{sP[3]}, s{sP[0]}, {16 * REC + 256}
          v_mul_u32_u24 v{vA0}, {REC}, v{vC}
          v_lshl_add_u32 v{vA0}, v{vG}, 4, v{vA0}""")
    if abl_Apoll: a(f"s_mov_b32 s{sBr}, 1\ns_branch L_FIN")
    a("s_branch L_F_ml0")
    a.label("L_F_addrB")
    a(f"""s_lshl_b32 s{sP[0]}, s{sH}, 14
          s_lshl_b32 s{sT[0]}, s{sW}, 8
          s_add_u32 s{sP[0]}, s{sP[0]}, s{sT[0]}
          s_add_u32 s{sP[0]}, s{sP[0]}, {WS_PB}
          s_add_u32 s{sP[1]}, s{sP[0]}, 1024
          s_add_u32 s{sP[2]}, s{sP[0]}, 8192
          s_add_u32 s{sP[3]}, s{sP[0]}, 9216
          v_lshrrev_b32 v{vA0}, 2, v{vC}
          v_lshlrev_b32 v{vA0}, 11, v{vA0}
          v_and_b32 v{vT[0]}, 3, v{vC}
          v_lshl_add_u32 v{vA0}, v{vT[0]}, 4, v{vA0}
          v_lshl_add_u32 v{vA0}, v{vG}, 6, v{vA0}
          s_waitcnt lgkmcnt(0)""")
    stamp(6)
    a("s_barrier")
    def wo_loads():
        for e in range(8):
            a(f"buffer_load_dwordx2 v[{vRaw+2*e}:{vRaw+2*e+1}], v{vO0 + (e >> 2)}, s[12:15], s{sOff} offen offset:{(e & 3) * 1024} nt")
    def part_loads():
        for k in range(4):
            r = PB + 4 * k
            a(f"buffer_load_dwordx4 v[{r}:{r+3}], v{vA0}, s[16:19], s{sP[k]} offen {pld}")
    def perms():
        for ct in range(4):
            for k, (ea, eb) in enumerate(((0, 1), (4, 5), (2, 3), (6, 7))):
                a(f"v_perm_b32 v{vBop+4*ct+k}, v{vRaw+2*eb+(ct>>1)}, v{vRaw+2*ea+(ct>>1)}, s{sSel0 + (ct & 1)}")
    a.label("L_F_ml0")
    if wo_at == "mid": wo_loads()
    if wo_at == "touch":
        a(f"s_mov_b64 exec, 1\nbuffer_load_dword v{vRaw}, v{vO0}, s[12:15], s{sOff} offen nt\ns_mov_b64 exec, -1")
    a.label("L_F_mlpoll")
    a(f"""buffer_load_dwordx4 v[{vG4}:{vG4+3}], v{vT[3]}, s[16:19], s{sT[1]} offen offset:512 {ldf}
          s_waitcnt vmcnt(0)""")
    tagcheck([vG4], "L_F_mlpoll", "L_F_mlok", "always")
    if wo_at == "mid": perms()
    a(f"v_mov_b32 v{vM}, v{vG4}")
    row_allreduce("v_max_f32", [vM])
    a(f"""v_sub_f32 v{vG4}, v{vG4}, v{vM}
          v_mul_f32 v{vG4}, s{sLog2e}, v{vG4}
          v_exp_f32 v{vG4}, v{vG4}
          v_mul_f32 v{vG4}, v{vG4}, v{vG4+2}
          v_mov_b32 v{vL}, v{vG4}""")
    row_allreduce("v_add_f32", [vL])
    a(f"""v_rcp_f32 v{vL}, v{vL}
          s_lshl_b32 s{sT[0]}, s{sW}, 7
          v_lshl_add_u32 v{vT[0]}, v{vT[2]}, 2, s{sT[0]}
          v_mul_f32 v{vG4}, v{vG4}, v{vL}
          v_lshl_add_u32 v{vT[1]}, v{vG}, 4, s{sT[0]}
          ds_write_b32 v{vT[0]}, v{vG4} offset:{L_WT}
          ds_read_b128 v[{vW}:{vW+3}], v{vT[1]} offset:{L_WT}
          ds_read_b128 v[{vW+4}:{vW+7}], v{vT[1]} offset:{L_WT+64}
          s_lshl_b32 s{sT[0]}, s{sBr}, 2
          s_add_u32 s{sT[0]}, s{sT[0]}, s{sW}
          s_lshl_b32 s{sT[0]}, s{sT[0]}, 9
          v_lshrrev_b32 v{vT[0]}, 1, v{vG}
          v_lshlrev_b32 v{vT[0]}, 5, v{vT[0]}
          v_and_b32 v{vT[1]}, 1, v{vG}
          v_lshl_add_u32 v{vT[1]}, v{vC}, 1, v{vT[1]}
          v_add_lshl_u32 v{vT[0]}, v{vT[0]}, v{vT[1]}, 3
          v_add_u32 v{vT[0]}, s{sT[0]}, v{vT[0]}
          v_mov_b32 v{vHi}, v{vT[0]}
          s_mov_b32 s{sSpin}, {SPIN}
          s_cmp_eq_u32 s{sBr}, 0
          s_cbranch_scc1 L_F_go
          s_barrier""")
    tstamp(1)
    if abl_notail: a("s_branch L_exit")
    if ya == "h3" and not abl_noA:
        a(f"""s_cmp_eq_u32 s{sW}, 3
              s_cbranch_scc0 L_F_go
              s_mov_b32 s{sBr}, 0""")
        call("L_PUBY")
        a(f"s_mov_b32 s{sBr}, 1")
    a.label("L_F_go")
    if wo_at == "mid":
        a("s_mov_b64 vcc, -1")
    else:
        wo_loads(); part_loads()
        a("s_waitcnt vmcnt(4)")
        tstamp(2)
        perms()
        a("s_branch L_F_pwait")
    a.label("L_F_ppoll")
    if masked: a("s_mov_b64 exec, vcc")
    part_loads()
    if masked: a("s_mov_b64 exec, -1")
    a.label("L_F_pwait")
    a("s_waitcnt vmcnt(0)")
    tagcheck([PB + 4 * k for k in range(4)], "L_F_ppoll", "L_F_pok", True)
    tstamp(3)
    for b in range(2):
        a(f"v_mov_b32 v{PB+8*b+1}, v{PB+8*b+4}\nv_mov_b32 v{PB+8*b+3}, v{PB+8*b+6}")
    D = vRing + 32
    for b in range(2):
        for ct in range(4):
            d = D + (b * 4 + ct) * 4
            a(f"v_mfma_f32_16x16x32_bf16 v[{d}:{d+3}], v[{PB+8*b}:{PB+8*b+3}], v[{vBop+4*ct}:{vBop+4*ct+3}], 0")
    a("s_waitcnt lgkmcnt(0)")
    for i in range(4):
        for b in range(2):
            for ct in range(4):
                d = D + (b * 4 + ct) * 4
                if i == 0: a(f"v_mul_f32 v{vAcc+b*4+ct}, v{vW+4*b}, v{d}")
                else: a(f"v_fmac_f32 v{vAcc+b*4+ct}, v{vW+4*b+i}, v{d+i}")
    call("L_RED8")
    a(f"""ds_write_b64 v{vHi}, v[{vAcc}:{vAcc+1}] offset:{L_YR}
          s_cmp_eq_u32 s{sBr}, 0
          s_mov_b32 s{sBr}, 1""")
    if diag:
        a("s_cbranch_scc0 L_F_tail"); stamp(5); a("s_branch L_FIN"); a.label("L_F_tail")
    else:
        a("s_cbranch_scc1 L_FIN")
    a(f"""v_mov_b32 v{vU[0]}, {L_CNT + 8}
          v_mov_b32 v{vU[1]}, 1
          s_mov_b64 exec, 1
          ds_add_rtn_u32 v{vU[2]}, v{vU[0]}, v{vU[1]}
          s_mov_b64 exec, -1
          s_waitcnt lgkmcnt(0)
          v_readfirstlane_b32 s{sT[0]}, v{vU[2]}
          s_cmp_eq_u32 s{sT[0]}, 3
          s_cbranch_scc0 L_exit""")
    call("L_PUBY")
    if ya == "last" and not abl_noA:
        a(f"s_mov_b32 s{sBr}, 0"); call("L_PUBY"); a(f"s_mov_b32 s{sBr}, 1")
    tstamp(4)
    a(f"""s_lshl_b32 s{sT[1]}, s{sX}, 15
          s_lshl_b32 s{sT[0]}, s{sI}, 5
          s_add_u32 s{sT[1]}, s{sT[1]}, s{sT[0]}
          s_add_u32 s{sT[1]}, s{sT[1]}, {WS_Y}
          s_add_u32 s{sT[3]}, s{sT[1]}, {8 << 15}
          v_lshrrev_b32 v{vT[0]}, 5, v{vLane}
          v_lshlrev_b32 v{vT[1]}, 10, v{vT[2]}
          v_lshl_add_u32 v{vT[1]}, v{vT[0]}, 4, v{vT[1]}
          v_lshlrev_b32 v{vT[0]}, 2, v{vT[0]}
          s_lshr_b32 s{sT[2]}, s{sI}, 4
          s_lshl_b32 s{sT[2]}, s{sT[2]}, 11
          s_lshl_b32 s{sT[0]}, s{sX}, 7
          s_add_u32 s{sT[2]}, s{sT[2]}, s{sT[0]}
          s_and_b32 s{sT[0]}, s{sI}, 15
          s_lshl_b32 s{sT[0]}, s{sT[0]}, 3
          s_add_u32 s{sT[2]}, s{sT[2]}, s{sT[0]}
          s_mov_b32 s{sSpin}, {SPIN}""")
    srd(20, K_OUT, 4096)
    if masked: a("s_mov_b64 vcc, -1")
    a.label("L_F_ypoll")
    if masked: a("s_mov_b64 exec, vcc")
    a(f"buffer_load_dwordx4 v[{R0+4}:{R0+7}], v{vT[1]}, s[16:19], s{sT[3]} offen {yld}")
    if not abl_noA: a(f"buffer_load_dwordx4 v[{R0}:{R0+3}], v{vT[1]}, s[16:19], s{sT[1]} offen {yld}")
    if masked: a("s_mov_b64 exec, -1")
    a("s_waitcnt vmcnt(0)")
    tagcheck([R0 + 4] if abl_noA else [R0, R0 + 4], "L_F_ypoll", "L_F_yok")
    tstamp(5)
    row_allreduce("v_add_f32", [R0, R0 + 2, R0 + 4, R0 + 6])
    for k in range(4): a(f"v_mov_b32 v{R0+2*k+1}, v{R0+2*k}")
    for k in range(4): a(f"v_permlane16_swap_b32 v{R0+2*k}, v{R0+2*k+1}")
    for k in range(4): a(f"v_add_f32 v{R0+2*k}, v{R0+2*k}, v{R0+2*k+1}")
    a(f"""v_cvt_pk_bf16_f32 v{R0}, v{R0}, v{R0+2}
          v_cvt_pk_bf16_f32 v{R0+4}, v{R0+4}, v{R0+6}
          s_mov_b32 exec_lo, 1
          s_mov_b32 exec_hi, 1
          buffer_store_dword v{R0}, v{vT[0]}, s[20:23], s{sT[2]} offen
          buffer_store_dword v{R0+4}, v{vT[0]}, s[20:23], s{sT[2]} offen offset:1024
          s_mov_b64 exec, -1
          s_cmp_eq_u32 s2, 0
          s_cbranch_scc0 L_exit
          v_mov_b32 v{vT[0]}, {WS_EPOCH}
          v_mov_b32 v{vT[1]}, s{sEp}
          s_mov_b64 exec, 1
          buffer_store_dword v{vT[1]}, v{vT[0]}, s[16:19], 0 offen sc1
          s_mov_b64 exec, -1""")

    a.label("L_exit")
    if fixdur:
        a.label("L_fix")
        a(f"""s_memrealtime s[50:51]
              s_waitcnt lgkmcnt(0)
              s_sub_u32 s50, s50, s48
              s_cmp_lt_u32 s50, {fixdur}
              s_cbranch_scc1 L_fix""")
    if diag:
        stamp(7)
        a(f"""s_lshl_b32 s{sT[0]}, s2, 3
              s_add_u32 s{sT[0]}, s{sT[0]}, s{sWave}
              s_lshl_b32 s{sT[0]}, s{sT[0]}, 6
              s_add_u32 s{sT[0]}, s{sT[0]}, {STAMP_OFF}
              s_waitcnt vmcnt(0) lgkmcnt(0)
              v_mov_b32 v{vT[0]}, 0""")
        for k in range(16): a(f"v_mov_b32 v{vRing+k}, s{48+k}")
        a("s_mov_b64 exec, 1")
        for k in range(4): a(f"buffer_store_dwordx4 v[{vRing+4*k}:{vRing+4*k+3}], v{vT[0]}, s[16:19], s{sT[0]} offen offset:{16*k}")
    a.label("L_end")
    a("s_endpgm")

    body, nops = a.render(nstub=NSTUB if stubs else 0, total=NSTUB)
    head = open(f"cdna_kernels/{NAME}.s.ref").read().split("; Override launch")[0]
    txt = head + f"""; Generated by dev/gen.py (hand-written generator). One workgroup per CU: waves 0-3 helpers, waves 4-7 stream branch-B K/V.
; @launch grid=(256,1,1) block=(512,1,1) lds={LDS_BYTES}
.amdgcn_target "amdgcn-amd-amdhsa--gfx950"
.text
.globl {NAME}_kernel
.p2align 12
.p2align 8
.type {NAME}_kernel,@function
{body}.section .rodata,"a"
.p2align 6
.amdhsa_kernel {NAME}_kernel
  .amdhsa_next_free_vgpr {NVGPR}
  .amdhsa_next_free_sgpr 96
  .amdhsa_accum_offset {NVGPR}
  .amdhsa_group_segment_fixed_size 0
  .amdhsa_kernarg_size 104
  .amdhsa_user_sgpr_count 2
  .amdhsa_user_sgpr_kernarg_segment_ptr 1
  .amdhsa_system_sgpr_workgroup_id_x 1
  .amdhsa_float_denorm_mode_32 3
.end_amdhsa_kernel
"""
    return txt, nops, a.code_bytes

if __name__ == "__main__":
    out = sys.argv[1]
    kw = json.loads(sys.argv[2]) if len(sys.argv) > 2 else {}
    txt, nops, nb = gen(**kw)
    open(out, "w").write(txt)
    print(out, "lines", txt.count("\n"), "auto nops", nops, "code bytes", nb)
```

```python
import sys, json
sys.path.insert(0, "dev")
from asmlib import Asm
NAME = "concat_heads__sliding_block_cached__mha_block_cached__decode"

WS_EPOCH, WS_Y, WS_QP, WS_PART, WS_PB = 0, 64 << 10, 1 << 20, 2 << 20, (3 << 20) + (512 << 10)
REC = 640
WS_SIZE = 512 << 20
STAMP_OFF = 64 << 20
L_QB, L_QA, L_CNT, L_MLA, L_WT, L_OA, L_YR = 0, 256, 1280, 1408, 1536, 2048, 10240
LDS_BYTES = 16384
vLane, vO0, vO1 = 1, 2, 3
vT = [4, 5, 6, 7]
vQ = 8
vAcc = 12
vt = 20
vZ0, vZ1, vZA = 28, 29, 30
vP = 32
vLo, vHi = 34, 35
vS = 36
vG4 = 44
vM, vL, vC, vG = 48, 49, 50, 51
vU = [52, 53, 54, 55]
vW = 56
vRing = 64
vRaw = 192
vAd = 208
vBop = 208
NVGPR = 224
sWave, sW, sX, sI, sH, sB, sS, sR = 3, 4, 5, 6, 7, 8, 9, 10
sOff = 24
sT = [25, 26, 27, 11]
sTag = 28
sRet = 30
sEp = 32
sMc1, sMc0 = 34, 36
sScale, sLog2e, sHiMask = 38, 39, 40
sSpin, sBr, sHH = 41, 42, 43
sPub, sU = 44, 45
sSel0, sSel1 = 46, 47
sPubO, sShift = 90, 91
sCnt, sMask = 92, 93
sHA, sHB = 96, 97
sP = [92, 93, 94, 95]
K_AX, K_AK, K_AV, K_AWQ, K_AWO, K_BX, K_BK, K_BV, K_BWQ, K_BWO, K_OUT, K_DBG, K_WS = [64 + 2 * i for i in range(13)]
SPIN = 1 << 18
NSTUB = 9

def slot(G, s): return vRing + (G * 8 + s) * 4

def gen(diag=False, bar0=True, asleep=32, stubs=True, abl_noA=False, abl_noq=False, abl_notail=False,
        TK=(5,5,5,5,5,6,6,6), TV=(16,), vfrom=7, TH=14, early_bar=False, masked=True, pre=-1, midbar=2, wo_at="mid", pat=2, pata=2, bperm=None, nodup=True, bhint=False, hmap=2, ph=1, phm=2, wxa=5, kvi=False, wb=0, phb=(18, 17), aearly=False, g0free=False, table=False, xorph=False, phx=0, phs=0, latefree=0, pld="nt", ya="h3", tsleep=0, local=True, slow=256, perm=0, ldf="nt", yld="sc1", yst="sc1", sprio=0, abl_Apoll=False, abl_Acomp=False, abl_Akv=False, fixdur=0):
    assert max(TK) <= 16 and max(TV) <= 16
    two = tuple(TK) != tuple(TV)
    def iss(c, G): call(f"L_ISS{'V' if (two and c >= vfrom) else 'K'}{G}")
    a = Asm()
    stf = "" if local else "sc1"
    def tstamp(i):
        if diag == 3: a(f"s_memrealtime s[{48+2*i}:{49+2*i}]")
    def stamp(i):
        if diag == 2 and i in (1, 2): return
        if diag: a(f"s_memrealtime s[{48+2*i}:{49+2*i}]")
        if diag == 2 and i == 0: a("s_memtime s[50:51]")
        if diag == 2 and i == 5: a("s_memtime s[52:53]")
    def srd(base, ptr, size):
        a(f"s_mov_b32 s{base}, s{ptr}\ns_mov_b32 s{base+1}, s{ptr+1}\ns_mov_b32 s{base+2}, {size}\ns_mov_b32 s{base+3}, 0x00020000")
    def addr(s, p):
        if p == 8: return (vAd + (s >> 2), (s & 3) * 1024)
        return (vAd + s // p, (s % p) * 1024)
    def addr_setup(p, wx=-1):
        if wx >= 0: a(f"s_lshr_b32 s{sT[0]}, s2, {wx}\ns_xor_b32 s{sT[0]}, s{sT[0]}, s{sW}\ns_and_b32 s{sT[0]}, s{sT[0]}, 3")
        a(f"""s_lshl_b32 s{sT[0]}, s{sT[0] if wx >= 0 else sW}, {10 + p.bit_length() - 1}
              v_lshlrev_b32 v{vAd}, 4, v{vLane}
              v_add_u32 v{vAd}, s{sT[0]}, v{vAd}""")
        if p == 8: a(f"v_add_u32 v{vAd+1}, 0x1000, v{vAd}")
        else:
            for k in range(1, 8 // p): a(f"v_add_u32 v{vAd+k}, {k * p * 4096}, v{vAd}")
    def issue(G, tp):
        for s in range(8):
            r = slot(G, s)
            t = tp[s % len(tp)]
            if t: a(f"s_waitcnt vmcnt({t - 1})")
            va, imm = (vAd + s, 0) if bperm else addr(s, pat)
            a(f"buffer_load_dwordx4 v[{r}:{r+3}], v{va}, s[12:15], s{sOff} offen offset:{imm} nt")
        if xorph: a(f"s_add_u32 s{sCnt}, s{sCnt}, 0x8000\ns_and_b32 s{sCnt}, s{sCnt}, 0x7ffff\ns_xor_b32 s{sOff}, s{sCnt}, s{sMask}")
        elif wb:
            hole = 3 << wb
            a(f"s_or_b32 s{sOff}, s{sOff}, {hole}\ns_add_u32 s{sOff}, s{sOff}, 0x2000\ns_and_b32 s{sOff}, s{sOff}, {0x7ffff & ~hole}")
        else: a(f"s_add_u32 s{sOff}, s{sOff}, 0x8000\ns_and_b32 s{sOff}, s{sOff}, 0x7ffff")
    def call(lbl): a(f"s_call_b64 s[{sRet}:{sRet+1}], {lbl}")
    def ret(): a(f"s_setpc_b64 s[{sRet}:{sRet+1}]")
    def row_allreduce(op, regs):
        for m in ("row_mirror", "row_half_mirror", "quad_perm:[2,3,0,1]", "quad_perm:[1,0,3,2]"):
            for x in regs: a(f"{op}_dpp v{x}, v{x}, v{x} {m} row_mask:0xf bank_mask:0xf")
    def xrow(op, x, tmp, which):
        a(f"v_mov_b32 v{tmp}, v{x}\nv_permlane{which}_swap_b32 v{x}, v{tmp}\n{op} v{x}, v{x}, v{tmp}")
    def wave_allreduce(op, x, tmp):
        row_allreduce(op, [x]); xrow(op, x, tmp, 16); xrow(op, x, tmp, 32)
    def round_scores(x, y, t):
        a(f"""v_cvt_pk_bf16_f32 v{t}, v{x}, v{y}
              v_lshlrev_b32 v{x}, 16, v{t}
              v_and_b32 v{y}, s{sHiMask}, v{t}
              v_mul_f32 v{x}, s{sScale}, v{x}
              v_mul_f32 v{y}, s{sScale}, v{y}
              v_cvt_pk_bf16_f32 v{t}, v{x}, v{y}
              v_lshlrev_b32 v{x}, 16, v{t}
              v_and_b32 v{y}, s{sHiMask}, v{t}""")
    def tagcheck(bufs, lbl_retry, lbl_ok, backoff=False):
        acc = vU[0]
        first = True
        for b in bufs:
            a(f"v_xor_b32 v{vU[1]}, s{sTag}, v{b+1}\nv_xor_b32 v{vU[2]}, s{sTag+1}, v{b+3}")
            if first: a(f"v_or_b32 v{acc}, v{vU[1]}, v{vU[2]}")
            else: a(f"v_or3_b32 v{acc}, v{acc}, v{vU[1]}, v{vU[2]}")
            first = False
        a(f"""v_cmp_ne_u32 vcc, 0, v{acc}
              s_cbranch_vccz {lbl_ok}""")
        if backoff == "always": a(f"s_sleep {asleep}")
        elif backoff and asleep:
            a(f"s_cmp_eq_u32 s{sBr}, 0\ns_cbranch_scc0 {lbl_ok}_nb\ns_sleep {asleep}\n{lbl_ok}_nb:")
        if tsleep: a(f"s_sleep {tsleep}")
        if local:
            a(f"""s_cmp_gt_u32 s{sSpin}, {SPIN - slow}
                  s_cbranch_scc1 {lbl_ok}_fast
                  buffer_wbl2 sc1
                  s_waitcnt vmcnt(0)
                  s_sleep 16
                  {lbl_ok}_fast:""")
        a(f"""s_sub_u32 s{sSpin}, s{sSpin}, 1
              s_cbranch_scc0 {lbl_retry}""")
        a.label(lbl_ok)
    def lds_wait(off, atleast, name, sleep=0):
        a(f"v_mov_b32 v{vU[0]}, {L_CNT + off}\ns_mov_b32 s{sSpin}, {SPIN * 64}")
        a.label(name)
        a(f"""ds_read_b32 v{vU[1]}, v{vU[0]}
              s_waitcnt lgkmcnt(0)
              v_readfirstlane_b32 s{sT[0]}, v{vU[1]}
              s_cmp_ge_u32 s{sT[0]}, {atleast}
              s_cbranch_scc1 {name}_ok""")
        if sleep: a(f"s_sleep {sleep}")
        a(f"""s_sub_u32 s{sSpin}, s{sSpin}, 1
              s_cbranch_scc0 {name}""")
        a.label(name + "_ok")
    def helper_sync(off, name):
        a(f"""v_mov_b32 v{vU[0]}, {L_CNT + off}
              v_mov_b32 v{vU[1]}, 1
              s_mov_b64 exec, 1
              ds_add_u32 v{vU[0]}, v{vU[1]}
              s_mov_b64 exec, -1""")
        lds_wait(off, 4, name, 1)
    def epoch_load():
        a(f"s_load_dwordx2 s[{sEp}:{sEp+1}], s[{K_WS}:{K_WS+1}], {WS_EPOCH}")
    def epoch_tag():
        a(f"""s_waitcnt lgkmcnt(0)
              s_add_u32 s{sEp}, s{sEp}, 1
              s_xor_b32 s{sTag}, s{sEp}, 0x5bd1e995
              s_mul_i32 s{sTag+1}, s{sEp}, 0x9e3779b1
              s_add_u32 s{sTag+1}, s{sTag+1}, s{sEp+1}""")
    def consts():
        a(f"""s_mov_b32 s{sMc1}, 0xcccccccc
              s_mov_b32 s{sMc1+1}, 0xcccccccc
              s_mov_b32 s{sMc0}, 0xaaaaaaaa
              s_mov_b32 s{sMc0+1}, 0xaaaaaaaa
              s_mov_b32 s{sScale}, 0x3db504f3
              s_mov_b32 s{sLog2e}, 0x3fb8aa3b
              s_mov_b32 s{sHiMask}, 0xffff0000""")
        srd(16, K_WS, WS_SIZE)
    R0 = vRing

    a.label(f"{NAME}_kernel")
    a(f"""s_cmp_ge_u32 s2, 256
          s_cbranch_scc1 L_end
          s_load_dwordx16 s[64:79], s[0:1], 0
          s_load_dwordx8 s[80:87], s[0:1], 64
          s_load_dwordx2 s[88:89], s[0:1], 96""")
    stamp(0)
    if fixdur: a("s_memrealtime s[48:49]")
    if perm:
        a(f"s_mul_i32 s2, s2, {perm}\ns_lshr_b32 s{sT[0]}, s2, 8\ns_and_b32 s2, s2, 255")
        a(f"s_lshr_b32 s{sT[0]}, s2, 3\ns_xor_b32 s2, s2, s{sT[0]}")
    if hmap == 0: hb_code = f"s_lshl_b32 s{sHB}, s{sH}, 3\ns_add_u32 s{sHB}, s{sHB}, s{sX}"
    elif hmap == 1: hb_code = (f"s_and_b32 s{sHB}, s{sH}, 1\ns_lshr_b32 s{sH}, s{sH}, 1\ns_lshl_b32 s{sH}, s{sH}, 4\ns_add_u32 s{sHB}, s{sHB}, s{sH}\n"
                               f"s_lshl_b32 s{sT[0]}, s{sX}, 1\ns_add_u32 s{sHB}, s{sHB}, s{sT[0]}")
    elif hmap == 6:
        hb_code = (f"s_and_b32 s{sHB}, s{sH}, 1\ns_lshr_b32 s{sH}, s{sH}, 1\ns_lshl_b32 s{sH}, s{sH}, 3\ns_add_u32 s{sHB}, s{sHB}, s{sH}\n"
                   f"s_and_b32 s{sT[0]}, s{sX}, 3\ns_lshl_b32 s{sT[0]}, s{sT[0]}, 1\ns_add_u32 s{sHB}, s{sHB}, s{sT[0]}\n"
                   f"s_and_b32 s{sT[0]}, s{sX}, 4\ns_lshl_b32 s{sT[0]}, s{sT[0]}, 2\ns_add_u32 s{sHB}, s{sHB}, s{sT[0]}")
    else: hb_code = f"s_mov_b32 s{sHB}, s{sHA}"
    a(f"""v_lshrrev_b32 v{vT[0]}, 6, v0
          v_and_b32 v{vLane}, 63, v0
          v_readfirstlane_b32 s{sWave}, v{vT[0]}
          s_and_b32 s{sX}, s2, 7
          s_lshr_b32 s{sI}, s2, 3
          s_lshr_b32 s{sH}, s{sI}, 3
          s_lshl_b32 s{sT[0]}, s{sX}, 2
          s_add_u32 s{sHA}, s{sH}, s{sT[0]}
          {hb_code}
          s_bfe_u32 s{sB}, s{sI}, 0x10002
          s_and_b32 s{sS}, s{sI}, 3
          s_and_b32 s{sR}, s{sI}, 7
          s_and_b32 s{sW}, s{sWave}, 3
          v_and_b32 v{vC}, 15, v{vLane}
          v_lshrrev_b32 v{vG}, 4, v{vLane}""")
    if table:
        a(f"""s_waitcnt lgkmcnt(0)
              s_lshl_b32 s{sT[0]}, s2, 2
              {f"s_add_u32 s{sT[0]}, s{sT[0]}, s{sW}" if xorph else ""}
              {f"s_lshl_b32 s{sT[0]}, s{sT[0]}, 2" if xorph else ""}
              s_add_u32 s{sT[0]}, s{sT[0]}, 32768
              s_load_dword s98, s[{K_WS}:{K_WS+1}], s{sT[0]}
              s_waitcnt lgkmcnt(0)
              s_lshr_b32 s{sHB}, s98, 8
              s_and_b32 s{sHB}, s{sHB}, 31""")
    for k in range(NSTUB):
        a(f"s_cmp_eq_u32 s{sWave}, {k if k < 8 else (k - 8 + 2)}\ns_cbranch_scc1 L_stub{k}")
        if k % 8 == 7 or k == NSTUB - 1: a.label(f"L_back{k // 8}")
    a(f"""s_cmp_lt_u32 s{sWave}, 4
          s_cbranch_scc0 L_stream""")

    a(f"s_cmp_lt_u32 s{sW}, 2\ns_cselect_b32 s{sH}, s{sHB}, s{sHA}")
    if nodup:
        a(f"s_lshl_b32 s{sT[0]}, s{sR}, 6")
    else:
        a(f"""s_and_b32 s{sT[0]}, s{sW}, 1
              s_lshl_b32 s{sT[0]}, s{sT[0]}, 9
              s_lshl_b32 s{sT[1]}, s{sR}, 6
              s_add_u32 s{sT[0]}, s{sT[0]}, s{sT[1]}""")
    a(f"""v_add_lshl_u32 v{vT[0]}, s{sT[0]}, v{vLane}, 1
          v_lshlrev_b32 v{vO0}, 17, v{vG}
          v_lshl_add_u32 v{vO0}, v{vC}, 4, v{vO0}
          s_lshl_b32 s{sOff}, s{sR}, 19
          s_lshl_b32 s{sT[0]}, s{sH}, 8
          s_add_u32 s{sOff}, s{sOff}, s{sT[0]}
          s_mov_b32 s14, 0x400000
          s_mov_b32 s15, 0x00020000
          s_mov_b32 s22, 2048
          s_mov_b32 s23, 0x00020000
          v_lshlrev_b32 v{vU[0]}, 2, v{vC}
          v_mov_b32 v{vU[1]}, 0
          ds_write_b32 v{vU[0]}, v{vU[1]} offset:{L_CNT}
          s_waitcnt lgkmcnt(0)
          s_cmp_lt_u32 s{sW}, 2
          s_cselect_b32 s12, s{K_BWQ}, s{K_AWQ}
          s_cselect_b32 s13, s{K_BWQ+1}, s{K_AWQ+1}
          s_cselect_b32 s20, s{K_BX}, s{K_AX}
          s_cselect_b32 s21, s{K_BX+1}, s{K_AX+1}""")
    epoch_load()
    first = 1 if nodup else 2
    if bar0: a(f"s_cmp_lt_u32 s{sW}, {first}\ns_cbranch_scc1 L_h_go\ns_barrier")
    else: a("s_barrier")
    if nodup: a(f"s_bitcmp1_b32 s{sW}, 0\ns_cbranch_scc1 L_helper2")
    a.label("L_h_go")
    a(f"buffer_load_ushort v{vP}, v{vT[0]}, s[20:23], 0 offen nt")
    if nodup: a(f"buffer_load_ushort v{vP+1}, v{vT[0]}, s[20:23], 0 offen offset:1024 nt")
    for k in range(16):
        r = slot(k & 1, k >> 1)
        a(f"buffer_load_dwordx4 v[{r}:{r+3}], v{vO0}, s[12:15], s{sOff} offen nt")
        if k < 15: a(f"s_add_u32 s{sOff}, s{sOff}, 0x2000")
    if bar0: a(f"s_cmp_lt_u32 s{sW}, {first}\ns_cbranch_scc0 L_helper2\ns_barrier")
    a("s_branch L_helper2")

    a.label("L_stream")
    if sprio: a(f"s_setprio {sprio}")
    if wb:
        assert pat == 8
        a(f"""s_lshl_b32 s{sT[0]}, s{sW}, {wb}
              v_lshlrev_b32 v{vAd}, 4, v{vLane}
              v_add_u32 v{vAd}, s{sT[0]}, v{vAd}
              v_add_u32 v{vAd+1}, 0x1000, v{vAd}""")
    elif bperm:
        if bperm == "table":
            a(f"s_waitcnt lgkmcnt(0)\ns_load_dwordx8 s[56:63], s[{K_WS}:{K_WS+1}], 49152\ns_waitcnt lgkmcnt(0)")
            sh = [f"s{56+k}" for k in range(7)]
        else: sh = [str(v) for v in bperm]
        a(f"""v_lshlrev_b32 v{vAd}, 4, v{vC}
              v_and_b32 v{vT[0]}, 1, v{vG}
              v_lshl_add_u32 v{vAd}, v{vT[0]}, {sh[0]}, v{vAd}
              v_lshrrev_b32 v{vT[0]}, 1, v{vG}
              v_lshl_add_u32 v{vAd}, v{vT[0]}, {sh[1]}, v{vAd}
              s_and_b32 s{sT[0]}, s{sW}, 1
              s_lshl_b32 s{sT[0]}, s{sT[0]}, {sh[2]}
              s_lshr_b32 s{sT[1]}, s{sW}, 1
              s_lshl_b32 s{sT[1]}, s{sT[1]}, {sh[3]}
              s_add_u32 s{sT[0]}, s{sT[0]}, s{sT[1]}
              v_add_u32 v{vAd}, s{sT[0]}, v{vAd}""")
        for b in range(3):
            a(f"s_lshl_b32 s{sT[0]}, 1, {sh[4+b]}")
            for k in range(1 << b): a(f"v_add_u32 v{vAd + (1 << b) + k}, s{sT[0]}, v{vAd + k}")
    else: addr_setup(pat)
    if table: ph_code = f"s_and_b32 s{sOff}, s98, 15\ns_lshl_b32 s{sOff}, s{sOff}, 15"
    elif phm == 0: ph_code = f"s_and_b32 s{sOff}, s{sI}, 15\ns_lshl_b32 s{sOff}, s{sOff}, 15"
    elif phm == 1: ph_code = f"s_lshl_b32 s{sOff}, s{sB}, 18"
    elif phm == 2: ph_code = f"s_lshl_b32 s{sOff}, s{sB}, {phb[0]}\ns_lshr_b32 s{sT[0]}, s{sI}, 4\ns_lshl_b32 s{sT[0]}, s{sT[0]}, {phb[1]}\ns_add_u32 s{sOff}, s{sOff}, s{sT[0]}"
    elif phm == 3: ph_code = f"s_lshl_b32 s{sOff}, s{sB}, 17"
    a(f"""s_mov_b32 s{sH}, s{sHB}
          s_lshl_b32 s{sU}, s{sB}, 5
          s_add_u32 s{sU}, s{sU}, s{sH}
          s_lshl_b32 s{sU}, s{sU}, 2
          s_add_u32 s{sU}, s{sU}, s{sS}
          s_lshl_b32 s{sU}, s{sU}, 19
          {ph_code}
          s_mov_b32 s14, 0x80000
          s_mov_b32 s15, 0x00020000""")
    if xorph:
        a(f"""s_and_b32 s{sMask}, s98, 0x3c
              s_lshl_b32 s{sMask}, s{sMask}, 13
              s_mov_b32 s{sCnt}, 0
              s_mov_b32 s{sOff}, s{sMask}
              s_and_b32 s{sT[0]}, s98, 3
              s_lshl_b32 s{sT[0]}, s{sT[0]}, 13""")
        for k in range(8 // pat): a(f"v_xor_b32 v{vAd+k}, s{sT[0]}, v{vAd+k}")
    a(f"""s_waitcnt lgkmcnt(0)
          s_add_u32 s12, s{K_BK}, s{sU}
          s_addc_u32 s13, s{K_BK+1}, 0""")
    epoch_load()
    a("s_barrier")
    issue(0, (0,) if g0free else TK)
    for G in range(1, 4):
        if G <= latefree:
            a(f"s_cmp_lt_u32 s{sX}, 4\ns_cbranch_scc1 L_s_f{G}")
            call(f"L_ISSV{G}")
            a(f"s_branch L_s_g{G}\nL_s_f{G}:")
            iss(0, G)
            a.label(f"L_s_g{G}")
        else: iss(0, G)
    stamp(1)
    consts()
    epoch_tag()
    if not abl_noq: lds_wait(16, 1, "L_s_qwait", 1)
    a(f"""v_lshlrev_b32 v{vT[0]}, 4, v{vC}
          ds_read_b128 v[{vQ}:{vQ+3}], v{vT[0]} offset:{L_QB}
          s_waitcnt lgkmcnt(0)""")
    stamp(2)
    for c in range(3):
        for G in range(4):
            call(f"L_KB{G}"); iss(c + 1, G)
        a(f"v_mov_b32 v{vS+2*c}, v{vZ0}\nv_mov_b32 v{vS+2*c+1}, v{vZ1}")
    a(f"s_add_u32 s12, s{K_BV}, s{sU}\ns_addc_u32 s13, s{K_BV+1}, 0")
    call("L_KB0"); iss(4, 0); call("L_KB1")
    a("s_waitcnt vmcnt(16)")
    call("L_KB2"); iss(4, 1)
    a("s_waitcnt vmcnt(16)")
    call("L_KB3")
    a(f"v_mov_b32 v{vS+6}, v{vZ0}\nv_mov_b32 v{vS+7}, v{vZ1}")
    stamp(3)
    for k in range(0, 8, 2): round_scores(vS + k, vS + k + 1, vT[0])
    a(f"""v_max3_f32 v{vM}, v{vS}, v{vS+1}, v{vS+2}
          v_max3_f32 v{vM}, v{vM}, v{vS+3}, v{vS+4}
          v_max3_f32 v{vM}, v{vM}, v{vS+5}, v{vS+6}
          v_max_f32 v{vM}, v{vM}, v{vS+7}""")
    wave_allreduce("v_max_f32", vM, vT[0])
    iss(4, 2)
    for k in range(8): a(f"v_sub_f32 v{vS+k}, v{vS+k}, v{vM}")
    for k in range(8): a(f"v_mul_f32 v{vS+k}, s{sLog2e}, v{vS+k}")
    for k in range(8): a(f"v_exp_f32 v{vS+k}, v{vS+k}")
    a(f"v_add_f32 v{vL}, v{vS}, v{vS+1}")
    for k in range(2, 8): a(f"v_add_f32 v{vL}, v{vL}, v{vS+k}")
    for k in range(8): a(f"v_cvt_pk_bf16_f32 v{vS+k}, v{vS+k}, 0")
    wave_allreduce("v_add_f32", vL, vT[0])
    a(f"""s_add_u32 s{sPub}, s{sH}, 32
          s_lshl_b32 s{sPub}, s{sPub}, 1
          s_add_u32 s{sPub}, s{sPub}, s{sB}
          s_lshl_b32 s{sPub}, s{sPub}, 2
          s_add_u32 s{sPub}, s{sPub}, s{sS}
          s_lshl_b32 s{sPubO}, s{sPub}, 11
          s_add_u32 s{sPubO}, s{sPubO}, {WS_PB - (256 << 11)}
          s_lshl_b32 s{sPub}, s{sPub}, 2
          s_add_u32 s{sPub}, s{sPub}, s{sW}
          s_mul_i32 s{sPub}, s{sPub}, {REC}
          s_add_u32 s{sPub}, s{sPub}, {WS_PART}
          s_mov_b32 s{sShift}, 6""")
    call("L_PUBML")
    iss(4, 3)
    for k in range(8): a(f"v_mov_b32 v{vAcc+k}, 0")
    stamp(4)
    for c in range(4):
        a(f"v_mov_b32 v{vP}, v{vS+2*c}\nv_mov_b32 v{vP+1}, v{vS+2*c+1}")
        if c == pre:
            a(f"""v_not_b32 v{vG4+1}, s{sTag}
                  v_not_b32 v{vG4+3}, s{sTag+1}
                  s_lshl_b32 s{sT[0]}, s{sW}, 9
                  v_lshl_add_u32 v{vT[0]}, v{vLane}, 4, s{sT[0]}
                  s_mov_b32 exec_hi, 0
                  buffer_store_dwordx4 v[{vG4}:{vG4+3}], v{vT[0]}, s[16:19], s{sPubO} offen {stf}
                  s_mov_b32 exec_hi, -1""")
        if c == midbar:
            a(f"s_barrier\ns_lshl_b32 s{sT[0]}, s{sW}, 4\ns_add_u32 s{sPubO}, s{sPubO}, s{sT[0]}")
        if c < 3:
            for G in range(4):
                call(f"L_WS{G}"); iss(c + 5, G)
        else:
            if early_bar: a("s_barrier")
            call("L_WS0"); a("s_waitcnt vmcnt(16)"); call("L_WS1"); a("s_waitcnt vmcnt(8)"); call("L_WS2"); call("L_WS3L")
    stamp(5)
    call("L_RED8")
    call("L_PUBPART")
    stamp(6)
    if not early_bar: a("s_barrier")
    if ya == "s0" and not abl_noA:
        a(f"""s_cmp_eq_u32 s{sW}, 0
              s_cbranch_scc0 L_exit
              s_mov_b32 s{sBr}, 0""")
        call("L_PUBY")
    a("s_branch L_exit")

    for nm, tp in ((("K", TK), ("V", TV)) if two else (("K", TK),)):
        for G in range(4):
            a.label(f"L_ISS{nm}{G}")
            issue(G, tp); ret()

    for G in range(4):
        a.label(f"L_KB{G}")
        for s in range(8): a(f"v_mov_b32 v{vt+s}, 0")
        for j in range(4):
            for s in range(8): a(f"v_dot2c_f32_bf16 v{vt+s}, v{slot(G, s)+j}, v{vQ+j}")
        for k in range(4):
            a(f"v_add_f32_dpp v{vt+k}, v{vt+k}, v{vt+k} row_mirror row_mask:0xf bank_mask:0x3")
        for k in range(4):
            a(f"v_add_f32_dpp v{vt+k}, v{vt+k+4}, v{vt+k+4} row_mirror row_mask:0xf bank_mask:0xc")
        for k in range(2):
            a(f"v_add_f32_dpp v{vt+k}, v{vt+k}, v{vt+k} row_half_mirror row_mask:0xf bank_mask:0x5")
        for k in range(2):
            a(f"v_add_f32_dpp v{vt+k}, v{vt+k+2}, v{vt+k+2} row_half_mirror row_mask:0xf bank_mask:0xa")
        for k in range(2):
            a(f"v_add_f32_dpp v{vt+k}, v{vt+k}, v{vt+k} quad_perm:[2,3,0,1] row_mask:0xf bank_mask:0xf")
        a(f"v_cndmask_b32 v{vt}, v{vt}, v{vt+1}, s[{sMc1}:{sMc1+1}]")
        if G % 2 == 0:
            a(f"v_add_f32_dpp v{vZA}, v{vt}, v{vt} quad_perm:[1,0,3,2] row_mask:0xf bank_mask:0xf")
        else:
            a(f"v_add_f32_dpp v{vt}, v{vt}, v{vt} quad_perm:[1,0,3,2] row_mask:0xf bank_mask:0xf")
            a(f"v_cndmask_b32 v{vZ0 + G // 2}, v{vZA}, v{vt}, s[{sMc0}:{sMc0+1}]")
        ret()

    for G, last in ((0, False), (1, False), (2, False), (3, False), (3, True)):
        a.label(f"L_WS{G}" + ("L" if last else ""))
        a("s_nop 1")
        for s in range(8):
            r = slot(G, s)
            a(f"v_mov_b32_dpp v{vLo}, v{vP + G // 2} row_newbcast:{2*s + (G & 1)} row_mask:0xf bank_mask:0xf")
            a(f"v_lshlrev_b32 v{vHi}, 16, v{vLo}")
            if last: a(f"s_waitcnt vmcnt({7-s})")
            for j in range(4):
                a(f"v_dot2c_f32_bf16 v{vAcc+2*j}, v{r+j}, v{vLo}")
                a(f"v_dot2c_f32_bf16 v{vAcc+2*j+1}, v{r+j}, v{vHi}")
        a("s_nop 1")
        ret()

    a.label("L_RED8")
    a("s_nop 1")
    for e in range(4): a(f"v_permlane32_swap_b32 v{vAcc+e}, v{vAcc+e+4}")
    for e in range(4): a(f"v_add_f32 v{vAcc+e}, v{vAcc+e}, v{vAcc+e+4}")
    for e in range(2): a(f"v_permlane16_swap_b32 v{vAcc+e}, v{vAcc+e+2}")
    for e in range(2): a(f"v_add_f32 v{vAcc+e}, v{vAcc+e}, v{vAcc+e+2}")
    ret()

    a.label("L_PUBML")
    a(f"""v_mov_b32 v{vG4}, v{vM}
          v_mov_b32 v{vG4+1}, s{sTag}
          v_mov_b32 v{vG4+2}, v{vL}
          v_mov_b32 v{vG4+3}, s{sTag+1}
          v_lshlrev_b32 v{vT[0]}, 4, v{vLane}
          s_mov_b64 exec, 0xff
          buffer_store_dwordx4 v[{vG4}:{vG4+3}], v{vT[0]}, s[16:19], s{sPub} offen offset:512 {stf}
          s_mov_b64 exec, -1
          s_nop 0""")
    ret()

    a.label("L_PUBPART")
    a(f"""v_rcp_f32 v{vT[0]}, v{vL}
          v_lshrrev_b32 v{vT[1]}, 1, v{vG}
          v_lshlrev_b32 v{vT[1]}, 4, v{vT[1]}
          v_add_lshl_u32 v{vT[1]}, v{vT[1]}, v{vC}, s{sShift}
          v_mul_f32 v{vAcc}, v{vAcc}, v{vT[0]}
          v_mul_f32 v{vAcc+1}, v{vAcc+1}, v{vT[0]}
          v_cvt_pk_bf16_f32 v{vG4}, v{vAcc}, v{vAcc+1}
          v_mov_b32 v{vG4+1}, s{sTag}
          v_mov_b32 v{vG4+2}, v{vG4}
          v_mov_b32 v{vG4+3}, s{sTag+1}
          v_permlane16_swap_b32 v{vG4}, v{vG4+2}
          s_mov_b32 exec_lo, 0xffff
          s_mov_b32 exec_hi, 0xffff
          buffer_store_dwordx4 v[{vG4}:{vG4+3}], v{vT[1]}, s[16:19], s{sPubO} offen {stf}
          s_mov_b64 exec, -1
          s_nop 0""")
    ret()

    a.label("L_PUBY")
    a(f"""s_lshl_b32 s{sT[0]}, s{sBr}, 11
          v_lshl_add_u32 v{vT[0]}, v{vLane}, 3, s{sT[0]}""")
    for k in range(4): a(f"ds_read_b64 v[{vt+2*k}:{vt+2*k+1}], v{vT[0]} offset:{L_YR + 512*k}")
    a(f"""s_lshl_b32 s{sT[0]}, s{sBr}, 3
          s_add_u32 s{sT[1]}, s{sT[0]}, s{sR}
          s_lshl_b32 s{sT[1]}, s{sT[1]}, 5
          s_add_u32 s{sT[1]}, s{sT[1]}, s{sHA}
          s_lshl_b32 s{sT[1]}, s{sT[1]}, 10
          s_add_u32 s{sT[1]}, s{sT[1]}, {WS_Y}
          v_lshlrev_b32 v{vT[1]}, 4, v{vLane}
          v_mov_b32 v{vG4+1}, s{sTag}
          v_mov_b32 v{vG4+3}, s{sTag+1}
          s_waitcnt lgkmcnt(0)
          v_add_f32 v{vG4}, v{vt}, v{vt+2}
          v_add_f32 v{vG4+2}, v{vt+1}, v{vt+3}
          v_add_f32 v{vt+4}, v{vt+4}, v{vt+6}
          v_add_f32 v{vt+5}, v{vt+5}, v{vt+7}
          v_add_f32 v{vG4}, v{vG4}, v{vt+4}
          v_add_f32 v{vG4+2}, v{vG4+2}, v{vt+5}
          buffer_store_dwordx4 v[{vG4}:{vG4+3}], v{vT[1]}, s[16:19], s{sT[1]} offen {yst}
          s_nop 0""")
    ret()

    a.label("L_QC")
    a(f"""v_lshlrev_b32 v{vO0}, 4, v{vLane}
          v_add_u32 v{vO1}, 0x1000, v{vO0}
          s_add_u32 s{sT[1]}, s{sT[1]}, {WS_QP}
          s_mov_b32 s{sSpin}, {SPIN}
          {"s_nop 0" if bhint else f"s_cmp_eq_u32 s{sBr}, 0"}
          {"s_nop 0" if bhint else "s_cbranch_scc0 L_QC_poll"}
          v_and_b32 v{vT[0]}, 7, v{vLane}
          v_lshlrev_b32 v{vT[0]}, 10, v{vT[0]}""")
    a.label("L_QC_hint")
    a(f"""buffer_load_dwordx4 v[{vRing}:{vRing+3}], v{vT[0]}, s[16:19], s{sT[1]} offen offset:1008 {ldf}
          s_waitcnt vmcnt(0)""")
    tagcheck([vRing], "L_QC_hint", "L_QC_hok", True)
    a.label("L_QC_poll")
    for p in range(8):
        r = vRing + 4 * p
        a(f"buffer_load_dwordx4 v[{r}:{r+3}], v{vO0 + (p >> 2)}, s[16:19], s{sT[1]} offen offset:{(p & 3) * 1024} {ldf}")
    a("s_waitcnt vmcnt(0)")
    tagcheck([vRing + 4 * p for p in range(8)], "L_QC_poll", "L_QC_ok")
    for p in range(1, 8):
        a(f"v_add_f32 v{vRing}, v{vRing}, v{vRing+4*p}\nv_add_f32 v{vRing+2}, v{vRing+2}, v{vRing+4*p+2}")
    a(f"""v_cvt_pk_bf16_f32 v{vT[0]}, v{vRing}, v{vRing+2}
          v_lshl_add_u32 v{vT[1]}, v{vC}, 2, v{vG}
          v_lshlrev_b32 v{vT[1]}, 2, v{vT[1]}
          v_add_u32 v{vT[1]}, s{sT[2]}, v{vT[1]}
          ds_write_b32 v{vT[1]}, v{vT[0]}""")
    ret()

    a.label("L_helper2")
    consts()
    a(f"""s_mov_b32 s{sSel0}, 0x05040100
          s_mov_b32 s{sSel1}, 0x07060302
          v_lshlrev_b32 v{vO0}, 4, v{vLane}""")
    epoch_tag()
    if nodup: a(f"s_bitcmp1_b32 s{sW}, 0\ns_cbranch_scc1 L_h_qdone\ns_mov_b32 s{sHH}, 0")
    else: a(f"s_and_b32 s{sHH}, s{sW}, 1")
    a("s_waitcnt vmcnt(0)")
    stamp(1)
    a.label("L_h_qloop")
    for k in range(8): a(f"v_mov_b32 v{vAcc+k}, 0")
    call("L_WS0"); call("L_WS1"); call("L_RED8")
    a(f"""s_lshr_b32 s{sT[0]}, s{sW}, 1
          s_xor_b32 s{sT[0]}, s{sT[0]}, 1
          s_lshl_b32 s{sT[0]}, s{sT[0]}, 5
          s_add_u32 s{sT[0]}, s{sT[0]}, s{sH}
          s_lshl_b32 s{sT[0]}, s{sT[0]}, 1
          s_add_u32 s{sT[0]}, s{sT[0]}, s{sHH}
          s_lshl_b32 s{sT[0]}, s{sT[0]}, 3
          s_add_u32 s{sT[0]}, s{sT[0]}, s{sR}
          s_lshl_b32 s{sT[0]}, s{sT[0]}, 10
          s_add_u32 s{sT[0]}, s{sT[0]}, {WS_QP}
          v_mov_b32 v{vG4}, v{vAcc}
          v_mov_b32 v{vG4+1}, s{sTag}
          v_mov_b32 v{vG4+2}, v{vAcc+1}
          v_mov_b32 v{vG4+3}, s{sTag+1}
          buffer_store_dwordx4 v[{vG4}:{vG4+3}], v{vO0}, s[16:19], s{sT[0]} offen {stf}""")
    if nodup:
        a(f"""v_mov_b32 v{vP}, v{vP+1}
              s_add_u32 s{sHH}, s{sHH}, 1
              s_cmp_lt_u32 s{sHH}, 2
              s_cbranch_scc1 L_h_qloop""")
    a.label("L_h_qdone")
    stamp(2)
    def qb_consume():
        a(f"""s_add_u32 s{sT[1]}, s{sHB}, 32
              s_lshl_b32 s{sT[1]}, s{sT[1]}, 1
              s_add_u32 s{sT[1]}, s{sT[1]}, s{sB}
              s_lshl_b32 s{sT[1]}, s{sT[1]}, 13
              s_mov_b32 s{sT[2]}, {L_QB}
              s_mov_b32 s{sBr}, 1""")
        call("L_QC")
        a(f"""v_mov_b32 v{vU[0]}, {L_CNT + 16}
              v_mov_b32 v{vU[1]}, 1
              ds_write_b32 v{vU[0]}, v{vU[1]}""")
    if not nodup or abl_noA:
        a(f"s_cmp_eq_u32 s{sW}, 0\ns_cbranch_scc0 L_h_A")
        qb_consume()
    a.label("L_h_A")
    if not nodup: stamp(3)
    if abl_noA: a(f"s_mov_b32 s{sBr}, 1\ns_branch L_FIN")
    a(f"""s_lshr_b32 s{sT[0]}, s{sI}, 4
          s_lshl_b32 s{sT[0]}, s{sT[0]}, 3
          s_add_u32 s{sT[0]}, s{sT[0]}, s{sX}
          s_lshl_b32 s{sOff}, s{sT[0]}, 21
          s_and_b32 s{sT[0]}, s{sI}, 15
          s_lshl_b32 s{sT[0]}, s{sT[0]}, 15
          s_add_u32 s{sOff}, s{sOff}, s{sT[0]}
          s_add_u32 s{sOff}, s{sOff}, {6144*256}
          s_mov_b32 s14, 0x2000000""")
    addr_setup(pata, wxa)
    a(f"""s_mov_b32 s12, s{K_AK}
          s_mov_b32 s13, s{K_AK+1}
          s_mov_b32 s20, s{K_AV}
          s_mov_b32 s21, s{K_AV+1}
          s_mov_b32 s22, 0x2000000""")
    order = [(G, s) for s in range(8) for G in (2, 3)] if kvi else [(G, s) for G in (2, 3) for s in range(8)]
    for G, s in ([] if abl_Akv else order):
        r = slot(G, s)
        if TH: a(f"s_waitcnt vmcnt({TH - 1})")
        va, imm = addr(s, pata)
        a(f"buffer_load_dwordx4 v[{r}:{r+3}], v{va}, s[{12 if G == 2 else 20}:{15 if G == 2 else 23}], s{sOff} offen offset:{imm} nt")
    if nodup:
        a(f"s_cmp_eq_u32 s{sW}, 1\ns_cbranch_scc0 L_h_A2")
        qb_consume()
        a.label("L_h_A2")
        stamp(3)
    a(f"""s_mov_b32 s{sBr}, 0
          s_lshl_b32 s{sU}, s{sX}, 2
          s_add_u32 s{sU}, s{sU}, s{sW}
          s_lshl_b32 s{sU}, s{sU}, 1
          s_lshr_b32 s{sT[0]}, s{sI}, 4
          s_add_u32 s{sU}, s{sU}, s{sT[0]}
          s_lshl_b32 s{sT[1]}, s{sU}, 13
          s_lshl_b32 s{sT[2]}, s{sW}, 8
          s_add_u32 s{sT[2]}, s{sT[2]}, {L_QA}""")
    if not abl_Apoll: call("L_QC")
    else: a("s_waitcnt vmcnt(0)")
    helper_sync(0, "L_hs0")
    a(f"s_mov_b32 s{sHH}, 0")
    if abl_Acomp: a("s_branch L_A_done")
    a.label("L_A_loop")
    a(f"""s_lshl_b32 s{sT[0]}, s{sHH}, 8
          v_lshlrev_b32 v{vT[0]}, 4, v{vC}
          v_add_u32 v{vT[0]}, s{sT[0]}, v{vT[0]}
          ds_read_b128 v[{vQ}:{vQ+3}], v{vT[0]} offset:{L_QA}
          s_waitcnt lgkmcnt(0)""")
    call("L_KB2")
    a(f"v_mov_b32 v{vS+1}, v{vZA}\nv_mov_b32 v{vS}, v{vZA}")
    round_scores(vS, vS + 1, vT[0])
    a(f"v_mov_b32 v{vM}, v{vS}")
    wave_allreduce("v_max_f32", vM, vT[0])
    a(f"""v_sub_f32 v{vS}, v{vS}, v{vM}
          v_mul_f32 v{vS}, s{sLog2e}, v{vS}
          v_exp_f32 v{vS}, v{vS}
          v_mul_f32 v{vL}, 0.5, v{vS}
          v_cvt_pk_bf16_f32 v{vP+1}, v{vS}, 0""")
    wave_allreduce("v_add_f32", vL, vT[0])
    for k in range(8): a(f"v_mov_b32 v{vAcc+k}, 0")
    call("L_WS3L"); call("L_RED8")
    a(f"""s_lshl_b32 s{sT[0]}, s{sHH}, 2
          s_add_u32 s{sT[0]}, s{sT[0]}, s{sW}
          s_lshl_b32 s{sT[1]}, s{sT[0]}, 9
          s_lshl_b32 s{sT[0]}, s{sT[0]}, 3
          v_lshlrev_b32 v{vT[0]}, 3, v{vLane}
          v_add_u32 v{vT[0]}, s{sT[1]}, v{vT[0]}
          v_mov_b32 v{vT[1]}, s{sT[0]}
          ds_write_b64 v{vT[0]}, v[{vAcc}:{vAcc+1}] offset:{L_OA}
          s_mov_b64 exec, 1
          ds_write_b64 v{vT[1]}, v[{vM}:{vM+1}] offset:{L_MLA}
          s_mov_b64 exec, -1
          s_add_u32 s{sHH}, s{sHH}, 1
          s_cmp_lt_u32 s{sHH}, 4
          s_cbranch_scc1 L_A_loop""")
    a.label("L_A_done")
    helper_sync(4, "L_hs1")
    a(f"""s_lshl_b32 s{sT[0]}, s{sW}, 5
          v_mov_b32 v{vT[1]}, s{sT[0]}
          s_lshl_b32 s{sT[1]}, s{sW}, 11
          v_lshlrev_b32 v{vT[0]}, 3, v{vLane}
          v_add_u32 v{vT[0]}, s{sT[1]}, v{vT[0]}
          ds_read_b128 v[{R0}:{R0+3}], v{vT[1]} offset:{L_MLA}
          ds_read_b128 v[{R0+4}:{R0+7}], v{vT[1]} offset:{L_MLA+16}""")
    for k in range(4): a(f"ds_read_b64 v[{R0+8+2*k}:{R0+9+2*k}], v{vT[0]} offset:{L_OA + 512*k}")
    a(f"""s_waitcnt lgkmcnt(0)
          v_max3_f32 v{vM}, v{R0}, v{R0+2}, v{R0+4}
          v_max_f32 v{vM}, v{vM}, v{R0+6}""")
    for k in range(4): a(f"v_sub_f32 v{R0+2*k}, v{R0+2*k}, v{vM}")
    for k in range(4): a(f"v_mul_f32 v{R0+2*k}, s{sLog2e}, v{R0+2*k}")
    for k in range(4): a(f"v_exp_f32 v{R0+2*k}, v{R0+2*k}")
    a(f"""v_mul_f32 v{vL}, v{R0}, v{R0+1}
          v_mul_f32 v{vAcc}, v{R0}, v{R0+8}
          v_mul_f32 v{vAcc+1}, v{R0}, v{R0+9}""")
    for k in range(1, 4):
        a(f"""v_fmac_f32 v{vL}, v{R0+2*k}, v{R0+2*k+1}
              v_fmac_f32 v{vAcc}, v{R0+2*k}, v{R0+8+2*k}
              v_fmac_f32 v{vAcc+1}, v{R0+2*k}, v{R0+9+2*k}""")
    a(f"""s_lshl_b32 s{sPub}, s{sU}, 4
          s_and_b32 s{sT[0]}, s{sI}, 15
          s_add_u32 s{sPub}, s{sPub}, s{sT[0]}
          s_mul_i32 s{sPub}, s{sPub}, {REC}
          s_add_u32 s{sPub}, s{sPub}, {WS_PART}
          s_mov_b32 s{sPubO}, s{sPub}
          s_mov_b32 s{sShift}, 4""")
    call("L_PUBPART"); call("L_PUBML")
    stamp(4)

    a.label("L_FIN")
    a(f"""s_cmp_eq_u32 s{sBr}, 0
          s_cselect_b32 s12, s{K_AWO}, s{K_BWO}
          s_cselect_b32 s13, s{K_AWO+1}, s{K_BWO+1}
          s_cselect_b32 s{sH}, s{sHA}, s{sHB}
          s_mov_b32 s14, 0x400000
          v_lshlrev_b32 v{vO0}, 13, v{vG}
          v_lshl_add_u32 v{vO0}, v{vC}, 3, v{vO0}
          v_add_u32 v{vO1}, 0x1000, v{vO0}
          s_lshl_b32 s{sOff}, s{sH}, 2
          s_add_u32 s{sOff}, s{sOff}, s{sW}
          s_lshl_b32 s{sOff}, s{sOff}, 15
          s_lshl_b32 s{sT[0]}, s{sR}, 7
          s_add_u32 s{sOff}, s{sOff}, s{sT[0]}""")
    PB = vRing
    vA0 = vLo
    a(f"""s_lshl_b32 s{sU}, s{sBr}, 5
          s_add_u32 s{sU}, s{sU}, s{sH}
          s_mul_i32 s{sT[1]}, s{sU}, {32 * REC}
          s_add_u32 s{sT[1]}, s{sT[1]}, {WS_PART}
          v_and_b32 v{vT[2]}, 31, v{vLane}
          v_mul_u32_u24 v{vT[3]}, {REC}, v{vT[2]}
          s_mov_b32 s{sSpin}, {SPIN}
          s_cmp_eq_u32 s{sBr}, 0
          s_cbranch_scc0 L_F_addrB
          s_lshl_b32 s{sT[0]}, s{sW}, 6
          s_add_u32 s{sP[0]}, s{sT[1]}, s{sT[0]}
          s_add_u32 s{sP[1]}, s{sP[0]}, 256
          s_add_u32 s{sP[2]}, s{sP[0]}, {16 * REC}
          s_add_u32 s{sP[3]}, s{sP[0]}, {16 * REC + 256}
          v_mul_u32_u24 v{vA0}, {REC}, v{vC}
          v_lshl_add_u32 v{vA0}, v{vG}, 4, v{vA0}""")
    if abl_Apoll: a(f"s_mov_b32 s{sBr}, 1\ns_branch L_FIN")
    a("s_branch L_F_ml0")
    a.label("L_F_addrB")
    a(f"""s_lshl_b32 s{sP[0]}, s{sH}, 14
          s_lshl_b32 s{sT[0]}, s{sW}, 8
          s_add_u32 s{sP[0]}, s{sP[0]}, s{sT[0]}
          s_add_u32 s{sP[0]}, s{sP[0]}, {WS_PB}
          s_add_u32 s{sP[1]}, s{sP[0]}, 1024
          s_add_u32 s{sP[2]}, s{sP[0]}, 8192
          s_add_u32 s{sP[3]}, s{sP[0]}, 9216
          v_lshrrev_b32 v{vA0}, 2, v{vC}
          v_lshlrev_b32 v{vA0}, 11, v{vA0}
          v_and_b32 v{vT[0]}, 3, v{vC}
          v_lshl_add_u32 v{vA0}, v{vT[0]}, 4, v{vA0}
          v_lshl_add_u32 v{vA0}, v{vG}, 6, v{vA0}
          s_waitcnt lgkmcnt(0)""")
    stamp(6)
    a("s_barrier")
    def wo_loads():
        for e in range(8):
            a(f"buffer_load_dwordx2 v[{vRaw+2*e}:{vRaw+2*e+1}], v{vO0 + (e >> 2)}, s[12:15], s{sOff} offen offset:{(e & 3) * 1024} nt")
    def part_loads():
        for k in range(4):
            r = PB + 4 * k
            a(f"buffer_load_dwordx4 v[{r}:{r+3}], v{vA0}, s[16:19], s{sP[k]} offen {pld}")
    def perms():
        for ct in range(4):
            for k, (ea, eb) in enumerate(((0, 1), (4, 5), (2, 3), (6, 7))):
                a(f"v_perm_b32 v{vBop+4*ct+k}, v{vRaw+2*eb+(ct>>1)}, v{vRaw+2*ea+(ct>>1)}, s{sSel0 + (ct & 1)}")
    a.label("L_F_ml0")
    if wo_at == "mid": wo_loads()
    if wo_at == "touch":
        a(f"s_mov_b64 exec, 1\nbuffer_load_dword v{vRaw}, v{vO0}, s[12:15], s{sOff} offen nt\ns_mov_b64 exec, -1")
    a.label("L_F_mlpoll")
    a(f"""buffer_load_dwordx4 v[{vG4}:{vG4+3}], v{vT[3]}, s[16:19], s{sT[1]} offen offset:512 {ldf}
          s_waitcnt vmcnt(0)""")
    tagcheck([vG4], "L_F_mlpoll", "L_F_mlok", "always")
    if wo_at == "mid": perms()
    a(f"v_mov_b32 v{vM}, v{vG4}")
    row_allreduce("v_max_f32", [vM])
    a(f"""v_sub_f32 v{vG4}, v{vG4}, v{vM}
          v_mul_f32 v{vG4}, s{sLog2e}, v{vG4}
          v_exp_f32 v{vG4}, v{vG4}
          v_mul_f32 v{vG4}, v{vG4}, v{vG4+2}
          v_mov_b32 v{vL}, v{vG4}""")
    row_allreduce("v_add_f32", [vL])
    a(f"""v_rcp_f32 v{vL}, v{vL}
          s_lshl_b32 s{sT[0]}, s{sW}, 7
          v_lshl_add_u32 v{vT[0]}, v{vT[2]}, 2, s{sT[0]}
          v_mul_f32 v{vG4}, v{vG4}, v{vL}
          v_lshl_add_u32 v{vT[1]}, v{vG}, 4, s{sT[0]}
          ds_write_b32 v{vT[0]}, v{vG4} offset:{L_WT}
          ds_read_b128 v[{vW}:{vW+3}], v{vT[1]} offset:{L_WT}
          ds_read_b128 v[{vW+4}:{vW+7}], v{vT[1]} offset:{L_WT+64}
          s_lshl_b32 s{sT[0]}, s{sBr}, 2
          s_add_u32 s{sT[0]}, s{sT[0]}, s{sW}
          s_lshl_b32 s{sT[0]}, s{sT[0]}, 9
          v_lshrrev_b32 v{vT[0]}, 1, v{vG}
          v_lshlrev_b32 v{vT[0]}, 5, v{vT[0]}
          v_and_b32 v{vT[1]}, 1, v{vG}
          v_lshl_add_u32 v{vT[1]}, v{vC}, 1, v{vT[1]}
          v_add_lshl_u32 v{vT[0]}, v{vT[0]}, v{vT[1]}, 3
          v_add_u32 v{vT[0]}, s{sT[0]}, v{vT[0]}
          v_mov_b32 v{vHi}, v{vT[0]}
          s_mov_b32 s{sSpin}, {SPIN}
          s_cmp_eq_u32 s{sBr}, 0
          s_cbranch_scc1 L_F_go
          s_barrier""")
    tstamp(1)
    if abl_notail: a("s_branch L_exit")
    if ya == "h3" and not abl_noA:
        a(f"""s_cmp_eq_u32 s{sW}, 3
              s_cbranch_scc0 L_F_go
              s_mov_b32 s{sBr}, 0""")
        call("L_PUBY")
        a(f"s_mov_b32 s{sBr}, 1")
    a.label("L_F_go")
    if wo_at == "mid":
        a("s_mov_b64 vcc, -1")
    else:
        wo_loads(); part_loads()
        a("s_waitcnt vmcnt(4)")
        tstamp(2)
        perms()
        a("s_branch L_F_pwait")
    a.label("L_F_ppoll")
    if masked: a("s_mov_b64 exec, vcc")
    part_loads()
    if masked: a("s_mov_b64 exec, -1")
    a.label("L_F_pwait")
    a("s_waitcnt vmcnt(0)")
    tagcheck([PB + 4 * k for k in range(4)], "L_F_ppoll", "L_F_pok", True)
    tstamp(3)
    for b in range(2):
        a(f"v_mov_b32 v{PB+8*b+1}, v{PB+8*b+4}\nv_mov_b32 v{PB+8*b+3}, v{PB+8*b+6}")
    D = vRing + 32
    for b in range(2):
        for ct in range(4):
            d = D + (b * 4 + ct) * 4
            a(f"v_mfma_f32_16x16x32_bf16 v[{d}:{d+3}], v[{PB+8*b}:{PB+8*b+3}], v[{vBop+4*ct}:{vBop+4*ct+3}], 0")
    a("s_waitcnt lgkmcnt(0)")
    for i in range(4):
        for b in range(2):
            for ct in range(4):
                d = D + (b * 4 + ct) * 4
                if i == 0: a(f"v_mul_f32 v{vAcc+b*4+ct}, v{vW+4*b}, v{d}")
                else: a(f"v_fmac_f32 v{vAcc+b*4+ct}, v{vW+4*b+i}, v{d+i}")
    call("L_RED8")
    a(f"""ds_write_b64 v{vHi}, v[{vAcc}:{vAcc+1}] offset:{L_YR}
          s_cmp_eq_u32 s{sBr}, 0
          s_mov_b32 s{sBr}, 1""")
    if diag:
        a("s_cbranch_scc0 L_F_tail"); stamp(5); a("s_branch L_FIN"); a.label("L_F_tail")
    else:
        a("s_cbranch_scc1 L_FIN")
    a(f"""v_mov_b32 v{vU[0]}, {L_CNT + 8}
          v_mov_b32 v{vU[1]}, 1
          s_mov_b64 exec, 1
          ds_add_rtn_u32 v{vU[2]}, v{vU[0]}, v{vU[1]}
          s_mov_b64 exec, -1
          s_waitcnt lgkmcnt(0)
          v_readfirstlane_b32 s{sT[0]}, v{vU[2]}
          s_cmp_eq_u32 s{sT[0]}, 3
          s_cbranch_scc0 L_exit""")
    call("L_PUBY")
    if ya == "last" and not abl_noA:
        a(f"s_mov_b32 s{sBr}, 0"); call("L_PUBY"); a(f"s_mov_b32 s{sBr}, 1")
    tstamp(4)
    a(f"""s_lshl_b32 s{sT[1]}, s{sX}, 15
          s_lshl_b32 s{sT[0]}, s{sI}, 5
          s_add_u32 s{sT[1]}, s{sT[1]}, s{sT[0]}
          s_add_u32 s{sT[1]}, s{sT[1]}, {WS_Y}
          s_add_u32 s{sT[3]}, s{sT[1]}, {8 << 15}
          v_lshrrev_b32 v{vT[0]}, 5, v{vLane}
          v_lshlrev_b32 v{vT[1]}, 10, v{vT[2]}
          v_lshl_add_u32 v{vT[1]}, v{vT[0]}, 4, v{vT[1]}
          v_lshlrev_b32 v{vT[0]}, 2, v{vT[0]}
          s_lshr_b32 s{sT[2]}, s{sI}, 4
          s_lshl_b32 s{sT[2]}, s{sT[2]}, 11
          s_lshl_b32 s{sT[0]}, s{sX}, 7
          s_add_u32 s{sT[2]}, s{sT[2]}, s{sT[0]}
          s_and_b32 s{sT[0]}, s{sI}, 15
          s_lshl_b32 s{sT[0]}, s{sT[0]}, 3
          s_add_u32 s{sT[2]}, s{sT[2]}, s{sT[0]}
          s_mov_b32 s{sSpin}, {SPIN}""")
    srd(20, K_OUT, 4096)
    if masked: a("s_mov_b64 vcc, -1")
    a.label("L_F_ypoll")
    if masked: a("s_mov_b64 exec, vcc")
    a(f"buffer_load_dwordx4 v[{R0+4}:{R0+7}], v{vT[1]}, s[16:19], s{sT[3]} offen {yld}")
    if not abl_noA: a(f"buffer_load_dwordx4 v[{R0}:{R0+3}], v{vT[1]}, s[16:19], s{sT[1]} offen {yld}")
    if masked: a("s_mov_b64 exec, -1")
    a("s_waitcnt vmcnt(0)")
    tagcheck([R0 + 4] if abl_noA else [R0, R0 + 4], "L_F_ypoll", "L_F_yok")
    tstamp(5)
    row_allreduce("v_add_f32", [R0, R0 + 2, R0 + 4, R0 + 6])
    for k in range(4): a(f"v_mov_b32 v{R0+2*k+1}, v{R0+2*k}")
    for k in range(4): a(f"v_permlane16_swap_b32 v{R0+2*k}, v{R0+2*k+1}")
    for k in range(4): a(f"v_add_f32 v{R0+2*k}, v{R0+2*k}, v{R0+2*k+1}")
    a(f"""v_cvt_pk_bf16_f32 v{R0}, v{R0}, v{R0+2}
          v_cvt_pk_bf16_f32 v{R0+4}, v{R0+4}, v{R0+6}
          s_mov_b32 exec_lo, 1
          s_mov_b32 exec_hi, 1
          buffer_store_dword v{R0}, v{vT[0]}, s[20:23], s{sT[2]} offen
          buffer_store_dword v{R0+4}, v{vT[0]}, s[20:23], s{sT[2]} offen offset:1024
          s_mov_b64 exec, -1
          s_cmp_eq_u32 s2, 0
          s_cbranch_scc0 L_exit
          v_mov_b32 v{vT[0]}, {WS_EPOCH}
          v_mov_b32 v{vT[1]}, s{sEp}
          s_mov_b64 exec, 1
          buffer_store_dword v{vT[1]}, v{vT[0]}, s[16:19], 0 offen sc1
          s_mov_b64 exec, -1""")

    a.label("L_exit")
    if fixdur:
        a.label("L_fix")
        a(f"""s_memrealtime s[50:51]
              s_waitcnt lgkmcnt(0)
              s_sub_u32 s50, s50, s48
              s_cmp_lt_u32 s50, {fixdur}
              s_cbranch_scc1 L_fix""")
    if diag:
        stamp(7)
        a(f"""s_lshl_b32 s{sT[0]}, s2, 3
              s_add_u32 s{sT[0]}, s{sT[0]}, s{sWave}
              s_lshl_b32 s{sT[0]}, s{sT[0]}, 6
              s_add_u32 s{sT[0]}, s{sT[0]}, {STAMP_OFF}
              s_waitcnt vmcnt(0) lgkmcnt(0)
              v_mov_b32 v{vT[0]}, 0""")
        for k in range(16): a(f"v_mov_b32 v{vRing+k}, s{48+k}")
        a("s_mov_b64 exec, 1")
        for k in range(4): a(f"buffer_store_dwordx4 v[{vRing+4*k}:{vRing+4*k+3}], v{vT[0]}, s[16:19], s{sT[0]} offen offset:{16*k}")
    a.label("L_end")
    a("s_endpgm")

    body, nops = a.render(nstub=NSTUB if stubs else 0, total=NSTUB)
    head = open(f"cdna_kernels/{NAME}.s.ref").read().split("; Override launch")[0]
    txt = head + f"""; Generated by dev/gen.py (hand-written generator). One workgroup per CU: waves 0-3 helpers, waves 4-7 stream branch-B K/V.
; @launch grid=(256,1,1) block=(512,1,1) lds={LDS_BYTES}
.amdgcn_target "amdgcn-amd-amdhsa--gfx950"
.text
.globl {NAME}_kernel
.p2align 12
.p2align 8
.type {NAME}_kernel,@function
{body}.section .rodata,"a"
.p2align 6
.amdhsa_kernel {NAME}_kernel
  .amdhsa_next_free_vgpr {NVGPR}
  .amdhsa_next_free_sgpr 100
  .amdhsa_accum_offset {NVGPR}
  .amdhsa_group_segment_fixed_size 0
  .amdhsa_kernarg_size 104
  .amdhsa_user_sgpr_count 2
  .amdhsa_user_sgpr_kernarg_segment_ptr 1
  .amdhsa_system_sgpr_workgroup_id_x 1
  .amdhsa_float_denorm_mode_32 3
.end_amdhsa_kernel
"""
    return txt, nops, a.code_bytes

if __name__ == "__main__":
    out = sys.argv[1]
    kw = json.loads(sys.argv[2]) if len(sys.argv) > 2 else {}
    txt, nops, nb = gen(**kw)
    open(out, "w").write(txt)
    print(out, "lines", txt.count("\n"), "auto nops", nops, "code bytes", nb)
```

```python
import sys, json
sys.path.insert(0, "dev")
from asmlib import Asm
NAME = "concat_heads__sliding_block_cached__mha_block_cached__decode"

WS_EPOCH, WS_Y, WS_QP, WS_PART, WS_PB = 0, 64 << 10, 1 << 20, 2 << 20, (3 << 20) + (512 << 10)
WS_MK = 16 << 10
WS_GM = 8 << 10
REC = 640
WS_SIZE = 512 << 20
STAMP_OFF = 64 << 20
L_QB, L_QA, L_CNT, L_MLA, L_WT, L_OA, L_YR = 0, 256, 1280, 1408, 1536, 2048, 10240
LDS_BYTES = 16384
vLane, vO0, vO1 = 1, 2, 3
vT = [4, 5, 6, 7]
vQ = 8
vAcc = 12
vt = 20
vZ0, vZ1, vZA = 28, 29, 30
vP = 32
vLo, vHi = 34, 35
vS = 36
vG4 = 44
vM, vL, vC, vG = 48, 49, 50, 51
vU = [52, 53, 54, 55]
vW = 56
vRing = 64
vRaw = 192
vAd = 208
vBop = 208
NVGPR = 224
sWave, sW, sX, sI, sH, sB, sS, sR = 3, 4, 5, 6, 7, 8, 9, 10
sOff = 24
sT = [25, 26, 27, 11]
sTag = 28
sRet = 30
sEp = 32
sMc1, sMc0 = 34, 36
sScale, sLog2e, sHiMask = 38, 39, 40
sSpin, sBr, sHH = 41, 42, 43
sPub, sU = 44, 45
sSel0, sSel1 = 46, 47
sPubO, sShift = 90, 91
sCnt, sMask = 92, 93
sHA, sHB = 96, 97
sP = [92, 93, 94, 95]
K_AX, K_AK, K_AV, K_AWQ, K_AWO, K_BX, K_BK, K_BV, K_BWQ, K_BWO, K_OUT, K_DBG, K_WS = [64 + 2 * i for i in range(13)]
SPIN = 1 << 18
NSTUB = 10

def slot(G, s): return vRing + (G * 8 + s) * 4

def gen(diag=False, bar0=True, asleep=32, stubs=True, abl_noA=False, abl_noq=False, abl_notail=False,
        TK=(5,5,5,5,5,5,5,6), TV=(16,), vfrom=7, TH=14, early_bar=False, masked=True, pre=-1, midbar=2, wo_at="mid", pat=2, pata=2, bperm=None, lag=2, nfast=4, endlag=3, midg=5, fastend=True, fastf2=True, f2lag=3, f3first=True, rank='m', rtab=1412571392, gw=0, gdelay=0, gld='nt', gbias=0, rfrom=2, rmax=6, nodup=True, bhint=False, hmap=2, ph=1, phm=2, wxa=5, kvi=False, wb=0, phb=(18, 17), aearly=False, g0free=False, table=False, xorph=False, phx=0, phs=0, latefree=0, pld="nt", ya="flag", tsleep=0, local=True, slow=128, perm=0, ldf="nt", yld="sc1", yst="sc1", sprio=0, abl_Apoll=False, abl_Acomp=False, abl_Akv=False, abl_Ast=False, narrow=True, aser=1, qser=4, n0=3, xb=1, yag=15, late2=True, h2early=True, abl_dbl=False, fixdur=0):
    assert max(TK) <= 16 and max(TV) <= 16
    two = tuple(TK) != tuple(TV)
    def iss(c, G): call(f"L_ISS{'V' if (two and c >= vfrom) else 'K'}{G}")
    a = Asm()
    stf = "" if local else "sc1"
    def tstamp(i):
        if diag == 3: a(f"s_memrealtime s[{48+2*i}:{49+2*i}]")
    def stamp(i):
        if diag == 2 and i in (1, 2): return
        if diag: a(f"s_memrealtime s[{48+2*i}:{49+2*i}]")
        if diag == 2 and i == 0: a("s_memtime s[50:51]")
        if diag == 2 and i == 5: a("s_memtime s[52:53]")
    def srd(base, ptr, size):
        a(f"s_mov_b32 s{base}, s{ptr}\ns_mov_b32 s{base+1}, s{ptr+1}\ns_mov_b32 s{base+2}, {size}\ns_mov_b32 s{base+3}, 0x00020000")
    def addr(s, p):
        if p == 8: return (vAd + (s >> 2), (s & 3) * 1024)
        return (vAd + s // p, (s % p) * 1024)
    def addr_setup(p, wx=-1):
        if wx >= 0: a(f"s_lshr_b32 s{sT[0]}, s2, {wx}\ns_xor_b32 s{sT[0]}, s{sT[0]}, s{sW}\ns_and_b32 s{sT[0]}, s{sT[0]}, 3")
        a(f"""s_lshl_b32 s{sT[0]}, s{sT[0] if wx >= 0 else sW}, {10 + p.bit_length() - 1}
              v_lshlrev_b32 v{vAd}, 4, v{vLane}
              v_add_u32 v{vAd}, s{sT[0]}, v{vAd}""")
        if p == 8: a(f"v_add_u32 v{vAd+1}, 0x1000, v{vAd}")
        else:
            for k in range(1, 8 // p): a(f"v_add_u32 v{vAd+k}, {k * p * 4096}, v{vAd}")
    def issue(G, tp, bar_at=-1):
        for s in range(8):
            if s == bar_at: a("s_barrier")
            r = slot(G, s)
            t = tp[s % len(tp)]
            if t: a(f"s_waitcnt vmcnt({t - 1})")
            va, imm = (vAd + s, 0) if bperm else addr(s, pat)
            a(f"buffer_load_dwordx4 v[{r}:{r+3}], v{va}, s[12:15], s{sOff} offen offset:{imm} nt")
        if xorph: a(f"s_add_u32 s{sCnt}, s{sCnt}, 0x8000\ns_and_b32 s{sCnt}, s{sCnt}, 0x7ffff\ns_xor_b32 s{sOff}, s{sCnt}, s{sMask}")
        elif wb:
            hole = 3 << wb
            a(f"s_or_b32 s{sOff}, s{sOff}, {hole}\ns_add_u32 s{sOff}, s{sOff}, 0x2000\ns_and_b32 s{sOff}, s{sOff}, {0x7ffff & ~hole}")
        else: a(f"s_add_u32 s{sOff}, s{sOff}, 0x8000\ns_and_b32 s{sOff}, s{sOff}, 0x7ffff")
    def call(lbl): a(f"s_call_b64 s[{sRet}:{sRet+1}], {lbl}")
    def ret(): a(f"s_setpc_b64 s[{sRet}:{sRet+1}]")
    def row_allreduce(op, regs):
        for m in ("row_mirror", "row_half_mirror", "quad_perm:[2,3,0,1]", "quad_perm:[1,0,3,2]"):
            for x in regs: a(f"{op}_dpp v{x}, v{x}, v{x} {m} row_mask:0xf bank_mask:0xf")
    def xrow(op, x, tmp, which):
        a(f"v_mov_b32 v{tmp}, v{x}\nv_permlane{which}_swap_b32 v{x}, v{tmp}\n{op} v{x}, v{x}, v{tmp}")
    def wave_allreduce(op, x, tmp):
        row_allreduce(op, [x]); xrow(op, x, tmp, 16); xrow(op, x, tmp, 32)
    def round_scores(x, y, t):
        a(f"""v_cvt_pk_bf16_f32 v{t}, v{x}, v{y}
              v_lshlrev_b32 v{x}, 16, v{t}
              v_and_b32 v{y}, s{sHiMask}, v{t}
              v_mul_f32 v{x}, s{sScale}, v{x}
              v_mul_f32 v{y}, s{sScale}, v{y}
              v_cvt_pk_bf16_f32 v{t}, v{x}, v{y}
              v_lshlrev_b32 v{x}, 16, v{t}
              v_and_b32 v{y}, s{sHiMask}, v{t}""")
    def tagcheck(bufs, lbl_retry, lbl_ok, backoff=False, restore=False, patience=None):
        acc = vU[0]
        first = True
        for b in bufs:
            a(f"v_xor_b32 v{vU[1]}, s{sTag}, v{b+1}\nv_xor_b32 v{vU[2]}, s{sTag+1}, v{b+3}")
            if first: a(f"v_or_b32 v{acc}, v{vU[1]}, v{vU[2]}")
            else: a(f"v_or3_b32 v{acc}, v{acc}, v{vU[1]}, v{vU[2]}")
            first = False
        a(f"v_cmp_ne_u32 vcc, 0, v{acc}")
        if restore: a("s_mov_b64 exec, -1")
        a(f"s_cbranch_vccz {lbl_ok}")
        if backoff == "always": a(f"s_sleep {asleep}")
        elif backoff and asleep:
            a(f"s_cmp_eq_u32 s{sBr}, 0\ns_cbranch_scc0 {lbl_ok}_nb\ns_sleep {asleep}\n{lbl_ok}_nb:")
        if tsleep: a(f"s_sleep {tsleep}")
        if local:
            a(f"""s_cmp_gt_u32 s{sSpin}, {SPIN - (patience or slow)}
                  s_cbranch_scc1 {lbl_ok}_fast
                  buffer_wbl2 sc1
                  s_waitcnt vmcnt(0)
                  s_sleep 16
                  {lbl_ok}_fast:""")
        a(f"""s_sub_u32 s{sSpin}, s{sSpin}, 1
              s_cbranch_scc0 {lbl_retry}""")
        a.label(lbl_ok)
    def lds_wait(off, atleast, name, sleep=0):
        a(f"v_mov_b32 v{vU[0]}, {L_CNT + off}\ns_mov_b32 s{sSpin}, {SPIN * 64}")
        a.label(name)
        a(f"""ds_read_b32 v{vU[1]}, v{vU[0]}
              s_waitcnt lgkmcnt(0)
              v_readfirstlane_b32 s{sT[0]}, v{vU[1]}
              s_cmp_ge_u32 s{sT[0]}, {atleast}
              s_cbranch_scc1 {name}_ok""")
        if sleep: a(f"s_sleep {sleep}")
        a(f"""s_sub_u32 s{sSpin}, s{sSpin}, 1
              s_cbranch_scc0 {name}""")
        a.label(name + "_ok")
    def helper_sync(off, name):
        a(f"""v_mov_b32 v{vU[0]}, {L_CNT + off}
              v_mov_b32 v{vU[1]}, 1
              s_mov_b64 exec, 1
              ds_add_u32 v{vU[0]}, v{vU[1]}
              s_mov_b64 exec, -1""")
        lds_wait(off, 4, name, 1)
    def epoch_load():
        a(f"s_load_dwordx2 s[{sEp}:{sEp+1}], s[{K_WS}:{K_WS+1}], {WS_EPOCH}")
    def epoch_tag():
        a(f"""s_waitcnt lgkmcnt(0)
              s_add_u32 s{sEp}, s{sEp}, 1
              s_xor_b32 s{sTag}, s{sEp}, 0x5bd1e995
              s_mul_i32 s{sTag+1}, s{sEp}, 0x9e3779b1
              s_add_u32 s{sTag+1}, s{sTag+1}, s{sEp+1}""")
    def consts():
        a(f"""s_mov_b32 s{sMc1}, 0xcccccccc
              s_mov_b32 s{sMc1+1}, 0xcccccccc
              s_mov_b32 s{sMc0}, 0xaaaaaaaa
              s_mov_b32 s{sMc0+1}, 0xaaaaaaaa
              s_mov_b32 s{sScale}, 0x3db504f3
              s_mov_b32 s{sLog2e}, 0x3fb8aa3b
              s_mov_b32 s{sHiMask}, 0xffff0000""")
        srd(16, K_WS, WS_SIZE)
    R0 = vRing

    a.label(f"{NAME}_kernel")
    a(f"""s_cmp_ge_u32 s2, 256
          s_cbranch_scc1 L_end
          s_load_dwordx16 s[64:79], s[0:1], 0
          s_load_dwordx8 s[80:87], s[0:1], 64
          s_load_dwordx2 s[88:89], s[0:1], 96""")
    stamp(0)
    if fixdur: a("s_memrealtime s[48:49]")
    if perm:
        a(f"s_mul_i32 s2, s2, {perm}\ns_lshr_b32 s{sT[0]}, s2, 8\ns_and_b32 s2, s2, 255")
        a(f"s_lshr_b32 s{sT[0]}, s2, 3\ns_xor_b32 s2, s2, s{sT[0]}")
    if hmap == 0: hb_code = f"s_lshl_b32 s{sHB}, s{sH}, 3\ns_add_u32 s{sHB}, s{sHB}, s{sX}"
    elif hmap == 1: hb_code = (f"s_and_b32 s{sHB}, s{sH}, 1\ns_lshr_b32 s{sH}, s{sH}, 1\ns_lshl_b32 s{sH}, s{sH}, 4\ns_add_u32 s{sHB}, s{sHB}, s{sH}\n"
                               f"s_lshl_b32 s{sT[0]}, s{sX}, 1\ns_add_u32 s{sHB}, s{sHB}, s{sT[0]}")
    elif hmap == 6:
        hb_code = (f"s_and_b32 s{sHB}, s{sH}, 1\ns_lshr_b32 s{sH}, s{sH}, 1\ns_lshl_b32 s{sH}, s{sH}, 3\ns_add_u32 s{sHB}, s{sHB}, s{sH}\n"
                   f"s_and_b32 s{sT[0]}, s{sX}, 3\ns_lshl_b32 s{sT[0]}, s{sT[0]}, 1\ns_add_u32 s{sHB}, s{sHB}, s{sT[0]}\n"
                   f"s_and_b32 s{sT[0]}, s{sX}, 4\ns_lshl_b32 s{sT[0]}, s{sT[0]}, 2\ns_add_u32 s{sHB}, s{sHB}, s{sT[0]}")
    else: hb_code = f"s_mov_b32 s{sHB}, s{sHA}"
    a(f"""v_lshrrev_b32 v{vT[0]}, 6, v0
          v_and_b32 v{vLane}, 63, v0
          v_readfirstlane_b32 s{sWave}, v{vT[0]}
          s_and_b32 s{sX}, s2, 7
          s_lshr_b32 s{sI}, s2, 3
          s_lshr_b32 s{sH}, s{sI}, 3
          s_lshl_b32 s{sT[0]}, s{sX}, 2
          s_add_u32 s{sHA}, s{sH}, s{sT[0]}
          {hb_code}
          s_bfe_u32 s{sB}, s{sI}, 0x10002
          s_and_b32 s{sS}, s{sI}, 3
          s_and_b32 s{sR}, s{sI}, 7
          s_and_b32 s{sW}, s{sWave}, 3
          v_and_b32 v{vC}, 15, v{vLane}
          v_lshrrev_b32 v{vG}, 4, v{vLane}""")
    if table:
        a(f"""s_waitcnt lgkmcnt(0)
              s_lshl_b32 s{sT[0]}, s2, 2
              {f"s_add_u32 s{sT[0]}, s{sT[0]}, s{sW}" if xorph else ""}
              {f"s_lshl_b32 s{sT[0]}, s{sT[0]}, 2" if xorph else ""}
              s_add_u32 s{sT[0]}, s{sT[0]}, 32768
              s_load_dword s98, s[{K_WS}:{K_WS+1}], s{sT[0]}
              s_waitcnt lgkmcnt(0)
              s_lshr_b32 s{sHB}, s98, 8
              s_and_b32 s{sHB}, s{sHB}, 31""")
    for k in range(8 if late2 else NSTUB):
        a(f"s_cmp_eq_u32 s{sWave}, {k if k < 8 else (k - 8 + 2)}\ns_cbranch_scc1 L_stub{k}")
        if k % 8 == 7 or k == NSTUB - 1: a.label(f"L_back{k // 8}")
    a(f"""s_cmp_lt_u32 s{sWave}, 4
          s_cbranch_scc0 L_stream""")

    a(f"s_cmp_lt_u32 s{sW}, 2\ns_cselect_b32 s{sH}, s{sHB}, s{sHA}")
    if nodup:
        a(f"s_lshl_b32 s{sT[0]}, s{sR}, 6")
    else:
        a(f"""s_and_b32 s{sT[0]}, s{sW}, 1
              s_lshl_b32 s{sT[0]}, s{sT[0]}, 9
              s_lshl_b32 s{sT[1]}, s{sR}, 6
              s_add_u32 s{sT[0]}, s{sT[0]}, s{sT[1]}""")
    a(f"""v_add_lshl_u32 v{vT[0]}, s{sT[0]}, v{vLane}, 1
          v_lshlrev_b32 v{vO0}, 17, v{vG}
          v_lshl_add_u32 v{vO0}, v{vC}, 4, v{vO0}
          s_lshl_b32 s{sOff}, s{sR}, 19
          s_lshl_b32 s{sT[0]}, s{sH}, 8
          s_add_u32 s{sOff}, s{sOff}, s{sT[0]}
          s_mov_b32 s14, 0x400000
          s_mov_b32 s15, 0x00020000
          s_mov_b32 s22, 2048
          s_mov_b32 s23, 0x00020000
          v_lshlrev_b32 v{vU[0]}, 2, v{vC}
          v_mov_b32 v{vU[1]}, 0
          ds_write_b32 v{vU[0]}, v{vU[1]} offset:{L_CNT}
          s_waitcnt lgkmcnt(0)
          s_cmp_lt_u32 s{sW}, 2
          s_cselect_b32 s12, s{K_BWQ}, s{K_AWQ}
          s_cselect_b32 s13, s{K_BWQ+1}, s{K_AWQ+1}
          s_cselect_b32 s20, s{K_BX}, s{K_AX}
          s_cselect_b32 s21, s{K_BX+1}, s{K_AX+1}""")
    epoch_load()
    first = 1 if nodup else 2
    if h2early: a(f"s_bitcmp0_b32 s{sW}, 0\ns_cbranch_scc1 L_h_go\ns_barrier")
    elif bar0: a(f"s_cmp_lt_u32 s{sW}, {first}\ns_cbranch_scc1 L_h_go\ns_barrier")
    else: a("s_barrier")
    if nodup: a(f"s_bitcmp1_b32 s{sW}, 0\ns_cbranch_scc1 L_helper2")
    a.label("L_h_go")
    a(f"buffer_load_ushort v{vP}, v{vT[0]}, s[20:23], 0 offen nt")
    if nodup: a(f"buffer_load_ushort v{vP+1}, v{vT[0]}, s[20:23], 0 offen offset:1024 nt")
    for k in range(16):
        r = slot(k & 1, k >> 1)
        a(f"buffer_load_dwordx4 v[{r}:{r+3}], v{vO0}, s[12:15], s{sOff} offen nt")
        if k < 15: a(f"s_add_u32 s{sOff}, s{sOff}, 0x2000")
    if h2early: a("s_barrier")
    elif bar0: a(f"s_cmp_lt_u32 s{sW}, {first}\ns_cbranch_scc0 L_helper2\ns_barrier")
    a("s_branch L_helper2")

    a.label("L_stream")
    if sprio: a(f"s_setprio {sprio}")
    if wb:
        assert pat == 8
        a(f"""s_lshl_b32 s{sT[0]}, s{sW}, {wb}
              v_lshlrev_b32 v{vAd}, 4, v{vLane}
              v_add_u32 v{vAd}, s{sT[0]}, v{vAd}
              v_add_u32 v{vAd+1}, 0x1000, v{vAd}""")
    elif bperm:
        if bperm == "table":
            a(f"s_waitcnt lgkmcnt(0)\ns_load_dwordx8 s[56:63], s[{K_WS}:{K_WS+1}], 49152\ns_waitcnt lgkmcnt(0)")
            sh = [f"s{56+k}" for k in range(7)]
        else: sh = [str(v) for v in bperm]
        a(f"""v_lshlrev_b32 v{vAd}, 4, v{vC}
              v_and_b32 v{vT[0]}, 1, v{vG}
              v_lshl_add_u32 v{vAd}, v{vT[0]}, {sh[0]}, v{vAd}
              v_lshrrev_b32 v{vT[0]}, 1, v{vG}
              v_lshl_add_u32 v{vAd}, v{vT[0]}, {sh[1]}, v{vAd}
              s_and_b32 s{sT[0]}, s{sW}, 1
              s_lshl_b32 s{sT[0]}, s{sT[0]}, {sh[2]}
              s_lshr_b32 s{sT[1]}, s{sW}, 1
              s_lshl_b32 s{sT[1]}, s{sT[1]}, {sh[3]}
              s_add_u32 s{sT[0]}, s{sT[0]}, s{sT[1]}
              v_add_u32 v{vAd}, s{sT[0]}, v{vAd}""")
        for b in range(3):
            a(f"s_lshl_b32 s{sT[0]}, 1, {sh[4+b]}")
            for k in range(1 << b): a(f"v_add_u32 v{vAd + (1 << b) + k}, s{sT[0]}, v{vAd + k}")
    else: addr_setup(pat)
    if table: ph_code = f"s_and_b32 s{sOff}, s98, 15\ns_lshl_b32 s{sOff}, s{sOff}, 15"
    elif phm == 0: ph_code = f"s_and_b32 s{sOff}, s{sI}, 15\ns_lshl_b32 s{sOff}, s{sOff}, 15"
    elif phm == 1: ph_code = f"s_lshl_b32 s{sOff}, s{sB}, 18"
    elif phm == 2: ph_code = f"s_lshl_b32 s{sOff}, s{sB}, {phb[0]}\ns_lshr_b32 s{sT[0]}, s{sI}, 4\ns_lshl_b32 s{sT[0]}, s{sT[0]}, {phb[1]}\ns_add_u32 s{sOff}, s{sOff}, s{sT[0]}"
    elif phm == 3: ph_code = f"s_lshl_b32 s{sOff}, s{sB}, 17"
    a(f"""s_mov_b32 s{sH}, s{sHB}
          s_lshl_b32 s{sU}, s{sB}, 5
          s_add_u32 s{sU}, s{sU}, s{sH}
          s_lshl_b32 s{sU}, s{sU}, 2
          s_add_u32 s{sU}, s{sU}, s{sS}
          s_lshl_b32 s{sU}, s{sU}, 19
          {ph_code}
          s_mov_b32 s14, 0x80000
          s_mov_b32 s15, 0x00020000""")
    if xorph:
        a(f"""s_and_b32 s{sMask}, s98, 0x3c
              s_lshl_b32 s{sMask}, s{sMask}, 13
              s_mov_b32 s{sCnt}, 0
              s_mov_b32 s{sOff}, s{sMask}
              s_and_b32 s{sT[0]}, s98, 3
              s_lshl_b32 s{sT[0]}, s{sT[0]}, 13""")
        for k in range(8 // pat): a(f"v_xor_b32 v{vAd+k}, s{sT[0]}, v{vAd+k}")
    a(f"""s_waitcnt lgkmcnt(0)
          s_add_u32 s12, s{K_BK}, s{sU}
          s_addc_u32 s13, s{K_BK+1}, 0""")
    epoch_load()
    issue(0, (0,) if g0free else TK, n0)
    for G in range(1, 4):
        if G <= latefree:
            a(f"s_cmp_lt_u32 s{sX}, 4\ns_cbranch_scc1 L_s_f{G}")
            call(f"L_ISSV{G}")
            a(f"s_branch L_s_g{G}\nL_s_f{G}:")
            iss(0, G)
            a.label(f"L_s_g{G}")
        else: iss(0, G)
    stamp(1)
    consts()
    epoch_tag()
    if not abl_noq: lds_wait(16, 1, "L_s_qwait", 1)
    a(f"""v_lshlrev_b32 v{vT[0]}, 4, v{vC}
          ds_read_b128 v[{vQ}:{vQ+3}], v{vT[0]} offset:{L_QB}
          s_waitcnt lgkmcnt(0)""")
    stamp(2)
    for c in range(3):
        for G in range(4):
            call(f"L_KB{G}"); iss(c + 1, G)
        a(f"v_mov_b32 v{vS+2*c}, v{vZ0}\nv_mov_b32 v{vS+2*c+1}, v{vZ1}")
    a(f"s_add_u32 s12, s{K_BV}, s{sU}\ns_addc_u32 s13, s{K_BV+1}, 0")
    call("L_KB0"); iss(4, 0); call("L_KB1")
    a("s_waitcnt vmcnt(16)")
    call("L_KB2"); iss(4, 1)
    a("s_waitcnt vmcnt(16)")
    call("L_KB3")
    a(f"v_mov_b32 v{vS+6}, v{vZ0}\nv_mov_b32 v{vS+7}, v{vZ1}")
    stamp(3)
    for k in range(0, 8, 2): round_scores(vS + k, vS + k + 1, vT[0])
    a(f"""v_max3_f32 v{vM}, v{vS}, v{vS+1}, v{vS+2}
          v_max3_f32 v{vM}, v{vM}, v{vS+3}, v{vS+4}
          v_max3_f32 v{vM}, v{vM}, v{vS+5}, v{vS+6}
          v_max_f32 v{vM}, v{vM}, v{vS+7}""")
    wave_allreduce("v_max_f32", vM, vT[0])
    iss(4, 2)
    for k in range(8): a(f"v_sub_f32 v{vS+k}, v{vS+k}, v{vM}")
    for k in range(8): a(f"v_mul_f32 v{vS+k}, s{sLog2e}, v{vS+k}")
    for k in range(8): a(f"v_exp_f32 v{vS+k}, v{vS+k}")
    a(f"v_add_f32 v{vL}, v{vS}, v{vS+1}")
    for k in range(2, 8): a(f"v_add_f32 v{vL}, v{vL}, v{vS+k}")
    if not fastend:
        for k in range(8): a(f"v_cvt_pk_bf16_f32 v{vS+k}, v{vS+k}, 0")
    wave_allreduce("v_add_f32", vL, vT[0])
    if fastend:
        a(f"v_rcp_f32 v{vT[0]}, v{vL}")
        for k in range(8): a(f"v_mul_f32 v{vS+k}, v{vS+k}, v{vT[0]}")
        for k in range(8): a(f"v_cvt_pk_bf16_f32 v{vS+k}, v{vS+k}, 0")
    a(f"""s_add_u32 s{sPub}, s{sH}, 32
          s_lshl_b32 s{sPub}, s{sPub}, 1
          s_add_u32 s{sPub}, s{sPub}, s{sB}
          s_lshl_b32 s{sPub}, s{sPub}, 2
          s_add_u32 s{sPub}, s{sPub}, s{sS}
          s_lshl_b32 s{sPubO}, s{sPub}, 11
          s_add_u32 s{sPubO}, s{sPubO}, {WS_PB - (256 << 11)}
          s_lshl_b32 s{sPub}, s{sPub}, 2
          s_add_u32 s{sPub}, s{sPub}, s{sW}
          s_mul_i32 s{sPub}, s{sPub}, {REC}
          s_add_u32 s{sPub}, s{sPub}, {WS_PART}
          s_mov_b32 s{sShift}, 6""")
    call("L_PUBML")
    iss(4, 3)
    for k in range(8): a(f"v_mov_b32 v{vAcc+k}, 0")
    stamp(4)
    a(f"""s_lshl_b32 s{sT[0]}, s{sW}, 4
          s_add_u32 s{sPubO}, s{sPubO}, s{sT[0]}
          v_lshrrev_b32 v{vU[3]}, 1, v{vG}
          v_lshlrev_b32 v{vU[3]}, 4, v{vU[3]}
          v_add_lshl_u32 v{vU[3]}, v{vU[3]}, v{vC}, 6""")
    issued, done = 4, 0
    def ws(k):
        if k % 2 == 0: a(f"v_mov_b32 v{vP + (k % 4) // 2}, v{vS + k // 2}")
        if k == midg: a("s_barrier")
        if k == 15:
            call("L_WS3L"); return
        a(f"s_waitcnt vmcnt({8 * (issued - k - 1)})")
        call(f"L_WS{k % 4}")
    while issued < 16:
        fast = issued >= 16 - (rmax if rank else nfast)
        want = (endlag if fast else lag)
        n = 0
        while done <= issued - 4 or (done < issued - want + 1 and n < 2 and done < issued - 1):
            ws(done); done += 1; n += 1
        left = 16 - issued
        if rank and left <= rmax:
            if left == rmax:
                a(f"""v_mov_b32 v{vU[0]}, {L_CNT + 20}
                      ds_read_b32 v{vU[1]}, v{vU[0]}
                      s_waitcnt lgkmcnt(0)
                      v_readfirstlane_b32 s{sHH}, v{vU[1]}
                      s_cmp_eq_u32 s{sHH}, 0
                      s_cselect_b32 s{sHH}, 19, s{sHH}""")
            a(f"s_cmp_ge_u32 s{sHH}, {16 + left}\ns_cbranch_scc1 L_s_v{left}")
            call(f"L_ISSK{issued % 4}")
            a(f"s_branch L_s_w{left}\nL_s_v{left}:")
            call(f"L_ISSV{issued % 4}")
            a.label(f"L_s_w{left}")
        else: call(f"L_ISS{'V' if (fast and two) else 'K'}{issued % 4}")
        issued += 1
        if ya == "flag" and issued == yag:
            a(f"v_mov_b32 v{vU[0]}, {L_CNT + 24}\nv_mov_b32 v{vU[1]}, 1\nds_write_b32 v{vU[0]}, v{vU[1]}")
    if early_bar: a("s_barrier")
    while done < 16:
        ws(done); done += 1
    stamp(5)
    if fastend:
        for e in range(4): a(f"v_permlane32_swap_b32 v{vAcc+e}, v{vAcc+e+4}")
        for e in range(4): a(f"v_add_f32 v{vAcc+e}, v{vAcc+e}, v{vAcc+e+4}")
        for e in range(2): a(f"v_permlane16_swap_b32 v{vAcc+e}, v{vAcc+e+2}")
        for e in range(2): a(f"v_add_f32 v{vAcc+e}, v{vAcc+e}, v{vAcc+e+2}")
        a(f"""v_cvt_pk_bf16_f32 v{vG4}, v{vAcc}, v{vAcc+1}
              v_cvt_pk_bf16_f32 v{vG4+2}, v{vAcc}, v{vAcc+1}
              v_permlane16_swap_b32 v{vG4}, v{vG4+2}
              s_mov_b32 exec_lo, 0xffff
              s_mov_b32 exec_hi, 0xffff
              buffer_store_dwordx4 v[{vG4}:{vG4+3}], v{vU[3]}, s[16:19], s{sPubO} offen {stf}
              s_mov_b64 exec, -1""")
    else:
        call("L_RED8")
        call("L_PUBPART")
    stamp(6)
    if not early_bar: a("s_barrier")
    if ya == "s0" and not abl_noA:
        a(f"""s_cmp_eq_u32 s{sW}, 0
              s_cbranch_scc0 L_exit
              s_mov_b32 s{sBr}, 0""")
        call("L_PUBY")
    a("s_branch L_exit")

    for nm, tp in ((("K", TK), ("V", TV)) if two else (("K", TK),)):
        for G in range(4):
            a.label(f"L_ISS{nm}{G}")
            issue(G, tp); ret()

    for G in range(4):
        a.label(f"L_KB{G}")
        for s in range(8): a(f"v_mov_b32 v{vt+s}, 0")
        for j in range(4):
            for s in range(8): a(f"v_dot2c_f32_bf16 v{vt+s}, v{slot(G, s)+j}, v{vQ+j}")
        for k in range(4):
            a(f"v_add_f32_dpp v{vt+k}, v{vt+k}, v{vt+k} row_mirror row_mask:0xf bank_mask:0x3")
        for k in range(4):
            a(f"v_add_f32_dpp v{vt+k}, v{vt+k+4}, v{vt+k+4} row_mirror row_mask:0xf bank_mask:0xc")
        for k in range(2):
            a(f"v_add_f32_dpp v{vt+k}, v{vt+k}, v{vt+k} row_half_mirror row_mask:0xf bank_mask:0x5")
        for k in range(2):
            a(f"v_add_f32_dpp v{vt+k}, v{vt+k+2}, v{vt+k+2} row_half_mirror row_mask:0xf bank_mask:0xa")
        for k in range(2):
            a(f"v_add_f32_dpp v{vt+k}, v{vt+k}, v{vt+k} quad_perm:[2,3,0,1] row_mask:0xf bank_mask:0xf")
        a(f"v_cndmask_b32 v{vt}, v{vt}, v{vt+1}, s[{sMc1}:{sMc1+1}]")
        if G % 2 == 0:
            a(f"v_add_f32_dpp v{vZA}, v{vt}, v{vt} quad_perm:[1,0,3,2] row_mask:0xf bank_mask:0xf")
        else:
            a(f"v_add_f32_dpp v{vt}, v{vt}, v{vt} quad_perm:[1,0,3,2] row_mask:0xf bank_mask:0xf")
            a(f"v_cndmask_b32 v{vZ0 + G // 2}, v{vZA}, v{vt}, s[{sMc0}:{sMc0+1}]")
        ret()

    for G, last in ((0, False), (1, False), (2, False), (3, False), (3, True)):
        a.label(f"L_WS{G}" + ("L" if last else ""))
        a("s_nop 1")
        for s in range(8):
            r = slot(G, s)
            a(f"v_mov_b32_dpp v{vLo}, v{vP + G // 2} row_newbcast:{2*s + (G & 1)} row_mask:0xf bank_mask:0xf")
            a(f"v_lshlrev_b32 v{vHi}, 16, v{vLo}")
            if last: a(f"s_waitcnt vmcnt({7-s})")
            for j in range(4):
                a(f"v_dot2c_f32_bf16 v{vAcc+2*j}, v{r+j}, v{vLo}")
                a(f"v_dot2c_f32_bf16 v{vAcc+2*j+1}, v{r+j}, v{vHi}")
        a("s_nop 1")
        ret()

    a.label("L_RED8")
    a("s_nop 1")
    for e in range(4): a(f"v_permlane32_swap_b32 v{vAcc+e}, v{vAcc+e+4}")
    for e in range(4): a(f"v_add_f32 v{vAcc+e}, v{vAcc+e}, v{vAcc+e+4}")
    for e in range(2): a(f"v_permlane16_swap_b32 v{vAcc+e}, v{vAcc+e+2}")
    for e in range(2): a(f"v_add_f32 v{vAcc+e}, v{vAcc+e}, v{vAcc+e+2}")
    ret()

    a.label("L_PUBML")
    a(f"""v_mov_b32 v{vG4}, v{vM}
          v_mov_b32 v{vG4+1}, s{sTag}
          v_mov_b32 v{vG4+2}, v{vL}
          v_mov_b32 v{vG4+3}, s{sTag+1}
          v_lshlrev_b32 v{vT[0]}, 4, v{vLane}
          s_mov_b64 exec, 0xff
          buffer_store_dwordx4 v[{vG4}:{vG4+3}], v{vT[0]}, s[16:19], s{sPub} offen offset:512 {stf}
          s_mov_b64 exec, -1
          s_nop 0""")
    ret()

    a.label("L_PUBPART")
    a(f"""v_rcp_f32 v{vT[0]}, v{vL}
          v_lshrrev_b32 v{vT[1]}, 1, v{vG}
          v_lshlrev_b32 v{vT[1]}, 4, v{vT[1]}
          v_add_lshl_u32 v{vT[1]}, v{vT[1]}, v{vC}, s{sShift}
          v_mul_f32 v{vAcc}, v{vAcc}, v{vT[0]}
          v_mul_f32 v{vAcc+1}, v{vAcc+1}, v{vT[0]}
          v_cvt_pk_bf16_f32 v{vG4}, v{vAcc}, v{vAcc+1}
          v_mov_b32 v{vG4+1}, s{sTag}
          v_mov_b32 v{vG4+2}, v{vG4}
          v_mov_b32 v{vG4+3}, s{sTag+1}
          v_permlane16_swap_b32 v{vG4}, v{vG4+2}
          s_mov_b32 exec_lo, 0xffff
          s_mov_b32 exec_hi, 0xffff
          buffer_store_dwordx4 v[{vG4}:{vG4+3}], v{vT[1]}, s[16:19], s{sPubO} offen {stf}
          s_mov_b64 exec, -1
          s_nop 0""")
    ret()

    a.label("L_PUBY")
    a(f"""s_lshl_b32 s{sT[0]}, s{sBr}, 11
          v_lshl_add_u32 v{vT[0]}, v{vLane}, 3, s{sT[0]}""")
    for k in range(4): a(f"ds_read_b64 v[{vt+2*k}:{vt+2*k+1}], v{vT[0]} offset:{L_YR + 512*k}")
    a(f"""s_lshl_b32 s{sT[0]}, s{sBr}, 3
          s_add_u32 s{sT[1]}, s{sT[0]}, s{sR}
          s_lshl_b32 s{sT[1]}, s{sT[1]}, 5
          s_add_u32 s{sT[1]}, s{sT[1]}, s{sHA}
          s_lshl_b32 s{sT[1]}, s{sT[1]}, 10
          s_add_u32 s{sT[1]}, s{sT[1]}, {WS_Y}
          v_lshlrev_b32 v{vT[1]}, 4, v{vLane}
          v_mov_b32 v{vG4+1}, s{sTag}
          v_mov_b32 v{vG4+3}, s{sTag+1}
          s_waitcnt lgkmcnt(0)
          v_add_f32 v{vG4}, v{vt}, v{vt+2}
          v_add_f32 v{vG4+2}, v{vt+1}, v{vt+3}
          v_add_f32 v{vt+4}, v{vt+4}, v{vt+6}
          v_add_f32 v{vt+5}, v{vt+5}, v{vt+7}
          v_add_f32 v{vG4}, v{vG4}, v{vt+4}
          v_add_f32 v{vG4+2}, v{vG4+2}, v{vt+5}
          buffer_store_dwordx4 v[{vG4}:{vG4+3}], v{vT[1]}, s[16:19], s{sT[1]} offen {yst}
          s_nop 0""")
    ret()

    a.label("L_QC")
    a(f"""v_lshlrev_b32 v{vO0}, 4, v{vLane}
          v_add_u32 v{vO1}, 0x1000, v{vO0}
          s_add_u32 s{sT[1]}, s{sT[1]}, {WS_QP}
          s_mov_b32 s{sSpin}, {SPIN}
          {"s_nop 0" if bhint else f"s_cmp_eq_u32 s{sBr}, 0"}
          {"s_nop 0" if bhint else "s_cbranch_scc0 L_QC_poll"}
          v_and_b32 v{vT[0]}, 7, v{vLane}
          v_lshlrev_b32 v{vT[0]}, 10, v{vT[0]}""")
    a.label("L_QC_hint")
    if narrow: a("s_mov_b64 exec, 0xff")
    a(f"""buffer_load_dwordx4 v[{vRing}:{vRing+3}], v{vT[0]}, s[16:19], s{sT[1]} offen offset:1008 {ldf}
          s_waitcnt vmcnt(0)""")
    tagcheck([vRing], "L_QC_hint", "L_QC_hok", True, narrow, 24)
    a.label("L_QC_poll")
    for p in range(8):
        r = vRing + 4 * p
        if qser and p >= qser: a(f"s_waitcnt vmcnt({qser - 1})")
        a(f"buffer_load_dwordx4 v[{r}:{r+3}], v{vO0 + (p >> 2)}, s[16:19], s{sT[1]} offen offset:{(p & 3) * 1024} {ldf}")
    a("s_waitcnt vmcnt(0)")
    tagcheck([vRing + 4 * p for p in range(8)], "L_QC_poll", "L_QC_ok", patience=24)
    for p in range(1, 8):
        a(f"v_add_f32 v{vRing}, v{vRing}, v{vRing+4*p}\nv_add_f32 v{vRing+2}, v{vRing+2}, v{vRing+4*p+2}")
    a(f"""v_cvt_pk_bf16_f32 v{vT[0]}, v{vRing}, v{vRing+2}
          v_lshl_add_u32 v{vT[1]}, v{vC}, 2, v{vG}
          v_lshlrev_b32 v{vT[1]}, 2, v{vT[1]}
          v_add_u32 v{vT[1]}, s{sT[2]}, v{vT[1]}
          ds_write_b32 v{vT[1]}, v{vT[0]}""")
    ret()

    a.label("L_helper2")
    consts()
    a(f"""s_mov_b32 s{sSel0}, 0x05040100
          s_mov_b32 s{sSel1}, 0x07060302
          v_lshlrev_b32 v{vO0}, 4, v{vLane}""")
    epoch_tag()
    if nodup: a(f"s_bitcmp1_b32 s{sW}, 0\ns_cbranch_scc1 L_h_qdone\ns_mov_b32 s{sHH}, 0")
    else: a(f"s_and_b32 s{sHH}, s{sW}, 1")
    a("s_waitcnt vmcnt(0)")
    stamp(1)
    a.label("L_h_qloop")
    for k in range(8): a(f"v_mov_b32 v{vAcc+k}, 0")
    call("L_WS0"); call("L_WS1"); call("L_RED8")
    a(f"""s_lshr_b32 s{sT[0]}, s{sW}, 1
          s_xor_b32 s{sT[0]}, s{sT[0]}, 1
          s_lshl_b32 s{sT[0]}, s{sT[0]}, 5
          s_add_u32 s{sT[0]}, s{sT[0]}, s{sH}
          s_lshl_b32 s{sT[0]}, s{sT[0]}, 1
          s_add_u32 s{sT[0]}, s{sT[0]}, s{sHH}
          s_lshl_b32 s{sT[0]}, s{sT[0]}, 3
          s_add_u32 s{sT[0]}, s{sT[0]}, s{sR}
          s_lshl_b32 s{sT[0]}, s{sT[0]}, 10
          s_add_u32 s{sT[0]}, s{sT[0]}, {WS_QP}
          v_mov_b32 v{vG4}, v{vAcc}
          v_mov_b32 v{vG4+1}, s{sTag}
          v_mov_b32 v{vG4+2}, v{vAcc+1}
          v_mov_b32 v{vG4+3}, s{sTag+1}
          """)
    if abl_Ast: a(f"s_cmp_eq_u32 s{sW}, 0\ns_cbranch_scc0 L_h_nost")
    a(f"buffer_store_dwordx4 v[{vG4}:{vG4+3}], v{vO0}, s[16:19], s{sT[0]} offen {stf}")
    if abl_dbl:
        a(f"s_add_u32 s{sT[0]}, s{sT[0]}, {8 << 20}\nbuffer_store_dwordx4 v[{vG4}:{vG4+3}], v{vO0}, s[16:19], s{sT[0]} offen {stf}")
    a.label("L_h_nost")
    if nodup:
        a(f"""v_mov_b32 v{vP}, v{vP+1}
              s_add_u32 s{sHH}, s{sHH}, 1
              s_cmp_lt_u32 s{sHH}, 2
              s_cbranch_scc1 L_h_qloop""")
    a.label("L_h_qdone")
    stamp(2)
    def qb_consume():
        a(f"""s_add_u32 s{sT[1]}, s{sHB}, 32
              s_lshl_b32 s{sT[1]}, s{sT[1]}, 1
              s_add_u32 s{sT[1]}, s{sT[1]}, s{sB}
              s_lshl_b32 s{sT[1]}, s{sT[1]}, 13
              s_mov_b32 s{sT[2]}, {L_QB}
              s_mov_b32 s{sBr}, 1""")
        call("L_QC")
        a(f"""v_mov_b32 v{vU[0]}, {L_CNT + 16}
              v_mov_b32 v{vU[1]}, 1
              ds_write_b32 v{vU[0]}, v{vU[1]}""")
    if not nodup or abl_noA:
        a(f"s_cmp_eq_u32 s{sW}, 0\ns_cbranch_scc0 L_h_A")
        qb_consume()
    a.label("L_h_A")
    if not nodup: stamp(3)
    if abl_noA: a(f"s_mov_b32 s{sBr}, 1\ns_branch L_FIN")
    a(f"""s_lshr_b32 s{sT[0]}, s{sI}, 4
          s_lshl_b32 s{sT[0]}, s{sT[0]}, 3
          s_add_u32 s{sT[0]}, s{sT[0]}, s{sX}
          s_lshl_b32 s{sOff}, s{sT[0]}, 21
          s_and_b32 s{sT[0]}, s{sI}, 15
          s_lshl_b32 s{sT[0]}, s{sT[0]}, 15
          s_add_u32 s{sOff}, s{sOff}, s{sT[0]}
          s_add_u32 s{sOff}, s{sOff}, {6144*256}
          s_mov_b32 s14, 0x2000000""")
    addr_setup(pata, wxa)
    a(f"""s_mov_b32 s12, s{K_AK}
          s_mov_b32 s13, s{K_AK+1}
          s_mov_b32 s20, s{K_AV}
          s_mov_b32 s21, s{K_AV+1}
          s_mov_b32 s22, 0x2000000""")
    order = [(G, s) for s in range(8) for G in (2, 3)] if kvi else [(G, s) for G in (2, 3) for s in range(8)]
    for G, s in ([] if abl_Akv else order):
        r = slot(G, s)
        if TH: a(f"s_waitcnt vmcnt({TH - 1})")
        va, imm = addr(s, pata)
        a(f"buffer_load_dwordx4 v[{r}:{r+3}], v{va}, s[{12 if G == 2 else 20}:{15 if G == 2 else 23}], s{sOff} offen offset:{imm} nt")
    if late2:
        for k in range(8, NSTUB): a(f"s_cmp_eq_u32 s{sW}, {(k - 8 + 2) % 4}\ns_cbranch_scc1 L_stub{k}")
        a.label("L_back1")
    if nodup:
        a(f"s_cmp_eq_u32 s{sW}, 1\ns_cbranch_scc0 L_h_A2")
        qb_consume()
        a.label("L_h_A2")
        stamp(3)
    a(f"""s_mov_b32 s{sBr}, 0
          s_lshl_b32 s{sU}, s{sX}, 2
          s_add_u32 s{sU}, s{sU}, s{sW}
          s_lshl_b32 s{sU}, s{sU}, 1
          s_lshr_b32 s{sT[0]}, s{sI}, 4
          s_add_u32 s{sU}, s{sU}, s{sT[0]}
          s_lshl_b32 s{sT[1]}, s{sU}, 13
          s_lshl_b32 s{sT[2]}, s{sW}, 8
          s_add_u32 s{sT[2]}, s{sT[2]}, {L_QA}""")
    if not abl_Apoll: call("L_QC")
    else: a("s_waitcnt vmcnt(0)")
    helper_sync(0, "L_hs0")
    a(f"s_mov_b32 s{sHH}, 0")
    if abl_Acomp: a("s_branch L_A_done")
    a.label("L_A_loop")
    a(f"""s_lshl_b32 s{sT[0]}, s{sHH}, 8
          v_lshlrev_b32 v{vT[0]}, 4, v{vC}
          v_add_u32 v{vT[0]}, s{sT[0]}, v{vT[0]}
          ds_read_b128 v[{vQ}:{vQ+3}], v{vT[0]} offset:{L_QA}
          s_waitcnt lgkmcnt(0)""")
    call("L_KB2")
    a(f"v_mov_b32 v{vS+1}, v{vZA}\nv_mov_b32 v{vS}, v{vZA}")
    round_scores(vS, vS + 1, vT[0])
    a(f"v_mov_b32 v{vM}, v{vS}")
    wave_allreduce("v_max_f32", vM, vT[0])
    a(f"""v_sub_f32 v{vS}, v{vS}, v{vM}
          v_mul_f32 v{vS}, s{sLog2e}, v{vS}
          v_exp_f32 v{vS}, v{vS}
          v_mul_f32 v{vL}, 0.5, v{vS}
          v_cvt_pk_bf16_f32 v{vP+1}, v{vS}, 0""")
    wave_allreduce("v_add_f32", vL, vT[0])
    for k in range(8): a(f"v_mov_b32 v{vAcc+k}, 0")
    call("L_WS3L"); call("L_RED8")
    a(f"""s_lshl_b32 s{sT[0]}, s{sHH}, 2
          s_add_u32 s{sT[0]}, s{sT[0]}, s{sW}
          s_lshl_b32 s{sT[1]}, s{sT[0]}, 9
          s_lshl_b32 s{sT[0]}, s{sT[0]}, 3
          v_lshlrev_b32 v{vT[0]}, 3, v{vLane}
          v_add_u32 v{vT[0]}, s{sT[1]}, v{vT[0]}
          v_mov_b32 v{vT[1]}, s{sT[0]}
          ds_write_b64 v{vT[0]}, v[{vAcc}:{vAcc+1}] offset:{L_OA}
          s_mov_b64 exec, 1
          ds_write_b64 v{vT[1]}, v[{vM}:{vM+1}] offset:{L_MLA}
          s_mov_b64 exec, -1
          s_add_u32 s{sHH}, s{sHH}, 1
          s_cmp_lt_u32 s{sHH}, 4
          s_cbranch_scc1 L_A_loop""")
    a.label("L_A_done")
    helper_sync(4, "L_hs1")
    a(f"""s_lshl_b32 s{sT[0]}, s{sW}, 5
          v_mov_b32 v{vT[1]}, s{sT[0]}
          s_lshl_b32 s{sT[1]}, s{sW}, 11
          v_lshlrev_b32 v{vT[0]}, 3, v{vLane}
          v_add_u32 v{vT[0]}, s{sT[1]}, v{vT[0]}
          ds_read_b128 v[{R0}:{R0+3}], v{vT[1]} offset:{L_MLA}
          ds_read_b128 v[{R0+4}:{R0+7}], v{vT[1]} offset:{L_MLA+16}""")
    for k in range(4): a(f"ds_read_b64 v[{R0+8+2*k}:{R0+9+2*k}], v{vT[0]} offset:{L_OA + 512*k}")
    a(f"""s_waitcnt lgkmcnt(0)
          v_max3_f32 v{vM}, v{R0}, v{R0+2}, v{R0+4}
          v_max_f32 v{vM}, v{vM}, v{R0+6}""")
    for k in range(4): a(f"v_sub_f32 v{R0+2*k}, v{R0+2*k}, v{vM}")
    for k in range(4): a(f"v_mul_f32 v{R0+2*k}, s{sLog2e}, v{R0+2*k}")
    for k in range(4): a(f"v_exp_f32 v{R0+2*k}, v{R0+2*k}")
    a(f"""v_mul_f32 v{vL}, v{R0}, v{R0+1}
          v_mul_f32 v{vAcc}, v{R0}, v{R0+8}
          v_mul_f32 v{vAcc+1}, v{R0}, v{R0+9}""")
    for k in range(1, 4):
        a(f"""v_fmac_f32 v{vL}, v{R0+2*k}, v{R0+2*k+1}
              v_fmac_f32 v{vAcc}, v{R0+2*k}, v{R0+8+2*k}
              v_fmac_f32 v{vAcc+1}, v{R0+2*k}, v{R0+9+2*k}""")
    a(f"""s_lshl_b32 s{sPub}, s{sU}, 4
          s_and_b32 s{sT[0]}, s{sI}, 15
          s_add_u32 s{sPub}, s{sPub}, s{sT[0]}
          s_mul_i32 s{sPub}, s{sPub}, {REC}
          s_add_u32 s{sPub}, s{sPub}, {WS_PART}
          s_mov_b32 s{sPubO}, s{sPub}
          s_mov_b32 s{sShift}, 4""")
    if not abl_Ast: call("L_PUBPART"); call("L_PUBML")
    stamp(4)

    a.label("L_FIN")
    a(f"""s_cmp_eq_u32 s{sBr}, 0
          s_cselect_b32 s12, s{K_AWO}, s{K_BWO}
          s_cselect_b32 s13, s{K_AWO+1}, s{K_BWO+1}
          s_cselect_b32 s{sH}, s{sHA}, s{sHB}
          s_mov_b32 s14, 0x400000
          v_lshlrev_b32 v{vO0}, 13, v{vG}
          v_lshl_add_u32 v{vO0}, v{vC}, 3, v{vO0}
          v_add_u32 v{vO1}, 0x1000, v{vO0}
          s_lshl_b32 s{sOff}, s{sH}, 2
          s_add_u32 s{sOff}, s{sOff}, s{sW}
          s_lshl_b32 s{sOff}, s{sOff}, 15
          s_lshl_b32 s{sT[0]}, s{sR}, 7
          s_add_u32 s{sOff}, s{sOff}, s{sT[0]}""")
    PB = vRing
    vA0 = vLo
    a(f"""s_lshl_b32 s{sU}, s{sBr}, 5
          s_add_u32 s{sU}, s{sU}, s{sH}
          s_mul_i32 s{sT[1]}, s{sU}, {32 * REC}
          s_add_u32 s{sT[1]}, s{sT[1]}, {WS_PART}
          v_and_b32 v{vT[2]}, 31, v{vLane}
          v_mul_u32_u24 v{vT[3]}, {REC}, v{vT[2]}
          s_mov_b32 s{sSpin}, {SPIN}
          s_cmp_eq_u32 s{sBr}, 0
          s_cbranch_scc0 L_F_addrB
          s_lshl_b32 s{sT[0]}, s{sW}, 6
          s_add_u32 s{sP[0]}, s{sT[1]}, s{sT[0]}
          s_add_u32 s{sP[1]}, s{sP[0]}, 256
          s_add_u32 s{sP[2]}, s{sP[0]}, {16 * REC}
          s_add_u32 s{sP[3]}, s{sP[0]}, {16 * REC + 256}
          v_mul_u32_u24 v{vA0}, {REC}, v{vC}
          v_lshl_add_u32 v{vA0}, v{vG}, 4, v{vA0}""")
    if abl_Apoll: a(f"s_mov_b32 s{sBr}, 1\ns_branch L_FIN")
    a("s_branch L_F_ml0")
    a.label("L_F_addrB")
    a(f"""s_lshl_b32 s{sP[0]}, s{sH}, 14
          s_lshl_b32 s{sT[0]}, s{sW}, 8
          s_add_u32 s{sP[0]}, s{sP[0]}, s{sT[0]}
          s_add_u32 s{sP[0]}, s{sP[0]}, {WS_PB}
          s_add_u32 s{sP[1]}, s{sP[0]}, 1024
          s_add_u32 s{sP[2]}, s{sP[0]}, 8192
          s_add_u32 s{sP[3]}, s{sP[0]}, 9216
          v_lshrrev_b32 v{vA0}, 2, v{vC}
          v_lshlrev_b32 v{vA0}, 11, v{vA0}
          v_and_b32 v{vT[0]}, 3, v{vC}
          v_lshl_add_u32 v{vA0}, v{vT[0]}, 4, v{vA0}
          v_lshl_add_u32 v{vA0}, v{vG}, 6, v{vA0}
          s_waitcnt lgkmcnt(0)""")
    stamp(6)
    a("s_barrier")
    if ya == "mid" and not abl_noA:
        a(f"""s_cmp_eq_u32 s{sW}, 3
              s_cbranch_scc0 L_F_noya
              s_mov_b32 s{sT[3]}, s{sT[1]}
              s_mov_b32 s{sBr}, 0""")
        call("L_PUBY")
        a(f"s_mov_b32 s{sBr}, 1\ns_mov_b32 s{sT[1]}, s{sT[3]}\nL_F_noya:")
    if rank:
        a(f"s_cmp_eq_u32 s{sW}, 0\ns_cbranch_scc0 L_F_ml0")
        if rank == "m":
            a(f"""s_lshl_b32 s{sT[0]}, s{sX}, 12
                  s_add_u32 s{sT[0]}, s{sT[0]}, {WS_MK}
                  v_and_b32 v{vU[0]}, 31, v{vLane}
                  v_lshlrev_b32 v{vU[0]}, 7, v{vU[0]}
                  v_add_u32 v{vU[1]}, {WS_GM}, v{vU[0]}
                  v_add_u32 v{vU[0]}, s{sT[0]}, v{vU[0]}
                  s_lshl_b32 s{sT[3]}, s{sI}, 7
                  s_add_u32 s{sT[3]}, s{sT[3]}, s{sT[0]}
                  v_mov_b32 v{vG4+2}, s{sTag}
                  v_mov_b32 v{vG4+3}, s{sTag+1}""")
            if gw: a(f"s_mov_b32 exec_lo, 0\nv_mov_b32 v{vU[0]}, v{vU[1]}\ns_mov_b32 exec_lo, -1")
            else: a("s_mov_b32 exec_hi, 0")
            if not gdelay: a(f"buffer_load_dword v{vG4}, v{vU[0]}, s[16:19], 0 offen {gld}")
            a(f"""v_lshlrev_b32 v{vU[1]}, 3, v{vLane}
                  s_mov_b64 exec, 0xffff
                  buffer_store_dwordx2 v[{vG4+2}:{vG4+3}], v{vU[1]}, s[16:19], s{sT[3]} offen""")
            if gw:
                a(f"""s_cmp_eq_u32 s{sR}, 5
                      s_cbranch_scc0 L_F_nogm
                      s_lshl_b32 s{sT[3]}, s{sHA}, 7
                      s_add_u32 s{sT[3]}, s{sT[3]}, {WS_GM}
                      buffer_store_dwordx2 v[{vG4+2}:{vG4+3}], v{vU[1]}, s[16:19], s{sT[3]} offen sc1
                      L_F_nogm:""")
            a("s_mov_b64 exec, -1")
            if gdelay: a(f"s_sleep {gdelay}\nbuffer_load_dword v{vG4}, v{vU[0]}, s[16:19], 0 offen {gld}")
            a(f"""s_waitcnt vmcnt(0)
                  v_cmp_eq_u32 vcc, s{sTag}, v{vG4}
                  s_nop 1
                  s_bcnt1_i32_b32 s{sT[0]}, vcc_lo""")
            if gw:
                a(f"s_bcnt1_i32_b32 s{sT[3]}, vcc_hi")
                if diag: a(f"s_mov_b32 s56, s{sT[3]}\ns_mov_b32 s57, 0")
                a(f"""s_mul_i32 s{sT[3]}, s{sT[3]}, {gw}
                      s_mul_i32 s{sT[0]}, s{sT[0]}, {4 - gw}
                      s_add_u32 s{sT[0]}, s{sT[0]}, s{sT[3]}
                      s_lshl_b32 s{sT[0]}, s{sT[0]}, 1
                      s_add_u32 s{sT[0]}, s{sT[0]}, {gbias}
                      s_min_u32 s{sT[0]}, s{sT[0]}, 255""")
            else: a(f"s_lshl_b32 s{sT[0]}, s{sT[0]}, 3\ns_min_u32 s{sT[0]}, s{sT[0]}, 255")
        elif rank == "s":
            a(f"""s_mov_b32 s{sT[0]}, 1
                  s_atomic_add s{sT[0]}, s[{K_DBG}:{K_DBG+1}], 0 glc
                  s_waitcnt lgkmcnt(0)""")
        else:
            srd(20, K_DBG, 256)
            a(f"""v_mov_b32 v{vU[0]}, 0
                  v_mov_b32 v{vU[1]}, 1
                  s_mov_b64 exec, 1
                  buffer_atomic_add v{vU[1]}, v{vU[0]}, s[20:23], 0 offen sc0
                  s_mov_b64 exec, -1
                  s_waitcnt vmcnt(0)
                  v_readfirstlane_b32 s{sT[0]}, v{vU[1]}""")
        if diag: a(f"s_mov_b32 s58, s{sT[0]}\ns_mov_b32 s59, 0")
        if rtab == "table":
            a(f"s_load_dword s{sT[3]}, s[{K_WS}:{K_WS+1}], 49152\ns_waitcnt lgkmcnt(0)")
        else: a(f"s_mov_b32 s{sT[3]}, {rtab}")
        a(f"""s_lshr_b32 s{sT[0]}, s{sT[0]}, 3
              s_and_b32 s{sT[0]}, s{sT[0]}, 28
              s_lshr_b32 s{sT[0]}, s{sT[3]}, s{sT[0]}
              s_and_b32 s{sT[0]}, s{sT[0]}, 15
              s_add_u32 s{sT[0]}, s{sT[0]}, 16
              s_lshr_b32 s{sT[3]}, s{sX}, 2
              s_mul_i32 s{sT[3]}, s{sT[3]}, {xb}
              s_add_u32 s{sT[0]}, s{sT[0]}, s{sT[3]}
              v_mov_b32 v{vU[0]}, {L_CNT + 20}
              v_mov_b32 v{vU[1]}, s{sT[0]}
              ds_write_b32 v{vU[0]}, v{vU[1]}""")
    def wo_loads():
        for e in range(8):
            a(f"buffer_load_dwordx2 v[{vRaw+2*e}:{vRaw+2*e+1}], v{vO0 + (e >> 2)}, s[12:15], s{sOff} offen offset:{(e & 3) * 1024} nt")
    def part_loads():
        for k in range(4):
            r = PB + 4 * k
            a(f"buffer_load_dwordx4 v[{r}:{r+3}], v{vA0}, s[16:19], s{sP[k]} offen {pld}")
    def perms():
        for ct in range(4):
            for k, (ea, eb) in enumerate(((0, 1), (4, 5), (2, 3), (6, 7))):
                a(f"v_perm_b32 v{vBop+4*ct+k}, v{vRaw+2*eb+(ct>>1)}, v{vRaw+2*ea+(ct>>1)}, s{sSel0 + (ct & 1)}")
    a.label("L_F_ml0")
    if wo_at == "mid": wo_loads()
    if wo_at == "touch":
        a(f"s_mov_b64 exec, 1\nbuffer_load_dword v{vRaw}, v{vO0}, s[12:15], s{sOff} offen nt\ns_mov_b64 exec, -1")
    a.label("L_F_mlpoll")
    if narrow: a("s_mov_b32 exec_hi, 0")
    a(f"""buffer_load_dwordx4 v[{vG4}:{vG4+3}], v{vT[3]}, s[16:19], s{sT[1]} offen offset:512 {ldf}
          s_waitcnt vmcnt(0)""")
    tagcheck([vG4], "L_F_mlpoll", "L_F_mlok", "always", narrow, 24)
    if wo_at == "mid": perms()
    a(f"v_mov_b32 v{vM}, v{vG4}")
    row_allreduce("v_max_f32", [vM])
    a(f"""v_sub_f32 v{vG4}, v{vG4}, v{vM}
          v_mul_f32 v{vG4}, s{sLog2e}, v{vG4}
          v_exp_f32 v{vG4}, v{vG4}
          v_mul_f32 v{vG4}, v{vG4}, v{vG4+2}
          v_mov_b32 v{vL}, v{vG4}""")
    row_allreduce("v_add_f32", [vL])
    a(f"""v_rcp_f32 v{vL}, v{vL}
          s_lshl_b32 s{sT[0]}, s{sW}, 7
          v_lshl_add_u32 v{vT[0]}, v{vT[2]}, 2, s{sT[0]}
          v_mul_f32 v{vG4}, v{vG4}, v{vL}
          v_lshl_add_u32 v{vT[1]}, v{vG}, 4, s{sT[0]}
          s_mov_b32 exec_hi, 0
          ds_write_b32 v{vT[0]}, v{vG4} offset:{L_WT}
          s_mov_b32 exec_hi, -1
          ds_read_b128 v[{vW}:{vW+3}], v{vT[1]} offset:{L_WT}
          ds_read_b128 v[{vW+4}:{vW+7}], v{vT[1]} offset:{L_WT+64}
          s_lshl_b32 s{sT[0]}, s{sBr}, 2
          s_add_u32 s{sT[0]}, s{sT[0]}, s{sW}
          s_lshl_b32 s{sT[0]}, s{sT[0]}, 9
          v_lshrrev_b32 v{vT[0]}, 1, v{vG}
          v_lshlrev_b32 v{vT[0]}, 5, v{vT[0]}
          v_and_b32 v{vT[1]}, 1, v{vG}
          v_lshl_add_u32 v{vT[1]}, v{vC}, 1, v{vT[1]}
          v_add_lshl_u32 v{vT[0]}, v{vT[0]}, v{vT[1]}, 3
          v_add_u32 v{vT[0]}, s{sT[0]}, v{vT[0]}
          v_mov_b32 v{vHi}, v{vT[0]}
          s_mov_b32 s{sSpin}, {SPIN}
          """)
    if fastf2:
        a(f"""v_mov_b32 v{vS}, {L_CNT + 8}
              v_mov_b32 v{vS+1}, 1
              v_lshlrev_b32 v{vS+2}, 3, v{vLane}
              v_lshlrev_b32 v{vS+3}, 4, v{vLane}
              v_lshrrev_b32 v{vS+5}, 5, v{vLane}
              v_lshlrev_b32 v{vS+4}, 10, v{vT[2]}
              v_lshl_add_u32 v{vS+4}, v{vS+5}, 4, v{vS+4}
              v_lshlrev_b32 v{vS+5}, 2, v{vS+5}
              v_bfe_u32 v{vS+6}, v{vLane}, 3, 1
              v_lshl_add_u32 v{vS+5}, v{vS+6}, 10, v{vS+5}
              v_bfe_u32 v{vS+6}, v{vLane}, 2, 1
              v_lshl_add_u32 v{vS+5}, v{vS+6}, 1, v{vS+5}
              v_mov_b32 v{vQ+1}, s{sTag}
              v_mov_b32 v{vQ+3}, s{sTag+1}
              s_add_u32 s98, s{sR}, 8
              s_lshl_b32 s98, s98, 5
              s_add_u32 s98, s98, s{sHA}
              s_lshl_b32 s98, s98, 10
              s_add_u32 s98, s98, {WS_Y}
              s_lshl_b32 s99, s{sX}, 15
              s_lshl_b32 s{sT[0]}, s{sI}, 5
              s_add_u32 s99, s99, s{sT[0]}
              s_add_u32 s99, s99, {WS_Y}
              s_add_u32 s{sT[3]}, s99, {8 << 15}
              s_lshr_b32 s{sT[2]}, s{sI}, 4
              s_lshl_b32 s{sT[2]}, s{sT[2]}, 11
              s_lshl_b32 s{sT[0]}, s{sX}, 7
              s_add_u32 s{sT[2]}, s{sT[2]}, s{sT[0]}
              s_and_b32 s{sT[0]}, s{sI}, 15
              s_lshl_b32 s{sT[0]}, s{sT[0]}, 3
              s_add_u32 s{sT[2]}, s{sT[2]}, s{sT[0]}""")
        srd(20, K_OUT, 4096)
    a(f"s_cmp_eq_u32 s{sBr}, 0\ns_cbranch_scc1 {'L_F_goA' if aser else 'L_F_go'}")
    if ya == "flag":
        a(f"s_cmp_eq_u32 s{sW}, 3\ns_cbranch_scc0 L_F_b2")
        lds_wait(24, 1, "L_F_yaw", 4)
        a(f"s_mov_b32 s{sBr}, 0")
        call("L_PUBY")
        a(f"s_mov_b32 s{sBr}, 1\ns_mov_b32 s{sSpin}, {SPIN}\nL_F_b2:")
    a("s_barrier")
    tstamp(1)
    if abl_notail: a("s_branch L_exit")
    if ya == "h3" and not abl_noA:
        a(f"""s_cmp_eq_u32 s{sW}, 3
              s_cbranch_scc0 L_F_go
              s_mov_b32 s{sBr}, 0""")
        call("L_PUBY")
        a(f"s_mov_b32 s{sBr}, 1")
    a.label("L_F_go")
    if wo_at == "mid":
        a("s_mov_b64 vcc, -1")
    else:
        wo_loads(); part_loads()
        a("s_waitcnt vmcnt(4)")
        tstamp(2)
        perms()
        a("s_branch L_F_pwait")
    a.label("L_F_ppoll")
    if masked: a("s_mov_b64 exec, vcc")
    part_loads()
    if masked: a("s_mov_b64 exec, -1")
    a.label("L_F_pwait")
    a("s_waitcnt vmcnt(0)")
    tagcheck([PB + 4 * k for k in range(4)], "L_F_ppoll", "L_F_pok", True)
    tstamp(3)
    for b in range(2):
        a(f"v_mov_b32 v{PB+8*b+1}, v{PB+8*b+4}\nv_mov_b32 v{PB+8*b+3}, v{PB+8*b+6}")
    if fastf2:
        D = vRing + 32
        a("s_waitcnt lgkmcnt(0)")
        def fm(k):
            b = k // 4; d = D + 4 * k
            a(f"v_mul_f32 v{vAcc+k}, v{vW+4*b}, v{d}")
            for i in range(1, 4): a(f"v_fmac_f32 v{vAcc+k}, v{vW+4*b+i}, v{d+i}")
        order = [0, 4, 1, 5, 2, 6, 3, 7]
        for n, k in enumerate(order):
            b, ct = k // 4, k % 4; d = D + 4 * k
            a(f"v_mfma_f32_16x16x32_bf16 v[{d}:{d+3}], v[{PB+8*b}:{PB+8*b+3}], v[{vBop+4*ct}:{vBop+4*ct+3}], 0")
            if n >= f2lag: fm(order[n - f2lag])
        for n in range(8 - f2lag, 8): fm(order[n])
        for e in range(4): a(f"v_permlane32_swap_b32 v{vAcc+e}, v{vAcc+e+4}")
        for e in range(4): a(f"v_add_f32 v{vAcc+e}, v{vAcc+e}, v{vAcc+e+4}")
        for e in range(2): a(f"v_permlane16_swap_b32 v{vAcc+e}, v{vAcc+e+2}")
        for e in range(2): a(f"v_add_f32 v{vAcc+e}, v{vAcc+e}, v{vAcc+e+2}")
        a(f"""ds_write_b64 v{vHi}, v[{vAcc}:{vAcc+1}] offset:{L_YR}
              s_cmp_eq_u32 s{sBr}, 0
              s_mov_b32 s{sBr}, 1""")
        if diag:
            a("s_cbranch_scc0 L_F_tail"); stamp(5); a("s_branch L_FIN"); a.label("L_F_tail")
        else:
            a("s_cbranch_scc1 L_FIN")
        a(f"""s_mov_b64 exec, 1
              ds_add_rtn_u32 v{vU[2]}, v{vS}, v{vS+1}
              s_mov_b64 exec, -1""")
        for k in range(4): a(f"ds_read_b64 v[{vt+2*k}:{vt+2*k+1}], v{vS+2} offset:{L_YR + 2048 + 512*k}")
        a(f"""s_mov_b32 s{sSpin}, {SPIN}
              s_mov_b64 vcc, -1
              s_waitcnt lgkmcnt(0)
              v_readfirstlane_b32 s{sT[0]}, v{vU[2]}
              v_add_f32 v{vQ}, v{vt}, v{vt+2}
              v_add_f32 v{vQ+2}, v{vt+1}, v{vt+3}
              v_add_f32 v{vt+4}, v{vt+4}, v{vt+6}
              v_add_f32 v{vt+5}, v{vt+5}, v{vt+7}
              s_cmp_eq_u32 s{sT[0]}, 3
              s_cbranch_scc0 {"L_F_nl" if f3first else "L_exit"}
              v_add_f32 v{vQ}, v{vQ}, v{vt+4}
              v_add_f32 v{vQ+2}, v{vQ+2}, v{vt+5}
              buffer_store_dwordx4 v[{vQ}:{vQ+3}], v{vS+3}, s[16:19], s98 offen {yst}""")
        tstamp(4)
        if f3first:
            a(f"s_branch L_exit\nL_F_nl:\ns_cmp_eq_u32 s{sT[0]}, {f3first - 1}\ns_cbranch_scc0 L_exit")
        a.label("L_F_ypoll")
        a("s_mov_b64 exec, vcc")
        a(f"buffer_load_dwordx4 v[{R0+4}:{R0+7}], v{vS+4}, s[16:19], s{sT[3]} offen {yld}")
        if not abl_noA: a(f"buffer_load_dwordx4 v[{R0}:{R0+3}], v{vS+4}, s[16:19], s99 offen {yld}")
        a("s_mov_b64 exec, -1\ns_waitcnt vmcnt(0)")
        tagcheck([R0 + 4] if abl_noA else [R0, R0 + 4], "L_F_ypoll", "L_F_yok")
        tstamp(5)
        a(f"""v_add_f32_dpp v{R0}, v{R0}, v{R0} row_mirror row_mask:0xf bank_mask:0x3
              v_add_f32_dpp v{R0+2}, v{R0+2}, v{R0+2} row_mirror row_mask:0xf bank_mask:0x3
              v_add_f32_dpp v{R0}, v{R0+4}, v{R0+4} row_mirror row_mask:0xf bank_mask:0xc
              v_add_f32_dpp v{R0+2}, v{R0+6}, v{R0+6} row_mirror row_mask:0xf bank_mask:0xc
              v_add_f32_dpp v{R0}, v{R0}, v{R0} row_half_mirror row_mask:0xf bank_mask:0x5
              v_add_f32_dpp v{R0}, v{R0+2}, v{R0+2} row_half_mirror row_mask:0xf bank_mask:0xa
              v_add_f32_dpp v{R0}, v{R0}, v{R0} quad_perm:[2,3,0,1] row_mask:0xf bank_mask:0xf
              v_add_f32_dpp v{R0}, v{R0}, v{R0} quad_perm:[1,0,3,2] row_mask:0xf bank_mask:0xf
              v_mov_b32 v{R0+1}, v{R0}
              v_permlane16_swap_b32 v{R0}, v{R0+1}
              v_add_f32 v{R0}, v{R0}, v{R0+1}
              v_cvt_pk_bf16_f32 v{R0}, v{R0}, v{R0}
              s_mov_b32 exec_lo, 0x1111
              s_mov_b32 exec_hi, 0x1111
              buffer_store_short v{R0}, v{vS+5}, s[20:23], s{sT[2]} offen
              s_mov_b64 exec, -1""")
    else:
        D = vRing + 32
        for b in range(2):
            for ct in range(4):
                d = D + (b * 4 + ct) * 4
                a(f"v_mfma_f32_16x16x32_bf16 v[{d}:{d+3}], v[{PB+8*b}:{PB+8*b+3}], v[{vBop+4*ct}:{vBop+4*ct+3}], 0")
        a("s_waitcnt lgkmcnt(0)")
        for i in range(4):
            for b in range(2):
                for ct in range(4):
                    d = D + (b * 4 + ct) * 4
                    if i == 0: a(f"v_mul_f32 v{vAcc+b*4+ct}, v{vW+4*b}, v{d}")
                    else: a(f"v_fmac_f32 v{vAcc+b*4+ct}, v{vW+4*b+i}, v{d+i}")
        call("L_RED8")
        a(f"""ds_write_b64 v{vHi}, v[{vAcc}:{vAcc+1}] offset:{L_YR}
              s_cmp_eq_u32 s{sBr}, 0
              s_mov_b32 s{sBr}, 1""")
        if diag:
            a("s_cbranch_scc0 L_F_tail"); stamp(5); a("s_branch L_FIN"); a.label("L_F_tail")
        else:
            a("s_cbranch_scc1 L_FIN")
        a(f"""v_mov_b32 v{vU[0]}, {L_CNT + 8}
              v_mov_b32 v{vU[1]}, 1
              s_mov_b64 exec, 1
              ds_add_rtn_u32 v{vU[2]}, v{vU[0]}, v{vU[1]}
              s_mov_b64 exec, -1
              s_waitcnt lgkmcnt(0)
              v_readfirstlane_b32 s{sT[0]}, v{vU[2]}
              s_cmp_eq_u32 s{sT[0]}, 3
              s_cbranch_scc0 L_exit""")
        call("L_PUBY")
        if ya == "last" and not abl_noA:
            a(f"s_mov_b32 s{sBr}, 0"); call("L_PUBY"); a(f"s_mov_b32 s{sBr}, 1")
        tstamp(4)
        a(f"""s_lshl_b32 s{sT[1]}, s{sX}, 15
              s_lshl_b32 s{sT[0]}, s{sI}, 5
              s_add_u32 s{sT[1]}, s{sT[1]}, s{sT[0]}
              s_add_u32 s{sT[1]}, s{sT[1]}, {WS_Y}
              s_add_u32 s{sT[3]}, s{sT[1]}, {8 << 15}
              v_lshrrev_b32 v{vT[0]}, 5, v{vLane}
              v_lshlrev_b32 v{vT[1]}, 10, v{vT[2]}
              v_lshl_add_u32 v{vT[1]}, v{vT[0]}, 4, v{vT[1]}
              v_lshlrev_b32 v{vT[0]}, 2, v{vT[0]}
              s_lshr_b32 s{sT[2]}, s{sI}, 4
              s_lshl_b32 s{sT[2]}, s{sT[2]}, 11
              s_lshl_b32 s{sT[0]}, s{sX}, 7
              s_add_u32 s{sT[2]}, s{sT[2]}, s{sT[0]}
              s_and_b32 s{sT[0]}, s{sI}, 15
              s_lshl_b32 s{sT[0]}, s{sT[0]}, 3
              s_add_u32 s{sT[2]}, s{sT[2]}, s{sT[0]}
              s_mov_b32 s{sSpin}, {SPIN}""")
        srd(20, K_OUT, 4096)
        if masked: a("s_mov_b64 vcc, -1")
        a.label("L_F_ypoll")
        if masked: a("s_mov_b64 exec, vcc")
        a(f"buffer_load_dwordx4 v[{R0+4}:{R0+7}], v{vT[1]}, s[16:19], s{sT[3]} offen {yld}")
        if not abl_noA: a(f"buffer_load_dwordx4 v[{R0}:{R0+3}], v{vT[1]}, s[16:19], s{sT[1]} offen {yld}")
        if masked: a("s_mov_b64 exec, -1")
        a("s_waitcnt vmcnt(0)")
        tagcheck([R0 + 4] if abl_noA else [R0, R0 + 4], "L_F_ypoll", "L_F_yok")
        tstamp(5)
        row_allreduce("v_add_f32", [R0, R0 + 2, R0 + 4, R0 + 6])
        for k in range(4): a(f"v_mov_b32 v{R0+2*k+1}, v{R0+2*k}")
        for k in range(4): a(f"v_permlane16_swap_b32 v{R0+2*k}, v{R0+2*k+1}")
        for k in range(4): a(f"v_add_f32 v{R0+2*k}, v{R0+2*k}, v{R0+2*k+1}")
        a(f"""v_cvt_pk_bf16_f32 v{R0}, v{R0}, v{R0+2}
              v_cvt_pk_bf16_f32 v{R0+4}, v{R0+4}, v{R0+6}
              s_mov_b32 exec_lo, 1
              s_mov_b32 exec_hi, 1
              buffer_store_dword v{R0}, v{vT[0]}, s[20:23], s{sT[2]} offen
              buffer_store_dword v{R0+4}, v{vT[0]}, s[20:23], s{sT[2]} offen offset:1024
              s_mov_b64 exec, -1""")
    a(f"""s_nop 0
          s_cmp_eq_u32 s2, 0
          s_cbranch_scc0 L_exit
          v_mov_b32 v{vT[0]}, {WS_EPOCH}
          v_mov_b32 v{vT[1]}, s{sEp}
          s_mov_b64 exec, 1
          buffer_store_dword v{vT[1]}, v{vT[0]}, s[16:19], 0 offen sc1
          s_mov_b64 exec, -1""")

    if aser:
        a("s_branch L_exit")
        a.label("L_F_goA")
        for k in range(4):
            r = PB + 4 * k
            a(f"buffer_load_dwordx4 v[{r}:{r+3}], v{vA0}, s[16:19], s{sP[k]} offen {pld}\ns_waitcnt vmcnt({aser - 1})")
        a("s_branch L_F_pwait")
    a.label("L_exit")
    if fixdur:
        a.label("L_fix")
        a(f"""s_memrealtime s[50:51]
              s_waitcnt lgkmcnt(0)
              s_sub_u32 s50, s50, s48
              s_cmp_lt_u32 s50, {fixdur}
              s_cbranch_scc1 L_fix""")
    if diag:
        stamp(7)
        a(f"""s_lshl_b32 s{sT[0]}, s2, 3
              s_add_u32 s{sT[0]}, s{sT[0]}, s{sWave}
              s_lshl_b32 s{sT[0]}, s{sT[0]}, 6
              s_add_u32 s{sT[0]}, s{sT[0]}, {STAMP_OFF}
              s_waitcnt vmcnt(0) lgkmcnt(0)
              v_mov_b32 v{vT[0]}, 0""")
        for k in range(16): a(f"v_mov_b32 v{vRing+k}, s{48+k}")
        a("s_mov_b64 exec, 1")
        for k in range(4): a(f"buffer_store_dwordx4 v[{vRing+4*k}:{vRing+4*k+3}], v{vT[0]}, s[16:19], s{sT[0]} offen offset:{16*k}")
    a.label("L_end")
    a("s_endpgm")

    body, nops = a.render(nstub=NSTUB if stubs else 0, total=NSTUB)
    head = open(f"cdna_kernels/{NAME}.s.ref").read().split("; Override launch")[0]
    txt = head + f"""; Generated by dev/gen.py (hand-written generator). One workgroup per CU: waves 0-3 helpers, waves 4-7 stream branch-B K/V.
; @launch grid=(256,1,1) block=(512,1,1) lds={LDS_BYTES}
.amdgcn_target "amdgcn-amd-amdhsa--gfx950"
.text
.globl {NAME}_kernel
.p2align 12
.p2align 8
.type {NAME}_kernel,@function
{body}.section .rodata,"a"
.p2align 6
.amdhsa_kernel {NAME}_kernel
  .amdhsa_next_free_vgpr {NVGPR}
  .amdhsa_next_free_sgpr 102
  .amdhsa_accum_offset {NVGPR}
  .amdhsa_group_segment_fixed_size 0
  .amdhsa_kernarg_size 104
  .amdhsa_user_sgpr_count 2
  .amdhsa_user_sgpr_kernarg_segment_ptr 1
  .amdhsa_system_sgpr_workgroup_id_x 1
  .amdhsa_float_denorm_mode_32 3
.end_amdhsa_kernel
"""
    return txt, nops, a.code_bytes

if __name__ == "__main__":
    out = sys.argv[1]
    kw = json.loads(sys.argv[2]) if len(sys.argv) > 2 else {}
    txt, nops, nb = gen(**kw)
    open(out, "w").write(txt)
    print(out, "lines", txt.count("\n"), "auto nops", nops, "code bytes", nb)
```

```python
import sys, json
sys.path.insert(0, "dev")
from asmlib import Asm
NAME = "concat_heads__sliding_block_cached__mha_block_cached__decode"

WS_EPOCH, WS_Y, WS_QP, WS_PART, WS_PB = 0, 64 << 10, 1 << 20, 2 << 20, (3 << 20) + (512 << 10)
WS_MK = 16 << 10
WS_GM = 8 << 10
WS_XL = 4 << 10
REC = 640
WS_SIZE = 512 << 20
STAMP_OFF = 64 << 20
L_QB, L_QA, L_CNT, L_MLA, L_WT, L_OA, L_YR = 0, 256, 1280, 1408, 1536, 2048, 10240
LDS_BYTES = 16384
vLane, vO0, vO1 = 1, 2, 3
vT = [4, 5, 6, 7]
vQ = 8
vAcc = 12
vt = 20
vZ0, vZ1, vZA = 28, 29, 30
vP = 32
vLo, vHi = 34, 35
vS = 36
vG4 = 44
vM, vL, vC, vG = 48, 49, 50, 51
vU = [52, 53, 54, 55]
vW = 56
vRing = 64
vRaw = 192
vAd = 208
vBop = 208
NVGPR = 224
sWave, sW, sX, sI, sH, sB, sS, sR = 3, 4, 5, 6, 7, 8, 9, 10
sOff = 24
sT = [25, 26, 27, 11]
sTag = 28
sRet = 30
sEp = 32
sMc1, sMc0 = 34, 36
sScale, sLog2e, sHiMask = 38, 39, 40
sSpin, sBr, sHH = 41, 42, 43
sPub, sU = 44, 45
sSel0, sSel1 = 46, 47
sPubO, sShift = 90, 91
sCnt, sMask = 92, 93
sHA, sHB = 96, 97
sP = [92, 93, 94, 95]
K_AX, K_AK, K_AV, K_AWQ, K_AWO, K_BX, K_BK, K_BV, K_BWQ, K_BWO, K_OUT, K_DBG, K_WS = [64 + 2 * i for i in range(13)]
SPIN = 1 << 18

def slot(G, s): return vRing + (G * 8 + s) * 4

def gen(NSTUB=8, diag=False, bar0=True, asleep=32, stubs=True, abl_noA=False, abl_noq=False, abl_notail=False,
        TK=(5,5,5,5,5,5,5,6), TV=(16,), vfrom=7, TH=14, early_bar=False, masked=True, pre=-1, midbar=2, wo_at="mid", pat=2, pata=2, bperm=None, lag=2, nfast=4, endlag=3, midg=5, fastend=True, fastf2=True, f2lag=3, f3first=True, rank='m', rtab=1412571392, gw=0, gdelay=0, gld='nt', gbias=0, gx=False, glo=15, ghi=17, gpoll=4, xtab=0x33221100, gnoread=False, rfrom=2, rmax=6, nodup=True, bhint=False, hmap=2, ph=1, phm=2, wxa=5, kvi=False, wb=0, phb=(18, 17), aearly=False, g0free=False, table=False, xorph=False, phx=0, phs=0, latefree=0, pld="nt", ya="flag", tsleep=0, local=True, slow=128, perm=0, ldf="nt", yld="sc1", yst="sc1", sprio=0, abl_Apoll=False, abl_Acomp=False, abl_Akv=False, abl_Ast=False, narrow=True, aser=1, qser=4, n0=3, xb=1, lateslots=(), stublate=False, TF=None, kvdelay=0, TQ=0, latemask=0xf0, yag=15, late2=True, h2early=True, abl_dbl=False, fixdur=0):
    assert max(TK) <= 16 and max(TV) <= 16
    two = tuple(TK) != tuple(TV)
    def iss(c, G): call(f"L_ISS{'V' if (two and c >= vfrom) else 'K'}{G}")
    a = Asm()
    uid = [0]
    stf = "" if local else "sc1"
    def tstamp(i):
        if diag == 3: a(f"s_memrealtime s[{48+2*i}:{49+2*i}]")
    def stamp(i):
        if diag == 2 and i in (1, 2): return
        if diag: a(f"s_memrealtime s[{48+2*i}:{49+2*i}]")
        if diag == 2 and i == 0: a("s_memtime s[50:51]")
        if diag == 2 and i == 5: a("s_memtime s[52:53]")
    def srd(base, ptr, size):
        a(f"s_mov_b32 s{base}, s{ptr}\ns_mov_b32 s{base+1}, s{ptr+1}\ns_mov_b32 s{base+2}, {size}\ns_mov_b32 s{base+3}, 0x00020000")
    def addr(s, p):
        if p == 8: return (vAd + (s >> 2), (s & 3) * 1024)
        return (vAd + s // p, (s % p) * 1024)
    def addr_setup(p, wx=-1):
        if wx >= 0: a(f"s_lshr_b32 s{sT[0]}, s2, {wx}\ns_xor_b32 s{sT[0]}, s{sT[0]}, s{sW}\ns_and_b32 s{sT[0]}, s{sT[0]}, 3")
        a(f"""s_lshl_b32 s{sT[0]}, s{sT[0] if wx >= 0 else sW}, {10 + p.bit_length() - 1}
              v_lshlrev_b32 v{vAd}, 4, v{vLane}
              v_add_u32 v{vAd}, s{sT[0]}, v{vAd}""")
        if p == 8: a(f"v_add_u32 v{vAd+1}, 0x1000, v{vAd}")
        else:
            for k in range(1, 8 // p): a(f"v_add_u32 v{vAd+k}, {k * p * 4096}, v{vAd}")
    def issue(G, tp, bar_at=-1):
        for s in range(8):
            if s == bar_at: a("s_barrier")
            if bar_at >= 0 and s == 5 and stublate: touch([(4, 5), (5, 0), (6, 2), (7, 7)])
            r = slot(G, s)
            t = tp[s % len(tp)]
            if t and tp is TK and s in lateslots:
                uid[0] += 1
                a(f"s_waitcnt vmcnt({t})\ns_cbranch_vccnz L_lt{uid[0]}\ns_waitcnt vmcnt({t - 1})\nL_lt{uid[0]}:")
            elif t: a(f"s_waitcnt vmcnt({t - 1})")
            va, imm = (vAd + s, 0) if bperm else addr(s, pat)
            a(f"buffer_load_dwordx4 v[{r}:{r+3}], v{va}, s[12:15], s{sOff} offen offset:{imm} nt")
        if xorph: a(f"s_add_u32 s{sCnt}, s{sCnt}, 0x8000\ns_and_b32 s{sCnt}, s{sCnt}, 0x7ffff\ns_xor_b32 s{sOff}, s{sCnt}, s{sMask}")
        elif wb:
            hole = 3 << wb
            a(f"s_or_b32 s{sOff}, s{sOff}, {hole}\ns_add_u32 s{sOff}, s{sOff}, 0x2000\ns_and_b32 s{sOff}, s{sOff}, {0x7ffff & ~hole}")
        else: a(f"s_add_u32 s{sOff}, s{sOff}, 0x8000\ns_and_b32 s{sOff}, s{sOff}, 0x7ffff")
    def call(lbl): a(f"s_call_b64 s[{sRet}:{sRet+1}], {lbl}")
    def ret(): a(f"s_setpc_b64 s[{sRet}:{sRet+1}]")
    def row_allreduce(op, regs):
        for m in ("row_mirror", "row_half_mirror", "quad_perm:[2,3,0,1]", "quad_perm:[1,0,3,2]"):
            for x in regs: a(f"{op}_dpp v{x}, v{x}, v{x} {m} row_mask:0xf bank_mask:0xf")
    def xrow(op, x, tmp, which):
        a(f"v_mov_b32 v{tmp}, v{x}\nv_permlane{which}_swap_b32 v{x}, v{tmp}\n{op} v{x}, v{x}, v{tmp}")
    def wave_allreduce(op, x, tmp):
        row_allreduce(op, [x]); xrow(op, x, tmp, 16); xrow(op, x, tmp, 32)
    def round_scores(x, y, t):
        a(f"""v_cvt_pk_bf16_f32 v{t}, v{x}, v{y}
              v_lshlrev_b32 v{x}, 16, v{t}
              v_and_b32 v{y}, s{sHiMask}, v{t}
              v_mul_f32 v{x}, s{sScale}, v{x}
              v_mul_f32 v{y}, s{sScale}, v{y}
              v_cvt_pk_bf16_f32 v{t}, v{x}, v{y}
              v_lshlrev_b32 v{x}, 16, v{t}
              v_and_b32 v{y}, s{sHiMask}, v{t}""")
    def tagcheck(bufs, lbl_retry, lbl_ok, backoff=False, restore=False, patience=None):
        acc = vU[0]
        first = True
        for b in bufs:
            a(f"v_xor_b32 v{vU[1]}, s{sTag}, v{b+1}\nv_xor_b32 v{vU[2]}, s{sTag+1}, v{b+3}")
            if first: a(f"v_or_b32 v{acc}, v{vU[1]}, v{vU[2]}")
            else: a(f"v_or3_b32 v{acc}, v{acc}, v{vU[1]}, v{vU[2]}")
            first = False
        a(f"v_cmp_ne_u32 vcc, 0, v{acc}")
        if restore: a("s_mov_b64 exec, -1")
        a(f"s_cbranch_vccz {lbl_ok}")
        if backoff == "always": a(f"s_sleep {asleep}")
        elif backoff and asleep:
            a(f"s_cmp_eq_u32 s{sBr}, 0\ns_cbranch_scc0 {lbl_ok}_nb\ns_sleep {asleep}\n{lbl_ok}_nb:")
        if tsleep: a(f"s_sleep {tsleep}")
        if local:
            a(f"""s_cmp_gt_u32 s{sSpin}, {SPIN - (patience or slow)}
                  s_cbranch_scc1 {lbl_ok}_fast
                  buffer_wbl2 sc1
                  s_waitcnt vmcnt(0)
                  s_sleep 16
                  {lbl_ok}_fast:""")
        a(f"""s_sub_u32 s{sSpin}, s{sSpin}, 1
              s_cbranch_scc0 {lbl_retry}""")
        a.label(lbl_ok)
    def lds_wait(off, atleast, name, sleep=0):
        a(f"v_mov_b32 v{vU[0]}, {L_CNT + off}\ns_mov_b32 s{sSpin}, {SPIN * 64}")
        a.label(name)
        a(f"""ds_read_b32 v{vU[1]}, v{vU[0]}
              s_waitcnt lgkmcnt(0)
              v_readfirstlane_b32 s{sT[0]}, v{vU[1]}
              s_cmp_ge_u32 s{sT[0]}, {atleast}
              s_cbranch_scc1 {name}_ok""")
        if sleep: a(f"s_sleep {sleep}")
        a(f"""s_sub_u32 s{sSpin}, s{sSpin}, 1
              s_cbranch_scc0 {name}""")
        a.label(name + "_ok")
    def helper_sync(off, name):
        a(f"""v_mov_b32 v{vU[0]}, {L_CNT + off}
              v_mov_b32 v{vU[1]}, 1
              s_mov_b64 exec, 1
              ds_add_u32 v{vU[0]}, v{vU[1]}
              s_mov_b64 exec, -1""")
        lds_wait(off, 4, name, 1)
    def epoch_load():
        a(f"s_load_dwordx2 s[{sEp}:{sEp+1}], s[{K_WS}:{K_WS+1}], {WS_EPOCH}")
    def epoch_tag():
        a(f"""s_waitcnt lgkmcnt(0)
              s_add_u32 s{sEp}, s{sEp}, 1
              s_xor_b32 s{sTag}, s{sEp}, 0x5bd1e995
              s_mul_i32 s{sTag+1}, s{sEp}, 0x9e3779b1
              s_add_u32 s{sTag+1}, s{sTag+1}, s{sEp+1}""")
    def consts():
        a(f"""s_mov_b32 s{sMc1}, 0xcccccccc
              s_mov_b32 s{sMc1+1}, 0xcccccccc
              s_mov_b32 s{sMc0}, 0xaaaaaaaa
              s_mov_b32 s{sMc0+1}, 0xaaaaaaaa
              s_mov_b32 s{sScale}, 0x3db504f3
              s_mov_b32 s{sLog2e}, 0x3fb8aa3b
              s_mov_b32 s{sHiMask}, 0xffff0000""")
        srd(16, K_WS, WS_SIZE)
    R0 = vRing

    a.label(f"{NAME}_kernel")
    a(f"""s_cmp_ge_u32 s2, 256
          s_cbranch_scc1 L_end
          s_load_dwordx16 s[64:79], s[0:1], 0
          s_load_dwordx8 s[80:87], s[0:1], 64
          s_load_dwordx2 s[88:89], s[0:1], 96""")
    stamp(0)
    if fixdur: a("s_memrealtime s[48:49]")
    if perm:
        a(f"s_mul_i32 s2, s2, {perm}\ns_lshr_b32 s{sT[0]}, s2, 8\ns_and_b32 s2, s2, 255")
        a(f"s_lshr_b32 s{sT[0]}, s2, 3\ns_xor_b32 s2, s2, s{sT[0]}")
    if hmap == 0: hb_code = f"s_lshl_b32 s{sHB}, s{sH}, 3\ns_add_u32 s{sHB}, s{sHB}, s{sX}"
    elif hmap == 1: hb_code = (f"s_and_b32 s{sHB}, s{sH}, 1\ns_lshr_b32 s{sH}, s{sH}, 1\ns_lshl_b32 s{sH}, s{sH}, 4\ns_add_u32 s{sHB}, s{sHB}, s{sH}\n"
                               f"s_lshl_b32 s{sT[0]}, s{sX}, 1\ns_add_u32 s{sHB}, s{sHB}, s{sT[0]}")
    elif hmap == 6:
        hb_code = (f"s_and_b32 s{sHB}, s{sH}, 1\ns_lshr_b32 s{sH}, s{sH}, 1\ns_lshl_b32 s{sH}, s{sH}, 3\ns_add_u32 s{sHB}, s{sHB}, s{sH}\n"
                   f"s_and_b32 s{sT[0]}, s{sX}, 3\ns_lshl_b32 s{sT[0]}, s{sT[0]}, 1\ns_add_u32 s{sHB}, s{sHB}, s{sT[0]}\n"
                   f"s_and_b32 s{sT[0]}, s{sX}, 4\ns_lshl_b32 s{sT[0]}, s{sT[0]}, 2\ns_add_u32 s{sHB}, s{sHB}, s{sT[0]}")
    else: hb_code = f"s_mov_b32 s{sHB}, s{sHA}"
    a(f"""v_lshrrev_b32 v{vT[0]}, 6, v0
          v_and_b32 v{vLane}, 63, v0
          v_readfirstlane_b32 s{sWave}, v{vT[0]}
          s_and_b32 s{sX}, s2, 7
          s_lshr_b32 s{sI}, s2, 3
          s_lshr_b32 s{sH}, s{sI}, 3
          s_lshl_b32 s{sT[0]}, s{sX}, 2
          s_add_u32 s{sHA}, s{sH}, s{sT[0]}
          {hb_code}
          s_bfe_u32 s{sB}, s{sI}, 0x10002
          s_and_b32 s{sS}, s{sI}, 3
          s_and_b32 s{sR}, s{sI}, 7
          s_and_b32 s{sW}, s{sWave}, 3
          v_and_b32 v{vC}, 15, v{vLane}
          v_lshrrev_b32 v{vG}, 4, v{vLane}""")
    if table:
        a(f"""s_waitcnt lgkmcnt(0)
              s_lshl_b32 s{sT[0]}, s2, 2
              {f"s_add_u32 s{sT[0]}, s{sT[0]}, s{sW}" if xorph else ""}
              {f"s_lshl_b32 s{sT[0]}, s{sT[0]}, 2" if xorph else ""}
              s_add_u32 s{sT[0]}, s{sT[0]}, 32768
              s_load_dword s98, s[{K_WS}:{K_WS+1}], s{sT[0]}
              s_waitcnt lgkmcnt(0)
              s_lshr_b32 s{sHB}, s98, 8
              s_and_b32 s{sHB}, s{sHB}, 31""")
    def touch(pairs):
        for w_, k_ in pairs:
            uid[0] += 1
            a(f"s_cmp_eq_u32 s{sWave}, {w_}\ns_cbranch_scc0 L_tc{uid[0]}")
            call(f"L_stub{k_}")
            a.label(f"L_tc{uid[0]}")
    if stublate: touch([(1, 6), (3, 1)])
    else: touch([(k, k) for k in range(8)])
    a(f"""s_cmp_lt_u32 s{sWave}, 4
          s_cbranch_scc0 L_stream""")

    a(f"s_cmp_lt_u32 s{sW}, 2\ns_cselect_b32 s{sH}, s{sHB}, s{sHA}")
    if nodup:
        a(f"s_lshl_b32 s{sT[0]}, s{sR}, 6")
    else:
        a(f"""s_and_b32 s{sT[0]}, s{sW}, 1
              s_lshl_b32 s{sT[0]}, s{sT[0]}, 9
              s_lshl_b32 s{sT[1]}, s{sR}, 6
              s_add_u32 s{sT[0]}, s{sT[0]}, s{sT[1]}""")
    a(f"""v_add_lshl_u32 v{vT[0]}, s{sT[0]}, v{vLane}, 1
          v_lshlrev_b32 v{vO0}, 17, v{vG}
          v_lshl_add_u32 v{vO0}, v{vC}, 4, v{vO0}
          s_lshl_b32 s{sOff}, s{sR}, 19
          s_lshl_b32 s{sT[0]}, s{sH}, 8
          s_add_u32 s{sOff}, s{sOff}, s{sT[0]}
          s_mov_b32 s14, 0x400000
          s_mov_b32 s15, 0x00020000
          s_mov_b32 s22, 2048
          s_mov_b32 s23, 0x00020000
          v_lshlrev_b32 v{vU[0]}, 2, v{vC}
          v_mov_b32 v{vU[1]}, 0
          ds_write_b32 v{vU[0]}, v{vU[1]} offset:{L_CNT}
          s_waitcnt lgkmcnt(0)
          s_cmp_lt_u32 s{sW}, 2
          s_cselect_b32 s12, s{K_BWQ}, s{K_AWQ}
          s_cselect_b32 s13, s{K_BWQ+1}, s{K_AWQ+1}
          s_cselect_b32 s20, s{K_BX}, s{K_AX}
          s_cselect_b32 s21, s{K_BX+1}, s{K_AX+1}""")
    epoch_load()
    first = 1 if nodup else 2
    if aearly == 2: pass
    elif h2early: a(f"s_bitcmp0_b32 s{sW}, 0\ns_cbranch_scc1 L_h_go\ns_barrier")
    elif bar0: a(f"s_cmp_lt_u32 s{sW}, {first}\ns_cbranch_scc1 L_h_go\ns_barrier")
    else: a("s_barrier")
    if nodup: a(f"s_bitcmp1_b32 s{sW}, 0\ns_cbranch_scc1 L_helper2")
    a.label("L_h_go")
    a(f"buffer_load_ushort v{vP}, v{vT[0]}, s[20:23], 0 offen nt")
    if nodup: a(f"buffer_load_ushort v{vP+1}, v{vT[0]}, s[20:23], 0 offen offset:1024 nt")
    for k in range(16):
        r = slot(k & 1, k >> 1)
        if TQ and k == TQ and h2early: a("s_barrier")
        if TQ and k >= TQ: a(f"s_waitcnt vmcnt({TQ - 1})")
        a(f"buffer_load_dwordx4 v[{r}:{r+3}], v{vO0}, s[12:15], s{sOff} offen nt")
        if k < 15: a(f"s_add_u32 s{sOff}, s{sOff}, 0x2000")
    if h2early:
        if not TQ and aearly != 2: a("s_barrier")
        if stublate: touch([(0, 3), (2, 4)])
    elif bar0: a(f"s_cmp_lt_u32 s{sW}, {first}\ns_cbranch_scc0 L_helper2\ns_barrier")
    a("s_branch L_helper2")

    a.label("L_stream")
    if lateslots: a(f"s_lshr_b32 vcc_lo, {latemask}, s{sX}\ns_and_b32 vcc_lo, vcc_lo, 1\ns_mov_b32 vcc_hi, 0")
    if sprio: a(f"s_setprio {sprio}")
    if wb:
        assert pat == 8
        a(f"""s_lshl_b32 s{sT[0]}, s{sW}, {wb}
              v_lshlrev_b32 v{vAd}, 4, v{vLane}
              v_add_u32 v{vAd}, s{sT[0]}, v{vAd}
              v_add_u32 v{vAd+1}, 0x1000, v{vAd}""")
    elif bperm:
        if bperm == "table":
            a(f"s_waitcnt lgkmcnt(0)\ns_load_dwordx8 s[56:63], s[{K_WS}:{K_WS+1}], 49152\ns_waitcnt lgkmcnt(0)")
            sh = [f"s{56+k}" for k in range(7)]
        else: sh = [str(v) for v in bperm]
        a(f"""v_lshlrev_b32 v{vAd}, 4, v{vC}
              v_and_b32 v{vT[0]}, 1, v{vG}
              v_lshl_add_u32 v{vAd}, v{vT[0]}, {sh[0]}, v{vAd}
              v_lshrrev_b32 v{vT[0]}, 1, v{vG}
              v_lshl_add_u32 v{vAd}, v{vT[0]}, {sh[1]}, v{vAd}
              s_and_b32 s{sT[0]}, s{sW}, 1
              s_lshl_b32 s{sT[0]}, s{sT[0]}, {sh[2]}
              s_lshr_b32 s{sT[1]}, s{sW}, 1
              s_lshl_b32 s{sT[1]}, s{sT[1]}, {sh[3]}
              s_add_u32 s{sT[0]}, s{sT[0]}, s{sT[1]}
              v_add_u32 v{vAd}, s{sT[0]}, v{vAd}""")
        for b in range(3):
            a(f"s_lshl_b32 s{sT[0]}, 1, {sh[4+b]}")
            for k in range(1 << b): a(f"v_add_u32 v{vAd + (1 << b) + k}, s{sT[0]}, v{vAd + k}")
    else: addr_setup(pat)
    if table: ph_code = f"s_and_b32 s{sOff}, s98, 15\ns_lshl_b32 s{sOff}, s{sOff}, 15"
    elif phm == 0: ph_code = f"s_and_b32 s{sOff}, s{sI}, 15\ns_lshl_b32 s{sOff}, s{sOff}, 15"
    elif phm == 1: ph_code = f"s_lshl_b32 s{sOff}, s{sB}, 18"
    elif phm == 2: ph_code = f"s_lshl_b32 s{sOff}, s{sB}, {phb[0]}\ns_lshr_b32 s{sT[0]}, s{sI}, 4\ns_lshl_b32 s{sT[0]}, s{sT[0]}, {phb[1]}\ns_add_u32 s{sOff}, s{sOff}, s{sT[0]}"
    elif phm == 3: ph_code = f"s_lshl_b32 s{sOff}, s{sB}, 17"
    a(f"""s_mov_b32 s{sH}, s{sHB}
          s_lshl_b32 s{sU}, s{sB}, 5
          s_add_u32 s{sU}, s{sU}, s{sH}
          s_lshl_b32 s{sU}, s{sU}, 2
          s_add_u32 s{sU}, s{sU}, s{sS}
          s_lshl_b32 s{sU}, s{sU}, 19
          {ph_code}
          s_mov_b32 s14, 0x80000
          s_mov_b32 s15, 0x00020000""")
    if xorph:
        a(f"""s_and_b32 s{sMask}, s98, 0x3c
              s_lshl_b32 s{sMask}, s{sMask}, 13
              s_mov_b32 s{sCnt}, 0
              s_mov_b32 s{sOff}, s{sMask}
              s_and_b32 s{sT[0]}, s98, 3
              s_lshl_b32 s{sT[0]}, s{sT[0]}, 13""")
        for k in range(8 // pat): a(f"v_xor_b32 v{vAd+k}, s{sT[0]}, v{vAd+k}")
    a(f"""s_waitcnt lgkmcnt(0)
          s_add_u32 s12, s{K_BK}, s{sU}
          s_addc_u32 s13, s{K_BK+1}, 0""")
    epoch_load()
    issue(0, (0,) if g0free else (TF or TK), n0)
    for G in range(1, 4):
        if TF: issue(G, TF)
        elif G <= latefree:
            a(f"s_cmp_lt_u32 s{sX}, 4\ns_cbranch_scc1 L_s_f{G}")
            call(f"L_ISSV{G}")
            a(f"s_branch L_s_g{G}\nL_s_f{G}:")
            iss(0, G)
            a.label(f"L_s_g{G}")
        else: iss(0, G)
    stamp(1)
    consts()
    epoch_tag()
    if not abl_noq: lds_wait(16, 1, "L_s_qwait", 1)
    a(f"""v_lshlrev_b32 v{vT[0]}, 4, v{vC}
          ds_read_b128 v[{vQ}:{vQ+3}], v{vT[0]} offset:{L_QB}
          s_waitcnt lgkmcnt(0)""")
    stamp(2)
    for c in range(3):
        for G in range(4):
            call(f"L_KB{G}"); iss(c + 1, G)
        a(f"v_mov_b32 v{vS+2*c}, v{vZ0}\nv_mov_b32 v{vS+2*c+1}, v{vZ1}")
    a(f"s_add_u32 s12, s{K_BV}, s{sU}\ns_addc_u32 s13, s{K_BV+1}, 0")
    call("L_KB0"); iss(4, 0); call("L_KB1")
    a("s_waitcnt vmcnt(16)")
    call("L_KB2"); iss(4, 1)
    a("s_waitcnt vmcnt(16)")
    call("L_KB3")
    a(f"v_mov_b32 v{vS+6}, v{vZ0}\nv_mov_b32 v{vS+7}, v{vZ1}")
    stamp(3)
    for k in range(0, 8, 2): round_scores(vS + k, vS + k + 1, vT[0])
    a(f"""v_max3_f32 v{vM}, v{vS}, v{vS+1}, v{vS+2}
          v_max3_f32 v{vM}, v{vM}, v{vS+3}, v{vS+4}
          v_max3_f32 v{vM}, v{vM}, v{vS+5}, v{vS+6}
          v_max_f32 v{vM}, v{vM}, v{vS+7}""")
    wave_allreduce("v_max_f32", vM, vT[0])
    iss(4, 2)
    for k in range(8): a(f"v_sub_f32 v{vS+k}, v{vS+k}, v{vM}")
    for k in range(8): a(f"v_mul_f32 v{vS+k}, s{sLog2e}, v{vS+k}")
    for k in range(8): a(f"v_exp_f32 v{vS+k}, v{vS+k}")
    a(f"v_add_f32 v{vL}, v{vS}, v{vS+1}")
    for k in range(2, 8): a(f"v_add_f32 v{vL}, v{vL}, v{vS+k}")
    if not fastend:
        for k in range(8): a(f"v_cvt_pk_bf16_f32 v{vS+k}, v{vS+k}, 0")
    wave_allreduce("v_add_f32", vL, vT[0])
    if fastend:
        a(f"v_rcp_f32 v{vT[0]}, v{vL}")
        for k in range(8): a(f"v_mul_f32 v{vS+k}, v{vS+k}, v{vT[0]}")
        for k in range(8): a(f"v_cvt_pk_bf16_f32 v{vS+k}, v{vS+k}, 0")
    a(f"""s_add_u32 s{sPub}, s{sH}, 32
          s_lshl_b32 s{sPub}, s{sPub}, 1
          s_add_u32 s{sPub}, s{sPub}, s{sB}
          s_lshl_b32 s{sPub}, s{sPub}, 2
          s_add_u32 s{sPub}, s{sPub}, s{sS}
          s_lshl_b32 s{sPubO}, s{sPub}, 11
          s_add_u32 s{sPubO}, s{sPubO}, {WS_PB - (256 << 11)}
          s_lshl_b32 s{sPub}, s{sPub}, 2
          s_add_u32 s{sPub}, s{sPub}, s{sW}
          s_mul_i32 s{sPub}, s{sPub}, {REC}
          s_add_u32 s{sPub}, s{sPub}, {WS_PART}
          s_mov_b32 s{sShift}, 6""")
    call("L_PUBML")
    iss(4, 3)
    for k in range(8): a(f"v_mov_b32 v{vAcc+k}, 0")
    stamp(4)
    a(f"""s_lshl_b32 s{sT[0]}, s{sW}, 4
          s_add_u32 s{sPubO}, s{sPubO}, s{sT[0]}
          v_lshrrev_b32 v{vU[3]}, 1, v{vG}
          v_lshlrev_b32 v{vU[3]}, 4, v{vU[3]}
          v_add_lshl_u32 v{vU[3]}, v{vU[3]}, v{vC}, 6""")
    issued, done = 4, 0
    def ws(k):
        if k % 2 == 0: a(f"v_mov_b32 v{vP + (k % 4) // 2}, v{vS + k // 2}")
        if k == midg: a("s_barrier")
        if k == 15:
            call("L_WS3L"); return
        a(f"s_waitcnt vmcnt({8 * (issued - k - 1)})")
        call(f"L_WS{k % 4}")
    while issued < 16:
        fast = issued >= 16 - (rmax if rank else nfast)
        want = (endlag if fast else lag)
        n = 0
        while done <= issued - 4 or (done < issued - want + 1 and n < 2 and done < issued - 1):
            ws(done); done += 1; n += 1
        left = 16 - issued
        if rank and left <= rmax:
            if left == rmax:
                a(f"""v_mov_b32 v{vU[0]}, {L_CNT + 20}
                      ds_read_b32 v{vU[1]}, v{vU[0]}
                      s_waitcnt lgkmcnt(0)
                      v_readfirstlane_b32 s{sHH}, v{vU[1]}
                      s_cmp_eq_u32 s{sHH}, 0
                      s_cselect_b32 s{sHH}, 19, s{sHH}""")
            a(f"s_cmp_ge_u32 s{sHH}, {16 + left}\ns_cbranch_scc1 L_s_v{left}")
            call(f"L_ISSK{issued % 4}")
            a(f"s_branch L_s_w{left}\nL_s_v{left}:")
            call(f"L_ISSV{issued % 4}")
            a.label(f"L_s_w{left}")
        else: call(f"L_ISS{'V' if (fast and two) else 'K'}{issued % 4}")
        issued += 1
        if ya == "flag" and issued == yag:
            a(f"v_mov_b32 v{vU[0]}, {L_CNT + 24}\nv_mov_b32 v{vU[1]}, 1\nds_write_b32 v{vU[0]}, v{vU[1]}")
    if early_bar: a("s_barrier")
    while done < 16:
        ws(done); done += 1
    stamp(5)
    if fastend:
        for e in range(4): a(f"v_permlane32_swap_b32 v{vAcc+e}, v{vAcc+e+4}")
        for e in range(4): a(f"v_add_f32 v{vAcc+e}, v{vAcc+e}, v{vAcc+e+4}")
        for e in range(2): a(f"v_permlane16_swap_b32 v{vAcc+e}, v{vAcc+e+2}")
        for e in range(2): a(f"v_add_f32 v{vAcc+e}, v{vAcc+e}, v{vAcc+e+2}")
        a(f"""v_cvt_pk_bf16_f32 v{vG4}, v{vAcc}, v{vAcc+1}
              v_cvt_pk_bf16_f32 v{vG4+2}, v{vAcc}, v{vAcc+1}
              v_permlane16_swap_b32 v{vG4}, v{vG4+2}
              s_mov_b32 exec_lo, 0xffff
              s_mov_b32 exec_hi, 0xffff
              buffer_store_dwordx4 v[{vG4}:{vG4+3}], v{vU[3]}, s[16:19], s{sPubO} offen {stf}
              s_mov_b64 exec, -1""")
    else:
        call("L_RED8")
        call("L_PUBPART")
    stamp(6)
    if not early_bar: a("s_barrier")
    if ya == "s0" and not abl_noA:
        a(f"""s_cmp_eq_u32 s{sW}, 0
              s_cbranch_scc0 L_exit
              s_mov_b32 s{sBr}, 0""")
        call("L_PUBY")
    a("s_branch L_exit")

    for nm, tp in ((("K", TK), ("V", TV)) if two else (("K", TK),)):
        for G in range(4):
            a.label(f"L_ISS{nm}{G}")
            issue(G, tp); ret()

    for G in range(4):
        a.label(f"L_KB{G}")
        for s in range(8): a(f"v_mov_b32 v{vt+s}, 0")
        for j in range(4):
            for s in range(8): a(f"v_dot2c_f32_bf16 v{vt+s}, v{slot(G, s)+j}, v{vQ+j}")
        for k in range(4):
            a(f"v_add_f32_dpp v{vt+k}, v{vt+k}, v{vt+k} row_mirror row_mask:0xf bank_mask:0x3")
        for k in range(4):
            a(f"v_add_f32_dpp v{vt+k}, v{vt+k+4}, v{vt+k+4} row_mirror row_mask:0xf bank_mask:0xc")
        for k in range(2):
            a(f"v_add_f32_dpp v{vt+k}, v{vt+k}, v{vt+k} row_half_mirror row_mask:0xf bank_mask:0x5")
        for k in range(2):
            a(f"v_add_f32_dpp v{vt+k}, v{vt+k+2}, v{vt+k+2} row_half_mirror row_mask:0xf bank_mask:0xa")
        for k in range(2):
            a(f"v_add_f32_dpp v{vt+k}, v{vt+k}, v{vt+k} quad_perm:[2,3,0,1] row_mask:0xf bank_mask:0xf")
        a(f"v_cndmask_b32 v{vt}, v{vt}, v{vt+1}, s[{sMc1}:{sMc1+1}]")
        if G % 2 == 0:
            a(f"v_add_f32_dpp v{vZA}, v{vt}, v{vt} quad_perm:[1,0,3,2] row_mask:0xf bank_mask:0xf")
        else:
            a(f"v_add_f32_dpp v{vt}, v{vt}, v{vt} quad_perm:[1,0,3,2] row_mask:0xf bank_mask:0xf")
            a(f"v_cndmask_b32 v{vZ0 + G // 2}, v{vZA}, v{vt}, s[{sMc0}:{sMc0+1}]")
        ret()

    for G, last in ((0, False), (1, False), (2, False), (3, False), (3, True)):
        a.label(f"L_WS{G}" + ("L" if last else ""))
        a("s_nop 1")
        for s in range(8):
            r = slot(G, s)
            a(f"v_mov_b32_dpp v{vLo}, v{vP + G // 2} row_newbcast:{2*s + (G & 1)} row_mask:0xf bank_mask:0xf")
            a(f"v_lshlrev_b32 v{vHi}, 16, v{vLo}")
            if last: a(f"s_waitcnt vmcnt({7-s})")
            for j in range(4):
                a(f"v_dot2c_f32_bf16 v{vAcc+2*j}, v{r+j}, v{vLo}")
                a(f"v_dot2c_f32_bf16 v{vAcc+2*j+1}, v{r+j}, v{vHi}")
        a("s_nop 1")
        ret()

    a.label("L_RED8")
    a("s_nop 1")
    for e in range(4): a(f"v_permlane32_swap_b32 v{vAcc+e}, v{vAcc+e+4}")
    for e in range(4): a(f"v_add_f32 v{vAcc+e}, v{vAcc+e}, v{vAcc+e+4}")
    for e in range(2): a(f"v_permlane16_swap_b32 v{vAcc+e}, v{vAcc+e+2}")
    for e in range(2): a(f"v_add_f32 v{vAcc+e}, v{vAcc+e}, v{vAcc+e+2}")
    ret()

    a.label("L_PUBML")
    a(f"""v_mov_b32 v{vG4}, v{vM}
          v_mov_b32 v{vG4+1}, s{sTag}
          v_mov_b32 v{vG4+2}, v{vL}
          v_mov_b32 v{vG4+3}, s{sTag+1}
          v_lshlrev_b32 v{vT[0]}, 4, v{vLane}
          s_mov_b64 exec, 0xff
          buffer_store_dwordx4 v[{vG4}:{vG4+3}], v{vT[0]}, s[16:19], s{sPub} offen offset:512 {stf}
          s_mov_b64 exec, -1
          s_nop 0""")
    ret()

    a.label("L_PUBPART")
    a(f"""v_rcp_f32 v{vT[0]}, v{vL}
          v_lshrrev_b32 v{vT[1]}, 1, v{vG}
          v_lshlrev_b32 v{vT[1]}, 4, v{vT[1]}
          v_add_lshl_u32 v{vT[1]}, v{vT[1]}, v{vC}, s{sShift}
          v_mul_f32 v{vAcc}, v{vAcc}, v{vT[0]}
          v_mul_f32 v{vAcc+1}, v{vAcc+1}, v{vT[0]}
          v_cvt_pk_bf16_f32 v{vG4}, v{vAcc}, v{vAcc+1}
          v_mov_b32 v{vG4+1}, s{sTag}
          v_mov_b32 v{vG4+2}, v{vG4}
          v_mov_b32 v{vG4+3}, s{sTag+1}
          v_permlane16_swap_b32 v{vG4}, v{vG4+2}
          s_mov_b32 exec_lo, 0xffff
          s_mov_b32 exec_hi, 0xffff
          buffer_store_dwordx4 v[{vG4}:{vG4+3}], v{vT[1]}, s[16:19], s{sPubO} offen {stf}
          s_mov_b64 exec, -1
          s_nop 0""")
    ret()

    a.label("L_PUBY")
    a(f"""s_lshl_b32 s{sT[0]}, s{sBr}, 11
          v_lshl_add_u32 v{vT[0]}, v{vLane}, 3, s{sT[0]}""")
    for k in range(4): a(f"ds_read_b64 v[{vt+2*k}:{vt+2*k+1}], v{vT[0]} offset:{L_YR + 512*k}")
    a(f"""s_lshl_b32 s{sT[0]}, s{sBr}, 3
          s_add_u32 s{sT[1]}, s{sT[0]}, s{sR}
          s_lshl_b32 s{sT[1]}, s{sT[1]}, 5
          s_add_u32 s{sT[1]}, s{sT[1]}, s{sHA}
          s_lshl_b32 s{sT[1]}, s{sT[1]}, 10
          s_add_u32 s{sT[1]}, s{sT[1]}, {WS_Y}
          v_lshlrev_b32 v{vT[1]}, 4, v{vLane}
          v_mov_b32 v{vG4+1}, s{sTag}
          v_mov_b32 v{vG4+3}, s{sTag+1}
          s_waitcnt lgkmcnt(0)
          v_add_f32 v{vG4}, v{vt}, v{vt+2}
          v_add_f32 v{vG4+2}, v{vt+1}, v{vt+3}
          v_add_f32 v{vt+4}, v{vt+4}, v{vt+6}
          v_add_f32 v{vt+5}, v{vt+5}, v{vt+7}
          v_add_f32 v{vG4}, v{vG4}, v{vt+4}
          v_add_f32 v{vG4+2}, v{vG4+2}, v{vt+5}
          buffer_store_dwordx4 v[{vG4}:{vG4+3}], v{vT[1]}, s[16:19], s{sT[1]} offen {yst}
          s_nop 0""")
    ret()

    a.label("L_QC")
    a(f"""v_lshlrev_b32 v{vO0}, 4, v{vLane}
          v_add_u32 v{vO1}, 0x1000, v{vO0}
          s_add_u32 s{sT[1]}, s{sT[1]}, {WS_QP}
          s_mov_b32 s{sSpin}, {SPIN}
          {"s_nop 0" if bhint else f"s_cmp_eq_u32 s{sBr}, 0"}
          {"s_nop 0" if bhint else "s_cbranch_scc0 L_QC_poll"}
          v_and_b32 v{vT[0]}, 7, v{vLane}
          v_lshlrev_b32 v{vT[0]}, 10, v{vT[0]}""")
    a.label("L_QC_hint")
    if narrow: a("s_mov_b64 exec, 0xff")
    a(f"""buffer_load_dwordx4 v[{vRing}:{vRing+3}], v{vT[0]}, s[16:19], s{sT[1]} offen offset:1008 {ldf}
          s_waitcnt vmcnt(0)""")
    tagcheck([vRing], "L_QC_hint", "L_QC_hok", True, narrow, 24)
    a.label("L_QC_poll")
    for p in range(8):
        r = vRing + 4 * p
        if qser and p >= qser: a(f"s_waitcnt vmcnt({qser - 1})")
        a(f"buffer_load_dwordx4 v[{r}:{r+3}], v{vO0 + (p >> 2)}, s[16:19], s{sT[1]} offen offset:{(p & 3) * 1024} {ldf}")
    a("s_waitcnt vmcnt(0)")
    tagcheck([vRing + 4 * p for p in range(8)], "L_QC_poll", "L_QC_ok", patience=24)
    for p in range(1, 8):
        a(f"v_add_f32 v{vRing}, v{vRing}, v{vRing+4*p}\nv_add_f32 v{vRing+2}, v{vRing+2}, v{vRing+4*p+2}")
    a(f"""v_cvt_pk_bf16_f32 v{vT[0]}, v{vRing}, v{vRing+2}
          v_lshl_add_u32 v{vT[1]}, v{vC}, 2, v{vG}
          v_lshlrev_b32 v{vT[1]}, 2, v{vT[1]}
          v_add_u32 v{vT[1]}, s{sT[2]}, v{vT[1]}
          ds_write_b32 v{vT[1]}, v{vT[0]}""")
    ret()

    def kva_block():
        a(f"""s_lshr_b32 s{sT[0]}, s{sI}, 4
              s_lshl_b32 s{sT[0]}, s{sT[0]}, 3
              s_add_u32 s{sT[0]}, s{sT[0]}, s{sX}
              s_lshl_b32 s{sOff}, s{sT[0]}, 21
              s_and_b32 s{sT[0]}, s{sI}, 15
              s_lshl_b32 s{sT[0]}, s{sT[0]}, 15
              s_add_u32 s{sOff}, s{sOff}, s{sT[0]}
              s_add_u32 s{sOff}, s{sOff}, {6144*256}
              s_mov_b32 s14, 0x2000000""")
        addr_setup(pata, wxa)
        a(f"""s_mov_b32 s12, s{K_AK}
              s_mov_b32 s13, s{K_AK+1}
              s_mov_b32 s20, s{K_AV}
              s_mov_b32 s21, s{K_AV+1}
              s_mov_b32 s22, 0x2000000""")
        if kvdelay:
            a(f"s_cmp_eq_u32 s{sW}, 1\ns_cbranch_scc0 L_h_A3")
            qb_consume()
            a.label("L_h_A3")
            lds_wait(16, 1, "L_h_kvw", 2)
        order = [(G, s) for s in range(8) for G in (2, 3)] if kvi else [(G, s) for G in (2, 3) for s in range(8)]
        for G, s in ([] if abl_Akv else order):
            r = slot(G, s)
            if TH: a(f"s_waitcnt vmcnt({TH - 1})")
            va, imm = addr(s, pata)
            a(f"buffer_load_dwordx4 v[{r}:{r+3}], v{va}, s[{12 if G == 2 else 20}:{15 if G == 2 else 23}], s{sOff} offen offset:{imm} nt")
    a.label("L_helper2")
    if aearly: kva_block()
    if aearly == 2: a("s_barrier")
    consts()
    a(f"""s_mov_b32 s{sSel0}, 0x05040100
          s_mov_b32 s{sSel1}, 0x07060302
          v_lshlrev_b32 v{vO0}, 4, v{vLane}""")
    epoch_tag()
    if nodup: a(f"s_bitcmp1_b32 s{sW}, 0\ns_cbranch_scc1 L_h_qdone\ns_mov_b32 s{sHH}, 0")
    else: a(f"s_and_b32 s{sHH}, s{sW}, 1")
    a(f"s_waitcnt vmcnt({16 if aearly else 0})")
    stamp(1)
    a.label("L_h_qloop")
    for k in range(8): a(f"v_mov_b32 v{vAcc+k}, 0")
    call("L_WS0"); call("L_WS1"); call("L_RED8")
    a(f"""s_lshr_b32 s{sT[0]}, s{sW}, 1
          s_xor_b32 s{sT[0]}, s{sT[0]}, 1
          s_lshl_b32 s{sT[0]}, s{sT[0]}, 5
          s_add_u32 s{sT[0]}, s{sT[0]}, s{sH}
          s_lshl_b32 s{sT[0]}, s{sT[0]}, 1
          s_add_u32 s{sT[0]}, s{sT[0]}, s{sHH}
          s_lshl_b32 s{sT[0]}, s{sT[0]}, 3
          s_add_u32 s{sT[0]}, s{sT[0]}, s{sR}
          s_lshl_b32 s{sT[0]}, s{sT[0]}, 10
          s_add_u32 s{sT[0]}, s{sT[0]}, {WS_QP}
          v_mov_b32 v{vG4}, v{vAcc}
          v_mov_b32 v{vG4+1}, s{sTag}
          v_mov_b32 v{vG4+2}, v{vAcc+1}
          v_mov_b32 v{vG4+3}, s{sTag+1}
          """)
    if abl_Ast: a(f"s_cmp_eq_u32 s{sW}, 0\ns_cbranch_scc0 L_h_nost")
    a(f"buffer_store_dwordx4 v[{vG4}:{vG4+3}], v{vO0}, s[16:19], s{sT[0]} offen {stf}")
    if abl_dbl:
        a(f"s_add_u32 s{sT[0]}, s{sT[0]}, {8 << 20}\nbuffer_store_dwordx4 v[{vG4}:{vG4+3}], v{vO0}, s[16:19], s{sT[0]} offen {stf}")
    a.label("L_h_nost")
    if nodup:
        a(f"""v_mov_b32 v{vP}, v{vP+1}
              s_add_u32 s{sHH}, s{sHH}, 1
              s_cmp_lt_u32 s{sHH}, 2
              s_cbranch_scc1 L_h_qloop""")
    a.label("L_h_qdone")
    stamp(2)
    def qb_consume():
        a(f"""s_add_u32 s{sT[1]}, s{sHB}, 32
              s_lshl_b32 s{sT[1]}, s{sT[1]}, 1
              s_add_u32 s{sT[1]}, s{sT[1]}, s{sB}
              s_lshl_b32 s{sT[1]}, s{sT[1]}, 13
              s_mov_b32 s{sT[2]}, {L_QB}
              s_mov_b32 s{sBr}, 1""")
        call("L_QC")
        a(f"""v_mov_b32 v{vU[0]}, {L_CNT + 16}
              v_mov_b32 v{vU[1]}, 1
              ds_write_b32 v{vU[0]}, v{vU[1]}""")
    if not nodup or abl_noA:
        a(f"s_cmp_eq_u32 s{sW}, 0\ns_cbranch_scc0 L_h_A")
        qb_consume()
    a.label("L_h_A")
    if not nodup: stamp(3)
    if abl_noA: a(f"s_mov_b32 s{sBr}, 1\ns_branch L_FIN")
    if not aearly: kva_block()
    if late2 and NSTUB > 8:
        for k in range(8, NSTUB): a(f"s_cmp_eq_u32 s{sW}, {(k - 8 + 2) % 4}\ns_cbranch_scc1 L_stub{k}")
        a.label("L_back1")
    if nodup and not kvdelay:
        a(f"s_cmp_eq_u32 s{sW}, 1\ns_cbranch_scc0 L_h_A2")
        qb_consume()
        a.label("L_h_A2")
        stamp(3)
    a(f"""s_mov_b32 s{sBr}, 0
          s_lshl_b32 s{sU}, s{sX}, 2
          s_add_u32 s{sU}, s{sU}, s{sW}
          s_lshl_b32 s{sU}, s{sU}, 1
          s_lshr_b32 s{sT[0]}, s{sI}, 4
          s_add_u32 s{sU}, s{sU}, s{sT[0]}
          s_lshl_b32 s{sT[1]}, s{sU}, 13
          s_lshl_b32 s{sT[2]}, s{sW}, 8
          s_add_u32 s{sT[2]}, s{sT[2]}, {L_QA}""")
    if not abl_Apoll: call("L_QC")
    else: a("s_waitcnt vmcnt(0)")
    helper_sync(0, "L_hs0")
    a(f"s_mov_b32 s{sHH}, 0")
    if abl_Acomp: a("s_branch L_A_done")
    a.label("L_A_loop")
    a(f"""s_lshl_b32 s{sT[0]}, s{sHH}, 8
          v_lshlrev_b32 v{vT[0]}, 4, v{vC}
          v_add_u32 v{vT[0]}, s{sT[0]}, v{vT[0]}
          ds_read_b128 v[{vQ}:{vQ+3}], v{vT[0]} offset:{L_QA}
          s_waitcnt lgkmcnt(0)""")
    call("L_KB2")
    a(f"v_mov_b32 v{vS+1}, v{vZA}\nv_mov_b32 v{vS}, v{vZA}")
    round_scores(vS, vS + 1, vT[0])
    a(f"v_mov_b32 v{vM}, v{vS}")
    wave_allreduce("v_max_f32", vM, vT[0])
    a(f"""v_sub_f32 v{vS}, v{vS}, v{vM}
          v_mul_f32 v{vS}, s{sLog2e}, v{vS}
          v_exp_f32 v{vS}, v{vS}
          v_mul_f32 v{vL}, 0.5, v{vS}
          v_cvt_pk_bf16_f32 v{vP+1}, v{vS}, 0""")
    wave_allreduce("v_add_f32", vL, vT[0])
    for k in range(8): a(f"v_mov_b32 v{vAcc+k}, 0")
    call("L_WS3L"); call("L_RED8")
    a(f"""s_lshl_b32 s{sT[0]}, s{sHH}, 2
          s_add_u32 s{sT[0]}, s{sT[0]}, s{sW}
          s_lshl_b32 s{sT[1]}, s{sT[0]}, 9
          s_lshl_b32 s{sT[0]}, s{sT[0]}, 3
          v_lshlrev_b32 v{vT[0]}, 3, v{vLane}
          v_add_u32 v{vT[0]}, s{sT[1]}, v{vT[0]}
          v_mov_b32 v{vT[1]}, s{sT[0]}
          ds_write_b64 v{vT[0]}, v[{vAcc}:{vAcc+1}] offset:{L_OA}
          s_mov_b64 exec, 1
          ds_write_b64 v{vT[1]}, v[{vM}:{vM+1}] offset:{L_MLA}
          s_mov_b64 exec, -1
          s_add_u32 s{sHH}, s{sHH}, 1
          s_cmp_lt_u32 s{sHH}, 4
          s_cbranch_scc1 L_A_loop""")
    a.label("L_A_done")
    helper_sync(4, "L_hs1")
    a(f"""s_lshl_b32 s{sT[0]}, s{sW}, 5
          v_mov_b32 v{vT[1]}, s{sT[0]}
          s_lshl_b32 s{sT[1]}, s{sW}, 11
          v_lshlrev_b32 v{vT[0]}, 3, v{vLane}
          v_add_u32 v{vT[0]}, s{sT[1]}, v{vT[0]}
          ds_read_b128 v[{R0}:{R0+3}], v{vT[1]} offset:{L_MLA}
          ds_read_b128 v[{R0+4}:{R0+7}], v{vT[1]} offset:{L_MLA+16}""")
    for k in range(4): a(f"ds_read_b64 v[{R0+8+2*k}:{R0+9+2*k}], v{vT[0]} offset:{L_OA + 512*k}")
    a(f"""s_waitcnt lgkmcnt(0)
          v_max3_f32 v{vM}, v{R0}, v{R0+2}, v{R0+4}
          v_max_f32 v{vM}, v{vM}, v{R0+6}""")
    for k in range(4): a(f"v_sub_f32 v{R0+2*k}, v{R0+2*k}, v{vM}")
    for k in range(4): a(f"v_mul_f32 v{R0+2*k}, s{sLog2e}, v{R0+2*k}")
    for k in range(4): a(f"v_exp_f32 v{R0+2*k}, v{R0+2*k}")
    a(f"""v_mul_f32 v{vL}, v{R0}, v{R0+1}
          v_mul_f32 v{vAcc}, v{R0}, v{R0+8}
          v_mul_f32 v{vAcc+1}, v{R0}, v{R0+9}""")
    for k in range(1, 4):
        a(f"""v_fmac_f32 v{vL}, v{R0+2*k}, v{R0+2*k+1}
              v_fmac_f32 v{vAcc}, v{R0+2*k}, v{R0+8+2*k}
              v_fmac_f32 v{vAcc+1}, v{R0+2*k}, v{R0+9+2*k}""")
    a(f"""s_lshl_b32 s{sPub}, s{sU}, 4
          s_and_b32 s{sT[0]}, s{sI}, 15
          s_add_u32 s{sPub}, s{sPub}, s{sT[0]}
          s_mul_i32 s{sPub}, s{sPub}, {REC}
          s_add_u32 s{sPub}, s{sPub}, {WS_PART}
          s_mov_b32 s{sPubO}, s{sPub}
          s_mov_b32 s{sShift}, 4""")
    if not abl_Ast: call("L_PUBPART"); call("L_PUBML")
    stamp(4)

    a.label("L_FIN")
    a(f"""s_cmp_eq_u32 s{sBr}, 0
          s_cselect_b32 s12, s{K_AWO}, s{K_BWO}
          s_cselect_b32 s13, s{K_AWO+1}, s{K_BWO+1}
          s_cselect_b32 s{sH}, s{sHA}, s{sHB}
          s_mov_b32 s14, 0x400000
          v_lshlrev_b32 v{vO0}, 13, v{vG}
          v_lshl_add_u32 v{vO0}, v{vC}, 3, v{vO0}
          v_add_u32 v{vO1}, 0x1000, v{vO0}
          s_lshl_b32 s{sOff}, s{sH}, 2
          s_add_u32 s{sOff}, s{sOff}, s{sW}
          s_lshl_b32 s{sOff}, s{sOff}, 15
          s_lshl_b32 s{sT[0]}, s{sR}, 7
          s_add_u32 s{sOff}, s{sOff}, s{sT[0]}""")
    PB = vRing
    vA0 = vLo
    a(f"""s_lshl_b32 s{sU}, s{sBr}, 5
          s_add_u32 s{sU}, s{sU}, s{sH}
          s_mul_i32 s{sT[1]}, s{sU}, {32 * REC}
          s_add_u32 s{sT[1]}, s{sT[1]}, {WS_PART}
          v_and_b32 v{vT[2]}, 31, v{vLane}
          v_mul_u32_u24 v{vT[3]}, {REC}, v{vT[2]}
          s_mov_b32 s{sSpin}, {SPIN}
          s_cmp_eq_u32 s{sBr}, 0
          s_cbranch_scc0 L_F_addrB
          s_lshl_b32 s{sT[0]}, s{sW}, 6
          s_add_u32 s{sP[0]}, s{sT[1]}, s{sT[0]}
          s_add_u32 s{sP[1]}, s{sP[0]}, 256
          s_add_u32 s{sP[2]}, s{sP[0]}, {16 * REC}
          s_add_u32 s{sP[3]}, s{sP[0]}, {16 * REC + 256}
          v_mul_u32_u24 v{vA0}, {REC}, v{vC}
          v_lshl_add_u32 v{vA0}, v{vG}, 4, v{vA0}""")
    if abl_Apoll: a(f"s_mov_b32 s{sBr}, 1\ns_branch L_FIN")
    a("s_branch L_F_ml0")
    a.label("L_F_addrB")
    a(f"""s_lshl_b32 s{sP[0]}, s{sH}, 14
          s_lshl_b32 s{sT[0]}, s{sW}, 8
          s_add_u32 s{sP[0]}, s{sP[0]}, s{sT[0]}
          s_add_u32 s{sP[0]}, s{sP[0]}, {WS_PB}
          s_add_u32 s{sP[1]}, s{sP[0]}, 1024
          s_add_u32 s{sP[2]}, s{sP[0]}, 8192
          s_add_u32 s{sP[3]}, s{sP[0]}, 9216
          v_lshrrev_b32 v{vA0}, 2, v{vC}
          v_lshlrev_b32 v{vA0}, 11, v{vA0}
          v_and_b32 v{vT[0]}, 3, v{vC}
          v_lshl_add_u32 v{vA0}, v{vT[0]}, 4, v{vA0}
          v_lshl_add_u32 v{vA0}, v{vG}, 6, v{vA0}
          s_waitcnt lgkmcnt(0)""")
    stamp(6)
    a("s_barrier")
    if ya == "mid" and not abl_noA:
        a(f"""s_cmp_eq_u32 s{sW}, 3
              s_cbranch_scc0 L_F_noya
              s_mov_b32 s{sT[3]}, s{sT[1]}
              s_mov_b32 s{sBr}, 0""")
        call("L_PUBY")
        a(f"s_mov_b32 s{sBr}, 1\ns_mov_b32 s{sT[1]}, s{sT[3]}\nL_F_noya:")
    if rank:
        a(f"s_cmp_eq_u32 s{sW}, 0\ns_cbranch_scc0 L_F_ml0")
        if rank == "m":
            a(f"""s_lshl_b32 s{sT[0]}, s{sX}, 12
                  s_add_u32 s{sT[0]}, s{sT[0]}, {WS_MK}
                  v_and_b32 v{vU[0]}, 31, v{vLane}
                  v_lshlrev_b32 v{vU[0]}, 7, v{vU[0]}
                  v_add_u32 v{vU[1]}, {WS_GM}, v{vU[0]}
                  v_add_u32 v{vU[0]}, s{sT[0]}, v{vU[0]}
                  s_lshl_b32 s{sT[3]}, s{sI}, 7
                  s_add_u32 s{sT[3]}, s{sT[3]}, s{sT[0]}
                  v_mov_b32 v{vG4+2}, s{sTag}
                  v_mov_b32 v{vG4+3}, s{sTag+1}""")
            if gw: a(f"s_mov_b32 exec_lo, 0\nv_mov_b32 v{vU[0]}, v{vU[1]}\ns_mov_b32 exec_lo, -1")
            else: a("s_mov_b32 exec_hi, 0")
            if not gdelay: a(f"buffer_load_dword v{vG4}, v{vU[0]}, s[16:19], 0 offen {gld}")
            a(f"""v_lshlrev_b32 v{vU[1]}, 3, v{vLane}
                  s_mov_b64 exec, 0xffff
                  buffer_store_dwordx2 v[{vG4+2}:{vG4+3}], v{vU[1]}, s[16:19], s{sT[3]} offen""")
            if gw or gx:
                a(f"""s_cmp_eq_u32 s{sR}, 5
                      s_cbranch_scc0 L_F_nogm
                      s_lshl_b32 s{sT[3]}, s{sHA}, 7
                      s_add_u32 s{sT[3]}, s{sT[3]}, {WS_GM}
                      buffer_store_dwordx2 v[{vG4+2}:{vG4+3}], v{vU[1]}, s[16:19], s{sT[3]} offen sc1
                      L_F_nogm:""")
            a("s_mov_b64 exec, -1")
            if gdelay: a(f"s_sleep {gdelay}\nbuffer_load_dword v{vG4}, v{vU[0]}, s[16:19], 0 offen {gld}")
            a(f"""s_waitcnt vmcnt(0)
                  v_cmp_eq_u32 vcc, s{sTag}, v{vG4}
                  s_nop 1
                  s_bcnt1_i32_b32 s{sT[0]}, vcc_lo""")
            if gw:
                a(f"s_bcnt1_i32_b32 s{sT[3]}, vcc_hi")
                if diag: a(f"s_mov_b32 s56, s{sT[3]}\ns_mov_b32 s57, 0")
                a(f"""s_mul_i32 s{sT[3]}, s{sT[3]}, {gw}
                      s_mul_i32 s{sT[0]}, s{sT[0]}, {4 - gw}
                      s_add_u32 s{sT[0]}, s{sT[0]}, s{sT[3]}
                      s_lshl_b32 s{sT[0]}, s{sT[0]}, 1
                      s_add_u32 s{sT[0]}, s{sT[0]}, {gbias}
                      s_min_u32 s{sT[0]}, s{sT[0]}, 255""")
            else:
                if gx:
                    a(f"""s_lshl_b32 s98, s{sX}, 7
                          s_add_u32 s98, s98, {WS_XL}
                          s_sub_u32 s{sT[3]}, s{sT[0]}, {glo}
                          s_cmp_le_u32 s{sT[3]}, {ghi - glo}
                          s_cbranch_scc0 L_F_gx1
                          {"s_branch L_F_gx1" if gnoread else ""}
                          v_lshlrev_b32 v{vU[0]}, 7, v{vLane}
                          s_mov_b32 s{sT[3]}, {WS_GM}
                          s_mov_b32 exec_hi, 0
                          buffer_load_dword v{vG4}, v{vU[0]}, s[16:19], s{sT[3]} offen sc1
                          s_mov_b32 exec_hi, -1
                          s_waitcnt vmcnt(0)
                          v_cmp_eq_u32 vcc, s{sTag}, v{vG4}
                          s_nop 1
                          s_bcnt1_i32_b32 s{sT[3]}, vcc_lo
                          v_mov_b32 v{vG4+3}, s{sT[3]}
                          s_mov_b64 exec, 0xffff
                          buffer_store_dwordx2 v[{vG4+2}:{vG4+3}], v{vU[1]}, s[16:19], s98 offen
                          s_mov_b64 exec, -1
                          L_F_gx1:
                          s_mov_b32 s99, {gpoll}
                          v_mov_b32 v{vU[0]}, 0
                          L_F_gx2:
                          s_mov_b64 exec, 1
                          buffer_load_dwordx2 v[{vG4}:{vG4+1}], v{vU[0]}, s[16:19], s98 offen nt
                          s_mov_b64 exec, -1
                          s_waitcnt vmcnt(0)
                          v_readfirstlane_b32 s{sT[3]}, v{vG4}
                          v_readfirstlane_b32 s100, v{vG4+1}
                          s_cmp_eq_u32 s{sT[3]}, s{sTag}
                          s_cbranch_scc1 L_F_gx3
                          s_mov_b32 s100, 20
                          s_sleep 16
                          s_sub_u32 s99, s99, 1
                          s_cbranch_scc0 L_F_gx2
                          L_F_gx3:
                          s_min_u32 s100, s100, 31""")
                    if diag: a(f"s_mov_b32 s56, s100\ns_mov_b32 s57, 0")
                    a(f"""s_and_b32 s100, s100, 28
                          s_lshr_b32 s100, {xtab}, s100
                          s_and_b32 s100, s100, 15""")
                a(f"s_lshl_b32 s{sT[0]}, s{sT[0]}, 3\ns_min_u32 s{sT[0]}, s{sT[0]}, 255")
        elif rank == "s":
            a(f"""s_mov_b32 s{sT[0]}, 1
                  s_atomic_add s{sT[0]}, s[{K_DBG}:{K_DBG+1}], 0 glc
                  s_waitcnt lgkmcnt(0)""")
        else:
            srd(20, K_DBG, 256)
            a(f"""v_mov_b32 v{vU[0]}, 0
                  v_mov_b32 v{vU[1]}, 1
                  s_mov_b64 exec, 1
                  buffer_atomic_add v{vU[1]}, v{vU[0]}, s[20:23], 0 offen sc0
                  s_mov_b64 exec, -1
                  s_waitcnt vmcnt(0)
                  v_readfirstlane_b32 s{sT[0]}, v{vU[1]}""")
        if diag: a(f"s_mov_b32 s58, s{sT[0]}\ns_mov_b32 s59, 0")
        if rtab == "table":
            a(f"s_load_dword s{sT[3]}, s[{K_WS}:{K_WS+1}], 49152\ns_waitcnt lgkmcnt(0)")
        else: a(f"s_mov_b32 s{sT[3]}, {rtab}")
        a(f"""s_lshr_b32 s{sT[0]}, s{sT[0]}, 3
              s_and_b32 s{sT[0]}, s{sT[0]}, 28
              s_lshr_b32 s{sT[0]}, s{sT[3]}, s{sT[0]}
              s_and_b32 s{sT[0]}, s{sT[0]}, 15
              s_add_u32 s{sT[0]}, s{sT[0]}, 16
              s_lshr_b32 s{sT[3]}, s{sX}, 2
              s_mul_i32 s{sT[3]}, s{sT[3]}, {xb}
              s_add_u32 s{sT[0]}, s{sT[0]}, {"s100" if gx else f"s{sT[3]}"}
              v_mov_b32 v{vU[0]}, {L_CNT + 20}
              v_mov_b32 v{vU[1]}, s{sT[0]}
              ds_write_b32 v{vU[0]}, v{vU[1]}""")
    def wo_loads():
        for e in range(8):
            a(f"buffer_load_dwordx2 v[{vRaw+2*e}:{vRaw+2*e+1}], v{vO0 + (e >> 2)}, s[12:15], s{sOff} offen offset:{(e & 3) * 1024} nt")
    def part_loads():
        for k in range(4):
            r = PB + 4 * k
            a(f"buffer_load_dwordx4 v[{r}:{r+3}], v{vA0}, s[16:19], s{sP[k]} offen {pld}")
    def perms():
        for ct in range(4):
            for k, (ea, eb) in enumerate(((0, 1), (4, 5), (2, 3), (6, 7))):
                a(f"v_perm_b32 v{vBop+4*ct+k}, v{vRaw+2*eb+(ct>>1)}, v{vRaw+2*ea+(ct>>1)}, s{sSel0 + (ct & 1)}")
    a.label("L_F_ml0")
    if wo_at == "mid": wo_loads()
    if wo_at == "touch":
        a(f"s_mov_b64 exec, 1\nbuffer_load_dword v{vRaw}, v{vO0}, s[12:15], s{sOff} offen nt\ns_mov_b64 exec, -1")
    a.label("L_F_mlpoll")
    if narrow: a("s_mov_b32 exec_hi, 0")
    a(f"""buffer_load_dwordx4 v[{vG4}:{vG4+3}], v{vT[3]}, s[16:19], s{sT[1]} offen offset:512 {ldf}
          s_waitcnt vmcnt(0)""")
    tagcheck([vG4], "L_F_mlpoll", "L_F_mlok", "always", narrow, 24)
    if wo_at == "mid": perms()
    a(f"v_mov_b32 v{vM}, v{vG4}")
    row_allreduce("v_max_f32", [vM])
    a(f"""v_sub_f32 v{vG4}, v{vG4}, v{vM}
          v_mul_f32 v{vG4}, s{sLog2e}, v{vG4}
          v_exp_f32 v{vG4}, v{vG4}
          v_mul_f32 v{vG4}, v{vG4}, v{vG4+2}
          v_mov_b32 v{vL}, v{vG4}""")
    row_allreduce("v_add_f32", [vL])
    a(f"""v_rcp_f32 v{vL}, v{vL}
          s_lshl_b32 s{sT[0]}, s{sW}, 7
          v_lshl_add_u32 v{vT[0]}, v{vT[2]}, 2, s{sT[0]}
          v_mul_f32 v{vG4}, v{vG4}, v{vL}
          v_lshl_add_u32 v{vT[1]}, v{vG}, 4, s{sT[0]}
          s_mov_b32 exec_hi, 0
          ds_write_b32 v{vT[0]}, v{vG4} offset:{L_WT}
          s_mov_b32 exec_hi, -1
          ds_read_b128 v[{vW}:{vW+3}], v{vT[1]} offset:{L_WT}
          ds_read_b128 v[{vW+4}:{vW+7}], v{vT[1]} offset:{L_WT+64}
          s_lshl_b32 s{sT[0]}, s{sBr}, 2
          s_add_u32 s{sT[0]}, s{sT[0]}, s{sW}
          s_lshl_b32 s{sT[0]}, s{sT[0]}, 9
          v_lshrrev_b32 v{vT[0]}, 1, v{vG}
          v_lshlrev_b32 v{vT[0]}, 5, v{vT[0]}
          v_and_b32 v{vT[1]}, 1, v{vG}
          v_lshl_add_u32 v{vT[1]}, v{vC}, 1, v{vT[1]}
          v_add_lshl_u32 v{vT[0]}, v{vT[0]}, v{vT[1]}, 3
          v_add_u32 v{vT[0]}, s{sT[0]}, v{vT[0]}
          v_mov_b32 v{vHi}, v{vT[0]}
          s_mov_b32 s{sSpin}, {SPIN}
          """)
    if fastf2:
        a(f"""v_mov_b32 v{vS}, {L_CNT + 8}
              v_mov_b32 v{vS+1}, 1
              v_lshlrev_b32 v{vS+2}, 3, v{vLane}
              v_lshlrev_b32 v{vS+3}, 4, v{vLane}
              v_lshrrev_b32 v{vS+5}, 5, v{vLane}
              v_lshlrev_b32 v{vS+4}, 10, v{vT[2]}
              v_lshl_add_u32 v{vS+4}, v{vS+5}, 4, v{vS+4}
              v_lshlrev_b32 v{vS+5}, 2, v{vS+5}
              v_bfe_u32 v{vS+6}, v{vLane}, 3, 1
              v_lshl_add_u32 v{vS+5}, v{vS+6}, 10, v{vS+5}
              v_bfe_u32 v{vS+6}, v{vLane}, 2, 1
              v_lshl_add_u32 v{vS+5}, v{vS+6}, 1, v{vS+5}
              v_mov_b32 v{vQ+1}, s{sTag}
              v_mov_b32 v{vQ+3}, s{sTag+1}
              s_add_u32 s98, s{sR}, 8
              s_lshl_b32 s98, s98, 5
              s_add_u32 s98, s98, s{sHA}
              s_lshl_b32 s98, s98, 10
              s_add_u32 s98, s98, {WS_Y}
              s_lshl_b32 s99, s{sX}, 15
              s_lshl_b32 s{sT[0]}, s{sI}, 5
              s_add_u32 s99, s99, s{sT[0]}
              s_add_u32 s99, s99, {WS_Y}
              s_add_u32 s{sT[3]}, s99, {8 << 15}
              s_lshr_b32 s{sT[2]}, s{sI}, 4
              s_lshl_b32 s{sT[2]}, s{sT[2]}, 11
              s_lshl_b32 s{sT[0]}, s{sX}, 7
              s_add_u32 s{sT[2]}, s{sT[2]}, s{sT[0]}
              s_and_b32 s{sT[0]}, s{sI}, 15
              s_lshl_b32 s{sT[0]}, s{sT[0]}, 3
              s_add_u32 s{sT[2]}, s{sT[2]}, s{sT[0]}""")
        srd(20, K_OUT, 4096)
    a(f"s_cmp_eq_u32 s{sBr}, 0\ns_cbranch_scc1 {'L_F_goA' if aser else 'L_F_go'}")
    if ya == "flag":
        a(f"s_cmp_eq_u32 s{sW}, 3\ns_cbranch_scc0 L_F_b2")
        lds_wait(24, 1, "L_F_yaw", 4)
        a(f"s_mov_b32 s{sBr}, 0")
        call("L_PUBY")
        a(f"s_mov_b32 s{sBr}, 1\ns_mov_b32 s{sSpin}, {SPIN}\nL_F_b2:")
    a("s_barrier")
    tstamp(1)
    if abl_notail: a("s_branch L_exit")
    if ya == "h3" and not abl_noA:
        a(f"""s_cmp_eq_u32 s{sW}, 3
              s_cbranch_scc0 L_F_go
              s_mov_b32 s{sBr}, 0""")
        call("L_PUBY")
        a(f"s_mov_b32 s{sBr}, 1")
    a.label("L_F_go")
    if wo_at == "mid":
        a("s_mov_b64 vcc, -1")
    else:
        wo_loads(); part_loads()
        a("s_waitcnt vmcnt(4)")
        tstamp(2)
        perms()
        a("s_branch L_F_pwait")
    a.label("L_F_ppoll")
    if masked: a("s_mov_b64 exec, vcc")
    part_loads()
    if masked: a("s_mov_b64 exec, -1")
    a.label("L_F_pwait")
    a("s_waitcnt vmcnt(0)")
    tagcheck([PB + 4 * k for k in range(4)], "L_F_ppoll", "L_F_pok", True)
    tstamp(3)
    for b in range(2):
        a(f"v_mov_b32 v{PB+8*b+1}, v{PB+8*b+4}\nv_mov_b32 v{PB+8*b+3}, v{PB+8*b+6}")
    if fastf2:
        D = vRing + 32
        a("s_waitcnt lgkmcnt(0)")
        def fm(k):
            b = k // 4; d = D + 4 * k
            a(f"v_mul_f32 v{vAcc+k}, v{vW+4*b}, v{d}")
            for i in range(1, 4): a(f"v_fmac_f32 v{vAcc+k}, v{vW+4*b+i}, v{d+i}")
        order = [0, 4, 1, 5, 2, 6, 3, 7]
        for n, k in enumerate(order):
            b, ct = k // 4, k % 4; d = D + 4 * k
            a(f"v_mfma_f32_16x16x32_bf16 v[{d}:{d+3}], v[{PB+8*b}:{PB+8*b+3}], v[{vBop+4*ct}:{vBop+4*ct+3}], 0")
            if n >= f2lag: fm(order[n - f2lag])
        for n in range(8 - f2lag, 8): fm(order[n])
        for e in range(4): a(f"v_permlane32_swap_b32 v{vAcc+e}, v{vAcc+e+4}")
        for e in range(4): a(f"v_add_f32 v{vAcc+e}, v{vAcc+e}, v{vAcc+e+4}")
        for e in range(2): a(f"v_permlane16_swap_b32 v{vAcc+e}, v{vAcc+e+2}")
        for e in range(2): a(f"v_add_f32 v{vAcc+e}, v{vAcc+e}, v{vAcc+e+2}")
        a(f"""ds_write_b64 v{vHi}, v[{vAcc}:{vAcc+1}] offset:{L_YR}
              s_cmp_eq_u32 s{sBr}, 0
              s_mov_b32 s{sBr}, 1""")
        if diag:
            a("s_cbranch_scc0 L_F_tail"); stamp(5); a("s_branch L_FIN"); a.label("L_F_tail")
        else:
            a("s_cbranch_scc1 L_FIN")
        a(f"""s_mov_b64 exec, 1
              ds_add_rtn_u32 v{vU[2]}, v{vS}, v{vS+1}
              s_mov_b64 exec, -1""")
        for k in range(4): a(f"ds_read_b64 v[{vt+2*k}:{vt+2*k+1}], v{vS+2} offset:{L_YR + 2048 + 512*k}")
        a(f"""s_mov_b32 s{sSpin}, {SPIN}
              s_mov_b64 vcc, -1
              s_waitcnt lgkmcnt(0)
              v_readfirstlane_b32 s{sT[0]}, v{vU[2]}
              v_add_f32 v{vQ}, v{vt}, v{vt+2}
              v_add_f32 v{vQ+2}, v{vt+1}, v{vt+3}
              v_add_f32 v{vt+4}, v{vt+4}, v{vt+6}
              v_add_f32 v{vt+5}, v{vt+5}, v{vt+7}
              s_cmp_eq_u32 s{sT[0]}, 3
              s_cbranch_scc0 {"L_F_nl" if f3first else "L_exit"}
              v_add_f32 v{vQ}, v{vQ}, v{vt+4}
              v_add_f32 v{vQ+2}, v{vQ+2}, v{vt+5}
              buffer_store_dwordx4 v[{vQ}:{vQ+3}], v{vS+3}, s[16:19], s98 offen {yst}""")
        tstamp(4)
        if f3first:
            a(f"s_branch L_exit\nL_F_nl:\ns_cmp_eq_u32 s{sT[0]}, {f3first - 1}\ns_cbranch_scc0 L_exit")
        a.label("L_F_ypoll")
        a("s_mov_b64 exec, vcc")
        a(f"buffer_load_dwordx4 v[{R0+4}:{R0+7}], v{vS+4}, s[16:19], s{sT[3]} offen {yld}")
        if not abl_noA: a(f"buffer_load_dwordx4 v[{R0}:{R0+3}], v{vS+4}, s[16:19], s99 offen {yld}")
        a("s_mov_b64 exec, -1\ns_waitcnt vmcnt(0)")
        tagcheck([R0 + 4] if abl_noA else [R0, R0 + 4], "L_F_ypoll", "L_F_yok")
        tstamp(5)
        a(f"""v_add_f32_dpp v{R0}, v{R0}, v{R0} row_mirror row_mask:0xf bank_mask:0x3
              v_add_f32_dpp v{R0+2}, v{R0+2}, v{R0+2} row_mirror row_mask:0xf bank_mask:0x3
              v_add_f32_dpp v{R0}, v{R0+4}, v{R0+4} row_mirror row_mask:0xf bank_mask:0xc
              v_add_f32_dpp v{R0+2}, v{R0+6}, v{R0+6} row_mirror row_mask:0xf bank_mask:0xc
              v_add_f32_dpp v{R0}, v{R0}, v{R0} row_half_mirror row_mask:0xf bank_mask:0x5
              v_add_f32_dpp v{R0}, v{R0+2}, v{R0+2} row_half_mirror row_mask:0xf bank_mask:0xa
              v_add_f32_dpp v{R0}, v{R0}, v{R0} quad_perm:[2,3,0,1] row_mask:0xf bank_mask:0xf
              v_add_f32_dpp v{R0}, v{R0}, v{R0} quad_perm:[1,0,3,2] row_mask:0xf bank_mask:0xf
              v_mov_b32 v{R0+1}, v{R0}
              v_permlane16_swap_b32 v{R0}, v{R0+1}
              v_add_f32 v{R0}, v{R0}, v{R0+1}
              v_cvt_pk_bf16_f32 v{R0}, v{R0}, v{R0}
              s_mov_b32 exec_lo, 0x1111
              s_mov_b32 exec_hi, 0x1111
              buffer_store_short v{R0}, v{vS+5}, s[20:23], s{sT[2]} offen
              s_mov_b64 exec, -1""")
    else:
        D = vRing + 32
        for b in range(2):
            for ct in range(4):
                d = D + (b * 4 + ct) * 4
                a(f"v_mfma_f32_16x16x32_bf16 v[{d}:{d+3}], v[{PB+8*b}:{PB+8*b+3}], v[{vBop+4*ct}:{vBop+4*ct+3}], 0")
        a("s_waitcnt lgkmcnt(0)")
        for i in range(4):
            for b in range(2):
                for ct in range(4):
                    d = D + (b * 4 + ct) * 4
                    if i == 0: a(f"v_mul_f32 v{vAcc+b*4+ct}, v{vW+4*b}, v{d}")
                    else: a(f"v_fmac_f32 v{vAcc+b*4+ct}, v{vW+4*b+i}, v{d+i}")
        call("L_RED8")
        a(f"""ds_write_b64 v{vHi}, v[{vAcc}:{vAcc+1}] offset:{L_YR}
              s_cmp_eq_u32 s{sBr}, 0
              s_mov_b32 s{sBr}, 1""")
        if diag:
            a("s_cbranch_scc0 L_F_tail"); stamp(5); a("s_branch L_FIN"); a.label("L_F_tail")
        else:
            a("s_cbranch_scc1 L_FIN")
        a(f"""v_mov_b32 v{vU[0]}, {L_CNT + 8}
              v_mov_b32 v{vU[1]}, 1
              s_mov_b64 exec, 1
              ds_add_rtn_u32 v{vU[2]}, v{vU[0]}, v{vU[1]}
              s_mov_b64 exec, -1
              s_waitcnt lgkmcnt(0)
              v_readfirstlane_b32 s{sT[0]}, v{vU[2]}
              s_cmp_eq_u32 s{sT[0]}, 3
              s_cbranch_scc0 L_exit""")
        call("L_PUBY")
        if ya == "last" and not abl_noA:
            a(f"s_mov_b32 s{sBr}, 0"); call("L_PUBY"); a(f"s_mov_b32 s{sBr}, 1")
        tstamp(4)
        a(f"""s_lshl_b32 s{sT[1]}, s{sX}, 15
              s_lshl_b32 s{sT[0]}, s{sI}, 5
              s_add_u32 s{sT[1]}, s{sT[1]}, s{sT[0]}
              s_add_u32 s{sT[1]}, s{sT[1]}, {WS_Y}
              s_add_u32 s{sT[3]}, s{sT[1]}, {8 << 15}
              v_lshrrev_b32 v{vT[0]}, 5, v{vLane}
              v_lshlrev_b32 v{vT[1]}, 10, v{vT[2]}
              v_lshl_add_u32 v{vT[1]}, v{vT[0]}, 4, v{vT[1]}
              v_lshlrev_b32 v{vT[0]}, 2, v{vT[0]}
              s_lshr_b32 s{sT[2]}, s{sI}, 4
              s_lshl_b32 s{sT[2]}, s{sT[2]}, 11
              s_lshl_b32 s{sT[0]}, s{sX}, 7
              s_add_u32 s{sT[2]}, s{sT[2]}, s{sT[0]}
              s_and_b32 s{sT[0]}, s{sI}, 15
              s_lshl_b32 s{sT[0]}, s{sT[0]}, 3
              s_add_u32 s{sT[2]}, s{sT[2]}, s{sT[0]}
              s_mov_b32 s{sSpin}, {SPIN}""")
        srd(20, K_OUT, 4096)
        if masked: a("s_mov_b64 vcc, -1")
        a.label("L_F_ypoll")
        if masked: a("s_mov_b64 exec, vcc")
        a(f"buffer_load_dwordx4 v[{R0+4}:{R0+7}], v{vT[1]}, s[16:19], s{sT[3]} offen {yld}")
        if not abl_noA: a(f"buffer_load_dwordx4 v[{R0}:{R0+3}], v{vT[1]}, s[16:19], s{sT[1]} offen {yld}")
        if masked: a("s_mov_b64 exec, -1")
        a("s_waitcnt vmcnt(0)")
        tagcheck([R0 + 4] if abl_noA else [R0, R0 + 4], "L_F_ypoll", "L_F_yok")
        tstamp(5)
        row_allreduce("v_add_f32", [R0, R0 + 2, R0 + 4, R0 + 6])
        for k in range(4): a(f"v_mov_b32 v{R0+2*k+1}, v{R0+2*k}")
        for k in range(4): a(f"v_permlane16_swap_b32 v{R0+2*k}, v{R0+2*k+1}")
        for k in range(4): a(f"v_add_f32 v{R0+2*k}, v{R0+2*k}, v{R0+2*k+1}")
        a(f"""v_cvt_pk_bf16_f32 v{R0}, v{R0}, v{R0+2}
              v_cvt_pk_bf16_f32 v{R0+4}, v{R0+4}, v{R0+6}
              s_mov_b32 exec_lo, 1
              s_mov_b32 exec_hi, 1
              buffer_store_dword v{R0}, v{vT[0]}, s[20:23], s{sT[2]} offen
              buffer_store_dword v{R0+4}, v{vT[0]}, s[20:23], s{sT[2]} offen offset:1024
              s_mov_b64 exec, -1""")
    a(f"""s_nop 0
          s_cmp_eq_u32 s2, 0
          s_cbranch_scc0 L_exit
          v_mov_b32 v{vT[0]}, {WS_EPOCH}
          v_mov_b32 v{vT[1]}, s{sEp}
          s_mov_b64 exec, 1
          buffer_store_dword v{vT[1]}, v{vT[0]}, s[16:19], 0 offen sc1
          s_mov_b64 exec, -1""")

    if aser:
        a("s_branch L_exit")
        a.label("L_F_goA")
        for k in range(4):
            r = PB + 4 * k
            a(f"buffer_load_dwordx4 v[{r}:{r+3}], v{vA0}, s[16:19], s{sP[k]} offen {pld}\ns_waitcnt vmcnt({aser - 1})")
        a("s_branch L_F_pwait")
    a.label("L_exit")
    if fixdur:
        a.label("L_fix")
        a(f"""s_memrealtime s[50:51]
              s_waitcnt lgkmcnt(0)
              s_sub_u32 s50, s50, s48
              s_cmp_lt_u32 s50, {fixdur}
              s_cbranch_scc1 L_fix""")
    if diag:
        stamp(7)
        a(f"""s_lshl_b32 s{sT[0]}, s2, 3
              s_add_u32 s{sT[0]}, s{sT[0]}, s{sWave}
              s_lshl_b32 s{sT[0]}, s{sT[0]}, 6
              s_add_u32 s{sT[0]}, s{sT[0]}, {STAMP_OFF}
              s_waitcnt vmcnt(0) lgkmcnt(0)
              v_mov_b32 v{vT[0]}, 0""")
        for k in range(16): a(f"v_mov_b32 v{vRing+k}, s{48+k}")
        a("s_mov_b64 exec, 1")
        for k in range(4): a(f"buffer_store_dwordx4 v[{vRing+4*k}:{vRing+4*k+3}], v{vT[0]}, s[16:19], s{sT[0]} offen offset:{16*k}")
    a.label("L_end")
    a("s_endpgm")

    body, nops = a.render(nstub=NSTUB if stubs else 0, total=NSTUB)
    head = open(f"cdna_kernels/{NAME}.s.ref").read().split("; Override launch")[0]
    txt = head + f"""; Emitted by a hand-written generator script (dev/gen.py). One persistent workgroup per CU, one launch.
;   workgroup j: x = j&7, i = j>>3, head h = 4x + (i>>3), batch (i>>2)&1, key split i&3, column slice r = i&7
;   waves 4-7 stream 2048 keys of branch-B K then V (32-slot register ring, bounded number of loads in flight),
;     exact per-wave softmax (true max), publish a normalised partial o plus (max, sum)
;   waves 0-3: q partials (64 rows of wq per workgroup), branch-A attention (128 keys x 4 heads per workgroup),
;     combination of the partials + output projection (MFMA) and the final sum over heads
;   hand-offs go through d_ws as 16-byte granules carrying a per-launch tag (epoch word in d_ws + 1); a consumer that
;     keeps missing data writes its L2 back, so results do not depend on where workgroups are placed
; @launch grid=(256,1,1) block=(512,1,1) lds={LDS_BYTES}
.amdgcn_target "amdgcn-amd-amdhsa--gfx950"
.text
.globl {NAME}_kernel
.p2align 12
.p2align 8
.type {NAME}_kernel,@function
{body}.section .rodata,"a"
.p2align 6
.amdhsa_kernel {NAME}_kernel
  .amdhsa_next_free_vgpr {NVGPR}
  .amdhsa_next_free_sgpr 102
  .amdhsa_accum_offset {NVGPR}
  .amdhsa_group_segment_fixed_size 0
  .amdhsa_kernarg_size 104
  .amdhsa_user_sgpr_count 2
  .amdhsa_user_sgpr_kernarg_segment_ptr 1
  .amdhsa_system_sgpr_workgroup_id_x 1
  .amdhsa_float_denorm_mode_32 3
.end_amdhsa_kernel
"""
    return txt, nops, a.code_bytes

if __name__ == "__main__":
    out = sys.argv[1]
    kw = json.loads(sys.argv[2]) if len(sys.argv) > 2 else {}
    txt, nops, nb = gen(**kw)
    open(out, "w").write(txt)
    print(out, "lines", txt.count("\n"), "auto nops", nops, "code bytes", nb)
```

```python
import sys, json
sys.path.insert(0, "dev")
from asmlib import Asm
NAME = "concat_heads__sliding_block_cached__mha_block_cached__decode"

WS_EPOCH, WS_Y, WS_QP, WS_PART, WS_PB = 0, 64 << 10, 1 << 20, 2 << 20, (3 << 20) + (512 << 10)
WS_MK = 16 << 10
WS_GM = 8 << 10
WS_XL = 4 << 10
REC = 640
WS_SIZE = 512 << 20
STAMP_OFF = 64 << 20
L_QB, L_QA, L_CNT, L_MLA, L_WT, L_OA, L_YR = 0, 256, 1280, 1408, 1536, 2048, 10240
LDS_BYTES = 16384
vLane, vO0, vO1 = 1, 2, 3
vT = [4, 5, 6, 7]
vQ = 8
vAcc = 12
vt = 20
vZ0, vZ1, vZA = 28, 29, 30
vP = 32
vLo, vHi = 34, 35
vS = 36
vG4 = 44
vM, vL, vC, vG = 48, 49, 50, 51
vU = [52, 53, 54, 55]
vW = 56
vRing = 64
vRaw = 192
vAd = 208
vBop = 208
NVGPR = 224
sWave, sW, sX, sI, sH, sB, sS, sR = 3, 4, 5, 6, 7, 8, 9, 10
sOff = 24
sT = [25, 26, 27, 11]
sTag = 28
sRet = 30
sEp = 32
sMc1, sMc0 = 34, 36
sScale, sLog2e, sHiMask = 38, 39, 40
sSpin, sBr, sHH = 41, 42, 43
sPub, sU = 44, 45
sSel0, sSel1 = 46, 47
sPubO, sShift = 90, 91
sCnt, sMask = 92, 93
sHA, sHB = 96, 97
sP = [92, 93, 94, 95]
K_AX, K_AK, K_AV, K_AWQ, K_AWO, K_BX, K_BK, K_BV, K_BWQ, K_BWO, K_OUT, K_DBG, K_WS = [64 + 2 * i for i in range(13)]
SPIN = 1 << 18

def slot(G, s): return vRing + (G * 8 + s) * 4

def gen(NSTUB=8, diag=False, bar0=True, asleep=32, stubs=True, abl_noA=False, abl_noq=False, abl_notail=False,
        TK=(5,5,5,5,5,5,5,6), TV=(16,), vfrom=7, TH=14, early_bar=False, masked=True, pre=-1, midbar=2, wo_at="mid", pat=2, pata=2, bperm=None, lag=2, nfast=4, endlag=3, midg=5, fastend=True, fastf2=True, f2lag=3, f3first=True, rank='m', rtab=1412571392, gw=0, gdelay=0, gld='nt', gbias=0, gx=False, glo=15, ghi=17, gpoll=4, xtab=0x33221100, gnoread=False, rfrom=2, rmax=6, nodup=True, bhint=False, hmap=2, ph=1, phm=2, wxa=5, kvi=False, wb=0, phb=(18, 17), aearly=False, g0free=False, table=False, xorph=False, phx=0, phs=0, latefree=0, pld="nt", ya="flag", tsleep=0, local=True, slow=128, perm=0, ldf="nt", yld="sc1", yst="sc1", sprio=0, abl_Apoll=False, abl_Acomp=False, abl_Akv=False, abl_Ast=False, narrow=True, aser=1, qser=4, n0=3, xb=1, lateslots=(), stublate=False, TF=None, kvdelay=0, TQ=0, latemask=0xf0, vboost=0, yag=15, late2=True, h2early=True, abl_dbl=False, fixdur=0):
    assert max(TK) <= 16 and max(TV) <= 16
    two = tuple(TK) != tuple(TV)
    def iss(c, G): call(f"L_ISS{'V' if (two and c >= vfrom) else 'K'}{G}")
    a = Asm()
    uid = [0]
    stf = "" if local else "sc1"
    def tstamp(i):
        if diag == 3: a(f"s_memrealtime s[{48+2*i}:{49+2*i}]")
    def stamp(i):
        if diag == 2 and i in (1, 2): return
        if diag: a(f"s_memrealtime s[{48+2*i}:{49+2*i}]")
        if diag == 2 and i == 0: a("s_memtime s[50:51]")
        if diag == 2 and i == 5: a("s_memtime s[52:53]")
    def srd(base, ptr, size):
        a(f"s_mov_b32 s{base}, s{ptr}\ns_mov_b32 s{base+1}, s{ptr+1}\ns_mov_b32 s{base+2}, {size}\ns_mov_b32 s{base+3}, 0x00020000")
    def addr(s, p):
        if p == 8: return (vAd + (s >> 2), (s & 3) * 1024)
        return (vAd + s // p, (s % p) * 1024)
    def addr_setup(p, wx=-1):
        if wx >= 0: a(f"s_lshr_b32 s{sT[0]}, s2, {wx}\ns_xor_b32 s{sT[0]}, s{sT[0]}, s{sW}\ns_and_b32 s{sT[0]}, s{sT[0]}, 3")
        a(f"""s_lshl_b32 s{sT[0]}, s{sT[0] if wx >= 0 else sW}, {10 + p.bit_length() - 1}
              v_lshlrev_b32 v{vAd}, 4, v{vLane}
              v_add_u32 v{vAd}, s{sT[0]}, v{vAd}""")
        if p == 8: a(f"v_add_u32 v{vAd+1}, 0x1000, v{vAd}")
        else:
            for k in range(1, 8 // p): a(f"v_add_u32 v{vAd+k}, {k * p * 4096}, v{vAd}")
    def issue(G, tp, bar_at=-1):
        for s in range(8):
            if s == bar_at: a("s_barrier")
            if bar_at >= 0 and s == 5 and stublate: touch([(4, 5), (5, 0), (6, 2), (7, 7)])
            r = slot(G, s)
            t = tp[s % len(tp)]
            if t and tp is TK and s in lateslots:
                uid[0] += 1
                a(f"s_waitcnt vmcnt({t})\ns_cbranch_vccnz L_lt{uid[0]}\ns_waitcnt vmcnt({t - 1})\nL_lt{uid[0]}:")
            elif t: a(f"s_waitcnt vmcnt({t - 1})")
            va, imm = (vAd + s, 0) if bperm else addr(s, pat)
            a(f"buffer_load_dwordx4 v[{r}:{r+3}], v{va}, s[12:15], s{sOff} offen offset:{imm} nt")
        if xorph: a(f"s_add_u32 s{sCnt}, s{sCnt}, 0x8000\ns_and_b32 s{sCnt}, s{sCnt}, 0x7ffff\ns_xor_b32 s{sOff}, s{sCnt}, s{sMask}")
        elif wb:
            hole = 3 << wb
            a(f"s_or_b32 s{sOff}, s{sOff}, {hole}\ns_add_u32 s{sOff}, s{sOff}, 0x2000\ns_and_b32 s{sOff}, s{sOff}, {0x7ffff & ~hole}")
        else: a(f"s_add_u32 s{sOff}, s{sOff}, 0x8000\ns_and_b32 s{sOff}, s{sOff}, 0x7ffff")
    def call(lbl): a(f"s_call_b64 s[{sRet}:{sRet+1}], {lbl}")
    def ret(): a(f"s_setpc_b64 s[{sRet}:{sRet+1}]")
    def row_allreduce(op, regs):
        for m in ("row_mirror", "row_half_mirror", "quad_perm:[2,3,0,1]", "quad_perm:[1,0,3,2]"):
            for x in regs: a(f"{op}_dpp v{x}, v{x}, v{x} {m} row_mask:0xf bank_mask:0xf")
    def xrow(op, x, tmp, which):
        a(f"v_mov_b32 v{tmp}, v{x}\nv_permlane{which}_swap_b32 v{x}, v{tmp}\n{op} v{x}, v{x}, v{tmp}")
    def wave_allreduce(op, x, tmp):
        row_allreduce(op, [x]); xrow(op, x, tmp, 16); xrow(op, x, tmp, 32)
    def round_scores(x, y, t):
        a(f"""v_cvt_pk_bf16_f32 v{t}, v{x}, v{y}
              v_lshlrev_b32 v{x}, 16, v{t}
              v_and_b32 v{y}, s{sHiMask}, v{t}
              v_mul_f32 v{x}, s{sScale}, v{x}
              v_mul_f32 v{y}, s{sScale}, v{y}
              v_cvt_pk_bf16_f32 v{t}, v{x}, v{y}
              v_lshlrev_b32 v{x}, 16, v{t}
              v_and_b32 v{y}, s{sHiMask}, v{t}""")
    def tagcheck(bufs, lbl_retry, lbl_ok, backoff=False, restore=False, patience=None):
        acc = vU[0]
        first = True
        for b in bufs:
            a(f"v_xor_b32 v{vU[1]}, s{sTag}, v{b+1}\nv_xor_b32 v{vU[2]}, s{sTag+1}, v{b+3}")
            if first: a(f"v_or_b32 v{acc}, v{vU[1]}, v{vU[2]}")
            else: a(f"v_or3_b32 v{acc}, v{acc}, v{vU[1]}, v{vU[2]}")
            first = False
        a(f"v_cmp_ne_u32 vcc, 0, v{acc}")
        if restore: a("s_mov_b64 exec, -1")
        a(f"s_cbranch_vccz {lbl_ok}")
        if backoff == "always": a(f"s_sleep {asleep}")
        elif backoff and asleep:
            a(f"s_cmp_eq_u32 s{sBr}, 0\ns_cbranch_scc0 {lbl_ok}_nb\ns_sleep {asleep}\n{lbl_ok}_nb:")
        if tsleep: a(f"s_sleep {tsleep}")
        if local:
            a(f"""s_cmp_gt_u32 s{sSpin}, {SPIN - (patience or slow)}
                  s_cbranch_scc1 {lbl_ok}_fast
                  buffer_wbl2 sc1
                  s_waitcnt vmcnt(0)
                  s_sleep 16
                  {lbl_ok}_fast:""")
        a(f"""s_sub_u32 s{sSpin}, s{sSpin}, 1
              s_cbranch_scc0 {lbl_retry}""")
        a.label(lbl_ok)
    def lds_wait(off, atleast, name, sleep=0):
        a(f"v_mov_b32 v{vU[0]}, {L_CNT + off}\ns_mov_b32 s{sSpin}, {SPIN * 64}")
        a.label(name)
        a(f"""ds_read_b32 v{vU[1]}, v{vU[0]}
              s_waitcnt lgkmcnt(0)
              v_readfirstlane_b32 s{sT[0]}, v{vU[1]}
              s_cmp_ge_u32 s{sT[0]}, {atleast}
              s_cbranch_scc1 {name}_ok""")
        if sleep: a(f"s_sleep {sleep}")
        a(f"""s_sub_u32 s{sSpin}, s{sSpin}, 1
              s_cbranch_scc0 {name}""")
        a.label(name + "_ok")
    def helper_sync(off, name):
        a(f"""v_mov_b32 v{vU[0]}, {L_CNT + off}
              v_mov_b32 v{vU[1]}, 1
              s_mov_b64 exec, 1
              ds_add_u32 v{vU[0]}, v{vU[1]}
              s_mov_b64 exec, -1""")
        lds_wait(off, 4, name, 1)
    def epoch_load():
        a(f"s_load_dwordx2 s[{sEp}:{sEp+1}], s[{K_WS}:{K_WS+1}], {WS_EPOCH}")
    def epoch_tag():
        a(f"""s_waitcnt lgkmcnt(0)
              s_add_u32 s{sEp}, s{sEp}, 1
              s_xor_b32 s{sTag}, s{sEp}, 0x5bd1e995
              s_mul_i32 s{sTag+1}, s{sEp}, 0x9e3779b1
              s_add_u32 s{sTag+1}, s{sTag+1}, s{sEp+1}""")
    def consts():
        a(f"""s_mov_b32 s{sMc1}, 0xcccccccc
              s_mov_b32 s{sMc1+1}, 0xcccccccc
              s_mov_b32 s{sMc0}, 0xaaaaaaaa
              s_mov_b32 s{sMc0+1}, 0xaaaaaaaa
              s_mov_b32 s{sScale}, 0x3db504f3
              s_mov_b32 s{sLog2e}, 0x3fb8aa3b
              s_mov_b32 s{sHiMask}, 0xffff0000""")
        srd(16, K_WS, WS_SIZE)
    R0 = vRing

    a.label(f"{NAME}_kernel")
    a(f"""s_cmp_ge_u32 s2, 256
          s_cbranch_scc1 L_end
          s_load_dwordx16 s[64:79], s[0:1], 0
          s_load_dwordx8 s[80:87], s[0:1], 64
          s_load_dwordx2 s[88:89], s[0:1], 96""")
    stamp(0)
    if fixdur: a("s_memrealtime s[48:49]")
    if perm:
        a(f"s_mul_i32 s2, s2, {perm}\ns_lshr_b32 s{sT[0]}, s2, 8\ns_and_b32 s2, s2, 255")
        a(f"s_lshr_b32 s{sT[0]}, s2, 3\ns_xor_b32 s2, s2, s{sT[0]}")
    if hmap == 0: hb_code = f"s_lshl_b32 s{sHB}, s{sH}, 3\ns_add_u32 s{sHB}, s{sHB}, s{sX}"
    elif hmap == 1: hb_code = (f"s_and_b32 s{sHB}, s{sH}, 1\ns_lshr_b32 s{sH}, s{sH}, 1\ns_lshl_b32 s{sH}, s{sH}, 4\ns_add_u32 s{sHB}, s{sHB}, s{sH}\n"
                               f"s_lshl_b32 s{sT[0]}, s{sX}, 1\ns_add_u32 s{sHB}, s{sHB}, s{sT[0]}")
    elif hmap == 6:
        hb_code = (f"s_and_b32 s{sHB}, s{sH}, 1\ns_lshr_b32 s{sH}, s{sH}, 1\ns_lshl_b32 s{sH}, s{sH}, 3\ns_add_u32 s{sHB}, s{sHB}, s{sH}\n"
                   f"s_and_b32 s{sT[0]}, s{sX}, 3\ns_lshl_b32 s{sT[0]}, s{sT[0]}, 1\ns_add_u32 s{sHB}, s{sHB}, s{sT[0]}\n"
                   f"s_and_b32 s{sT[0]}, s{sX}, 4\ns_lshl_b32 s{sT[0]}, s{sT[0]}, 2\ns_add_u32 s{sHB}, s{sHB}, s{sT[0]}")
    else: hb_code = f"s_mov_b32 s{sHB}, s{sHA}"
    a(f"""v_lshrrev_b32 v{vT[0]}, 6, v0
          v_and_b32 v{vLane}, 63, v0
          v_readfirstlane_b32 s{sWave}, v{vT[0]}
          s_and_b32 s{sX}, s2, 7
          s_lshr_b32 s{sI}, s2, 3
          s_lshr_b32 s{sH}, s{sI}, 3
          s_lshl_b32 s{sT[0]}, s{sX}, 2
          s_add_u32 s{sHA}, s{sH}, s{sT[0]}
          {hb_code}
          s_bfe_u32 s{sB}, s{sI}, 0x10002
          s_and_b32 s{sS}, s{sI}, 3
          s_and_b32 s{sR}, s{sI}, 7
          s_and_b32 s{sW}, s{sWave}, 3
          v_and_b32 v{vC}, 15, v{vLane}
          v_lshrrev_b32 v{vG}, 4, v{vLane}""")
    if table:
        a(f"""s_waitcnt lgkmcnt(0)
              s_lshl_b32 s{sT[0]}, s2, 2
              {f"s_add_u32 s{sT[0]}, s{sT[0]}, s{sW}" if xorph else ""}
              {f"s_lshl_b32 s{sT[0]}, s{sT[0]}, 2" if xorph else ""}
              s_add_u32 s{sT[0]}, s{sT[0]}, 32768
              s_load_dword s98, s[{K_WS}:{K_WS+1}], s{sT[0]}
              s_waitcnt lgkmcnt(0)
              s_lshr_b32 s{sHB}, s98, 8
              s_and_b32 s{sHB}, s{sHB}, 31""")
    def touch(pairs):
        for w_, k_ in pairs:
            uid[0] += 1
            a(f"s_cmp_eq_u32 s{sWave}, {w_}\ns_cbranch_scc0 L_tc{uid[0]}")
            call(f"L_stub{k_}")
            a.label(f"L_tc{uid[0]}")
    if stublate: touch([(1, 6), (3, 1)])
    else: touch([(k, k) for k in range(8)])
    a(f"""s_cmp_lt_u32 s{sWave}, 4
          s_cbranch_scc0 L_stream""")

    a(f"s_cmp_lt_u32 s{sW}, 2\ns_cselect_b32 s{sH}, s{sHB}, s{sHA}")
    if nodup:
        a(f"s_lshl_b32 s{sT[0]}, s{sR}, 6")
    else:
        a(f"""s_and_b32 s{sT[0]}, s{sW}, 1
              s_lshl_b32 s{sT[0]}, s{sT[0]}, 9
              s_lshl_b32 s{sT[1]}, s{sR}, 6
              s_add_u32 s{sT[0]}, s{sT[0]}, s{sT[1]}""")
    a(f"""v_add_lshl_u32 v{vT[0]}, s{sT[0]}, v{vLane}, 1
          v_lshlrev_b32 v{vO0}, 17, v{vG}
          v_lshl_add_u32 v{vO0}, v{vC}, 4, v{vO0}
          s_lshl_b32 s{sOff}, s{sR}, 19
          s_lshl_b32 s{sT[0]}, s{sH}, 8
          s_add_u32 s{sOff}, s{sOff}, s{sT[0]}
          s_mov_b32 s14, 0x400000
          s_mov_b32 s15, 0x00020000
          s_mov_b32 s22, 2048
          s_mov_b32 s23, 0x00020000
          v_lshlrev_b32 v{vU[0]}, 2, v{vC}
          v_mov_b32 v{vU[1]}, 0
          ds_write_b32 v{vU[0]}, v{vU[1]} offset:{L_CNT}
          s_waitcnt lgkmcnt(0)
          s_cmp_lt_u32 s{sW}, 2
          s_cselect_b32 s12, s{K_BWQ}, s{K_AWQ}
          s_cselect_b32 s13, s{K_BWQ+1}, s{K_AWQ+1}
          s_cselect_b32 s20, s{K_BX}, s{K_AX}
          s_cselect_b32 s21, s{K_BX+1}, s{K_AX+1}""")
    epoch_load()
    first = 1 if nodup else 2
    if aearly == 2: pass
    elif h2early: a(f"s_bitcmp0_b32 s{sW}, 0\ns_cbranch_scc1 L_h_go\ns_barrier")
    elif bar0: a(f"s_cmp_lt_u32 s{sW}, {first}\ns_cbranch_scc1 L_h_go\ns_barrier")
    else: a("s_barrier")
    if nodup: a(f"s_bitcmp1_b32 s{sW}, 0\ns_cbranch_scc1 L_helper2")
    a.label("L_h_go")
    a(f"buffer_load_ushort v{vP}, v{vT[0]}, s[20:23], 0 offen nt")
    if nodup: a(f"buffer_load_ushort v{vP+1}, v{vT[0]}, s[20:23], 0 offen offset:1024 nt")
    for k in range(16):
        r = slot(k & 1, k >> 1)
        if TQ and k == TQ and h2early: a("s_barrier")
        if TQ and k >= TQ: a(f"s_waitcnt vmcnt({TQ - 1})")
        a(f"buffer_load_dwordx4 v[{r}:{r+3}], v{vO0}, s[12:15], s{sOff} offen nt")
        if k < 15: a(f"s_add_u32 s{sOff}, s{sOff}, 0x2000")
    if h2early:
        if not TQ and aearly != 2: a("s_barrier")
        if stublate: touch([(0, 3), (2, 4)])
    elif bar0: a(f"s_cmp_lt_u32 s{sW}, {first}\ns_cbranch_scc0 L_helper2\ns_barrier")
    a("s_branch L_helper2")

    a.label("L_stream")
    if vboost: a(f"s_mov_b64 vcc, {0 if vboost == 1 else -1}")
    elif lateslots: a(f"s_lshr_b32 vcc_lo, {latemask}, s{sX}\ns_and_b32 vcc_lo, vcc_lo, 1\ns_mov_b32 vcc_hi, 0")
    if sprio: a(f"s_setprio {sprio}")
    if wb:
        assert pat == 8
        a(f"""s_lshl_b32 s{sT[0]}, s{sW}, {wb}
              v_lshlrev_b32 v{vAd}, 4, v{vLane}
              v_add_u32 v{vAd}, s{sT[0]}, v{vAd}
              v_add_u32 v{vAd+1}, 0x1000, v{vAd}""")
    elif bperm:
        if bperm == "table":
            a(f"s_waitcnt lgkmcnt(0)\ns_load_dwordx8 s[56:63], s[{K_WS}:{K_WS+1}], 49152\ns_waitcnt lgkmcnt(0)")
            sh = [f"s{56+k}" for k in range(7)]
        else: sh = [str(v) for v in bperm]
        a(f"""v_lshlrev_b32 v{vAd}, 4, v{vC}
              v_and_b32 v{vT[0]}, 1, v{vG}
              v_lshl_add_u32 v{vAd}, v{vT[0]}, {sh[0]}, v{vAd}
              v_lshrrev_b32 v{vT[0]}, 1, v{vG}
              v_lshl_add_u32 v{vAd}, v{vT[0]}, {sh[1]}, v{vAd}
              s_and_b32 s{sT[0]}, s{sW}, 1
              s_lshl_b32 s{sT[0]}, s{sT[0]}, {sh[2]}
              s_lshr_b32 s{sT[1]}, s{sW}, 1
              s_lshl_b32 s{sT[1]}, s{sT[1]}, {sh[3]}
              s_add_u32 s{sT[0]}, s{sT[0]}, s{sT[1]}
              v_add_u32 v{vAd}, s{sT[0]}, v{vAd}""")
        for b in range(3):
            a(f"s_lshl_b32 s{sT[0]}, 1, {sh[4+b]}")
            for k in range(1 << b): a(f"v_add_u32 v{vAd + (1 << b) + k}, s{sT[0]}, v{vAd + k}")
    else: addr_setup(pat)
    if table: ph_code = f"s_and_b32 s{sOff}, s98, 15\ns_lshl_b32 s{sOff}, s{sOff}, 15"
    elif phm == 0: ph_code = f"s_and_b32 s{sOff}, s{sI}, 15\ns_lshl_b32 s{sOff}, s{sOff}, 15"
    elif phm == 1: ph_code = f"s_lshl_b32 s{sOff}, s{sB}, 18"
    elif phm == 2: ph_code = f"s_lshl_b32 s{sOff}, s{sB}, {phb[0]}\ns_lshr_b32 s{sT[0]}, s{sI}, 4\ns_lshl_b32 s{sT[0]}, s{sT[0]}, {phb[1]}\ns_add_u32 s{sOff}, s{sOff}, s{sT[0]}"
    elif phm == 3: ph_code = f"s_lshl_b32 s{sOff}, s{sB}, 17"
    a(f"""s_mov_b32 s{sH}, s{sHB}
          s_lshl_b32 s{sU}, s{sB}, 5
          s_add_u32 s{sU}, s{sU}, s{sH}
          s_lshl_b32 s{sU}, s{sU}, 2
          s_add_u32 s{sU}, s{sU}, s{sS}
          s_lshl_b32 s{sU}, s{sU}, 19
          {ph_code}
          s_mov_b32 s14, 0x80000
          s_mov_b32 s15, 0x00020000""")
    if xorph:
        a(f"""s_and_b32 s{sMask}, s98, 0x3c
              s_lshl_b32 s{sMask}, s{sMask}, 13
              s_mov_b32 s{sCnt}, 0
              s_mov_b32 s{sOff}, s{sMask}
              s_and_b32 s{sT[0]}, s98, 3
              s_lshl_b32 s{sT[0]}, s{sT[0]}, 13""")
        for k in range(8 // pat): a(f"v_xor_b32 v{vAd+k}, s{sT[0]}, v{vAd+k}")
    a(f"""s_waitcnt lgkmcnt(0)
          s_add_u32 s12, s{K_BK}, s{sU}
          s_addc_u32 s13, s{K_BK+1}, 0""")
    epoch_load()
    issue(0, (0,) if g0free else (TF or TK), n0)
    for G in range(1, 4):
        if TF: issue(G, TF)
        elif G <= latefree:
            a(f"s_cmp_lt_u32 s{sX}, 4\ns_cbranch_scc1 L_s_f{G}")
            call(f"L_ISSV{G}")
            a(f"s_branch L_s_g{G}\nL_s_f{G}:")
            iss(0, G)
            a.label(f"L_s_g{G}")
        else: iss(0, G)
    stamp(1)
    consts()
    epoch_tag()
    if not abl_noq: lds_wait(16, 1, "L_s_qwait", 1)
    a(f"""v_lshlrev_b32 v{vT[0]}, 4, v{vC}
          ds_read_b128 v[{vQ}:{vQ+3}], v{vT[0]} offset:{L_QB}
          s_waitcnt lgkmcnt(0)""")
    stamp(2)
    for c in range(3):
        for G in range(4):
            call(f"L_KB{G}"); iss(c + 1, G)
        a(f"v_mov_b32 v{vS+2*c}, v{vZ0}\nv_mov_b32 v{vS+2*c+1}, v{vZ1}")
    a(f"s_add_u32 s12, s{K_BV}, s{sU}\ns_addc_u32 s13, s{K_BV+1}, 0")
    call("L_KB0"); iss(4, 0); call("L_KB1")
    a("s_waitcnt vmcnt(16)")
    call("L_KB2"); iss(4, 1)
    a("s_waitcnt vmcnt(16)")
    call("L_KB3")
    a(f"v_mov_b32 v{vS+6}, v{vZ0}\nv_mov_b32 v{vS+7}, v{vZ1}")
    stamp(3)
    for k in range(0, 8, 2): round_scores(vS + k, vS + k + 1, vT[0])
    a(f"""v_max3_f32 v{vM}, v{vS}, v{vS+1}, v{vS+2}
          v_max3_f32 v{vM}, v{vM}, v{vS+3}, v{vS+4}
          v_max3_f32 v{vM}, v{vM}, v{vS+5}, v{vS+6}
          v_max_f32 v{vM}, v{vM}, v{vS+7}""")
    wave_allreduce("v_max_f32", vM, vT[0])
    iss(4, 2)
    for k in range(8): a(f"v_sub_f32 v{vS+k}, v{vS+k}, v{vM}")
    for k in range(8): a(f"v_mul_f32 v{vS+k}, s{sLog2e}, v{vS+k}")
    for k in range(8): a(f"v_exp_f32 v{vS+k}, v{vS+k}")
    a(f"v_add_f32 v{vL}, v{vS}, v{vS+1}")
    for k in range(2, 8): a(f"v_add_f32 v{vL}, v{vL}, v{vS+k}")
    if not fastend:
        for k in range(8): a(f"v_cvt_pk_bf16_f32 v{vS+k}, v{vS+k}, 0")
    wave_allreduce("v_add_f32", vL, vT[0])
    if fastend:
        a(f"v_rcp_f32 v{vT[0]}, v{vL}")
        for k in range(8): a(f"v_mul_f32 v{vS+k}, v{vS+k}, v{vT[0]}")
        for k in range(8): a(f"v_cvt_pk_bf16_f32 v{vS+k}, v{vS+k}, 0")
    a(f"""s_add_u32 s{sPub}, s{sH}, 32
          s_lshl_b32 s{sPub}, s{sPub}, 1
          s_add_u32 s{sPub}, s{sPub}, s{sB}
          s_lshl_b32 s{sPub}, s{sPub}, 2
          s_add_u32 s{sPub}, s{sPub}, s{sS}
          s_lshl_b32 s{sPubO}, s{sPub}, 11
          s_add_u32 s{sPubO}, s{sPubO}, {WS_PB - (256 << 11)}
          s_lshl_b32 s{sPub}, s{sPub}, 2
          s_add_u32 s{sPub}, s{sPub}, s{sW}
          s_mul_i32 s{sPub}, s{sPub}, {REC}
          s_add_u32 s{sPub}, s{sPub}, {WS_PART}
          s_mov_b32 s{sShift}, 6""")
    call("L_PUBML")
    iss(4, 3)
    for k in range(8): a(f"v_mov_b32 v{vAcc+k}, 0")
    stamp(4)
    a(f"""s_lshl_b32 s{sT[0]}, s{sW}, 4
          s_add_u32 s{sPubO}, s{sPubO}, s{sT[0]}
          v_lshrrev_b32 v{vU[3]}, 1, v{vG}
          v_lshlrev_b32 v{vU[3]}, 4, v{vU[3]}
          v_add_lshl_u32 v{vU[3]}, v{vU[3]}, v{vC}, 6""")
    if vboost: a(f"s_mov_b64 vcc, {-1 if vboost == 1 else 0}")
    issued, done = 4, 0
    def ws(k):
        if k % 2 == 0: a(f"v_mov_b32 v{vP + (k % 4) // 2}, v{vS + k // 2}")
        if k == midg: a("s_barrier")
        if k == 15:
            call("L_WS3L"); return
        a(f"s_waitcnt vmcnt({8 * (issued - k - 1)})")
        call(f"L_WS{k % 4}")
    while issued < 16:
        fast = issued >= 16 - (rmax if rank else nfast)
        want = (endlag if fast else lag)
        n = 0
        while done <= issued - 4 or (done < issued - want + 1 and n < 2 and done < issued - 1):
            ws(done); done += 1; n += 1
        left = 16 - issued
        if rank and left <= rmax:
            if left == rmax:
                a(f"""v_mov_b32 v{vU[0]}, {L_CNT + 20}
                      ds_read_b32 v{vU[1]}, v{vU[0]}
                      s_waitcnt lgkmcnt(0)
                      v_readfirstlane_b32 s{sHH}, v{vU[1]}
                      s_cmp_eq_u32 s{sHH}, 0
                      s_cselect_b32 s{sHH}, 19, s{sHH}""")
            a(f"s_cmp_ge_u32 s{sHH}, {16 + left}\ns_cbranch_scc1 L_s_v{left}")
            call(f"L_ISSK{issued % 4}")
            a(f"s_branch L_s_w{left}\nL_s_v{left}:")
            call(f"L_ISSV{issued % 4}")
            a.label(f"L_s_w{left}")
        else: call(f"L_ISS{'V' if (fast and two) else 'K'}{issued % 4}")
        issued += 1
        if ya == "flag" and issued == yag:
            a(f"v_mov_b32 v{vU[0]}, {L_CNT + 24}\nv_mov_b32 v{vU[1]}, 1\nds_write_b32 v{vU[0]}, v{vU[1]}")
    if early_bar: a("s_barrier")
    while done < 16:
        ws(done); done += 1
    stamp(5)
    if fastend:
        for e in range(4): a(f"v_permlane32_swap_b32 v{vAcc+e}, v{vAcc+e+4}")
        for e in range(4): a(f"v_add_f32 v{vAcc+e}, v{vAcc+e}, v{vAcc+e+4}")
        for e in range(2): a(f"v_permlane16_swap_b32 v{vAcc+e}, v{vAcc+e+2}")
        for e in range(2): a(f"v_add_f32 v{vAcc+e}, v{vAcc+e}, v{vAcc+e+2}")
        a(f"""v_cvt_pk_bf16_f32 v{vG4}, v{vAcc}, v{vAcc+1}
              v_cvt_pk_bf16_f32 v{vG4+2}, v{vAcc}, v{vAcc+1}
              v_permlane16_swap_b32 v{vG4}, v{vG4+2}
              s_mov_b32 exec_lo, 0xffff
              s_mov_b32 exec_hi, 0xffff
              buffer_store_dwordx4 v[{vG4}:{vG4+3}], v{vU[3]}, s[16:19], s{sPubO} offen {stf}
              s_mov_b64 exec, -1""")
    else:
        call("L_RED8")
        call("L_PUBPART")
    stamp(6)
    if not early_bar: a("s_barrier")
    if ya == "s0" and not abl_noA:
        a(f"""s_cmp_eq_u32 s{sW}, 0
              s_cbranch_scc0 L_exit
              s_mov_b32 s{sBr}, 0""")
        call("L_PUBY")
    a("s_branch L_exit")

    for nm, tp in ((("K", TK), ("V", TV)) if two else (("K", TK),)):
        for G in range(4):
            a.label(f"L_ISS{nm}{G}")
            issue(G, tp); ret()

    for G in range(4):
        a.label(f"L_KB{G}")
        for s in range(8): a(f"v_mov_b32 v{vt+s}, 0")
        for j in range(4):
            for s in range(8): a(f"v_dot2c_f32_bf16 v{vt+s}, v{slot(G, s)+j}, v{vQ+j}")
        for k in range(4):
            a(f"v_add_f32_dpp v{vt+k}, v{vt+k}, v{vt+k} row_mirror row_mask:0xf bank_mask:0x3")
        for k in range(4):
            a(f"v_add_f32_dpp v{vt+k}, v{vt+k+4}, v{vt+k+4} row_mirror row_mask:0xf bank_mask:0xc")
        for k in range(2):
            a(f"v_add_f32_dpp v{vt+k}, v{vt+k}, v{vt+k} row_half_mirror row_mask:0xf bank_mask:0x5")
        for k in range(2):
            a(f"v_add_f32_dpp v{vt+k}, v{vt+k+2}, v{vt+k+2} row_half_mirror row_mask:0xf bank_mask:0xa")
        for k in range(2):
            a(f"v_add_f32_dpp v{vt+k}, v{vt+k}, v{vt+k} quad_perm:[2,3,0,1] row_mask:0xf bank_mask:0xf")
        a(f"v_cndmask_b32 v{vt}, v{vt}, v{vt+1}, s[{sMc1}:{sMc1+1}]")
        if G % 2 == 0:
            a(f"v_add_f32_dpp v{vZA}, v{vt}, v{vt} quad_perm:[1,0,3,2] row_mask:0xf bank_mask:0xf")
        else:
            a(f"v_add_f32_dpp v{vt}, v{vt}, v{vt} quad_perm:[1,0,3,2] row_mask:0xf bank_mask:0xf")
            a(f"v_cndmask_b32 v{vZ0 + G // 2}, v{vZA}, v{vt}, s[{sMc0}:{sMc0+1}]")
        ret()

    for G, last in ((0, False), (1, False), (2, False), (3, False), (3, True)):
        a.label(f"L_WS{G}" + ("L" if last else ""))
        a("s_nop 1")
        for s in range(8):
            r = slot(G, s)
            a(f"v_mov_b32_dpp v{vLo}, v{vP + G // 2} row_newbcast:{2*s + (G & 1)} row_mask:0xf bank_mask:0xf")
            a(f"v_lshlrev_b32 v{vHi}, 16, v{vLo}")
            if last: a(f"s_waitcnt vmcnt({7-s})")
            for j in range(4):
                a(f"v_dot2c_f32_bf16 v{vAcc+2*j}, v{r+j}, v{vLo}")
                a(f"v_dot2c_f32_bf16 v{vAcc+2*j+1}, v{r+j}, v{vHi}")
        a("s_nop 1")
        ret()

    a.label("L_RED8")
    a("s_nop 1")
    for e in range(4): a(f"v_permlane32_swap_b32 v{vAcc+e}, v{vAcc+e+4}")
    for e in range(4): a(f"v_add_f32 v{vAcc+e}, v{vAcc+e}, v{vAcc+e+4}")
    for e in range(2): a(f"v_permlane16_swap_b32 v{vAcc+e}, v{vAcc+e+2}")
    for e in range(2): a(f"v_add_f32 v{vAcc+e}, v{vAcc+e}, v{vAcc+e+2}")
    ret()

    a.label("L_PUBML")
    a(f"""v_mov_b32 v{vG4}, v{vM}
          v_mov_b32 v{vG4+1}, s{sTag}
          v_mov_b32 v{vG4+2}, v{vL}
          v_mov_b32 v{vG4+3}, s{sTag+1}
          v_lshlrev_b32 v{vT[0]}, 4, v{vLane}
          s_mov_b64 exec, 0xff
          buffer_store_dwordx4 v[{vG4}:{vG4+3}], v{vT[0]}, s[16:19], s{sPub} offen offset:512 {stf}
          s_mov_b64 exec, -1
          s_nop 0""")
    ret()

    a.label("L_PUBPART")
    a(f"""v_rcp_f32 v{vT[0]}, v{vL}
          v_lshrrev_b32 v{vT[1]}, 1, v{vG}
          v_lshlrev_b32 v{vT[1]}, 4, v{vT[1]}
          v_add_lshl_u32 v{vT[1]}, v{vT[1]}, v{vC}, s{sShift}
          v_mul_f32 v{vAcc}, v{vAcc}, v{vT[0]}
          v_mul_f32 v{vAcc+1}, v{vAcc+1}, v{vT[0]}
          v_cvt_pk_bf16_f32 v{vG4}, v{vAcc}, v{vAcc+1}
          v_mov_b32 v{vG4+1}, s{sTag}
          v_mov_b32 v{vG4+2}, v{vG4}
          v_mov_b32 v{vG4+3}, s{sTag+1}
          v_permlane16_swap_b32 v{vG4}, v{vG4+2}
          s_mov_b32 exec_lo, 0xffff
          s_mov_b32 exec_hi, 0xffff
          buffer_store_dwordx4 v[{vG4}:{vG4+3}], v{vT[1]}, s[16:19], s{sPubO} offen {stf}
          s_mov_b64 exec, -1
          s_nop 0""")
    ret()

    a.label("L_PUBY")
    a(f"""s_lshl_b32 s{sT[0]}, s{sBr}, 11
          v_lshl_add_u32 v{vT[0]}, v{vLane}, 3, s{sT[0]}""")
    for k in range(4): a(f"ds_read_b64 v[{vt+2*k}:{vt+2*k+1}], v{vT[0]} offset:{L_YR + 512*k}")
    a(f"""s_lshl_b32 s{sT[0]}, s{sBr}, 3
          s_add_u32 s{sT[1]}, s{sT[0]}, s{sR}
          s_lshl_b32 s{sT[1]}, s{sT[1]}, 5
          s_add_u32 s{sT[1]}, s{sT[1]}, s{sHA}
          s_lshl_b32 s{sT[1]}, s{sT[1]}, 10
          s_add_u32 s{sT[1]}, s{sT[1]}, {WS_Y}
          v_lshlrev_b32 v{vT[1]}, 4, v{vLane}
          v_mov_b32 v{vG4+1}, s{sTag}
          v_mov_b32 v{vG4+3}, s{sTag+1}
          s_waitcnt lgkmcnt(0)
          v_add_f32 v{vG4}, v{vt}, v{vt+2}
          v_add_f32 v{vG4+2}, v{vt+1}, v{vt+3}
          v_add_f32 v{vt+4}, v{vt+4}, v{vt+6}
          v_add_f32 v{vt+5}, v{vt+5}, v{vt+7}
          v_add_f32 v{vG4}, v{vG4}, v{vt+4}
          v_add_f32 v{vG4+2}, v{vG4+2}, v{vt+5}
          buffer_store_dwordx4 v[{vG4}:{vG4+3}], v{vT[1]}, s[16:19], s{sT[1]} offen {yst}
          s_nop 0""")
    ret()

    a.label("L_QC")
    a(f"""v_lshlrev_b32 v{vO0}, 4, v{vLane}
          v_add_u32 v{vO1}, 0x1000, v{vO0}
          s_add_u32 s{sT[1]}, s{sT[1]}, {WS_QP}
          s_mov_b32 s{sSpin}, {SPIN}
          {"s_nop 0" if bhint else f"s_cmp_eq_u32 s{sBr}, 0"}
          {"s_nop 0" if bhint else "s_cbranch_scc0 L_QC_poll"}
          v_and_b32 v{vT[0]}, 7, v{vLane}
          v_lshlrev_b32 v{vT[0]}, 10, v{vT[0]}""")
    a.label("L_QC_hint")
    if narrow: a("s_mov_b64 exec, 0xff")
    a(f"""buffer_load_dwordx4 v[{vRing}:{vRing+3}], v{vT[0]}, s[16:19], s{sT[1]} offen offset:1008 {ldf}
          s_waitcnt vmcnt(0)""")
    tagcheck([vRing], "L_QC_hint", "L_QC_hok", True, narrow, 24)
    a(f"s_mov_b32 s{sSpin}, {SPIN}")
    a.label("L_QC_poll")
    for p in range(8):
        r = vRing + 4 * p
        if qser and p >= qser: a(f"s_waitcnt vmcnt({qser - 1})")
        a(f"buffer_load_dwordx4 v[{r}:{r+3}], v{vO0 + (p >> 2)}, s[16:19], s{sT[1]} offen offset:{(p & 3) * 1024} {ldf}")
    a("s_waitcnt vmcnt(0)")
    tagcheck([vRing + 4 * p for p in range(8)], "L_QC_poll", "L_QC_ok", patience=24)
    for p in range(1, 8):
        a(f"v_add_f32 v{vRing}, v{vRing}, v{vRing+4*p}\nv_add_f32 v{vRing+2}, v{vRing+2}, v{vRing+4*p+2}")
    a(f"""v_cvt_pk_bf16_f32 v{vT[0]}, v{vRing}, v{vRing+2}
          v_lshl_add_u32 v{vT[1]}, v{vC}, 2, v{vG}
          v_lshlrev_b32 v{vT[1]}, 2, v{vT[1]}
          v_add_u32 v{vT[1]}, s{sT[2]}, v{vT[1]}
          ds_write_b32 v{vT[1]}, v{vT[0]}""")
    ret()

    def kva_block():
        a(f"""s_lshr_b32 s{sT[0]}, s{sI}, 4
              s_lshl_b32 s{sT[0]}, s{sT[0]}, 3
              s_add_u32 s{sT[0]}, s{sT[0]}, s{sX}
              s_lshl_b32 s{sOff}, s{sT[0]}, 21
              s_and_b32 s{sT[0]}, s{sI}, 15
              s_lshl_b32 s{sT[0]}, s{sT[0]}, 15
              s_add_u32 s{sOff}, s{sOff}, s{sT[0]}
              s_add_u32 s{sOff}, s{sOff}, {6144*256}
              s_mov_b32 s14, 0x2000000""")
        addr_setup(pata, wxa)
        a(f"""s_mov_b32 s12, s{K_AK}
              s_mov_b32 s13, s{K_AK+1}
              s_mov_b32 s20, s{K_AV}
              s_mov_b32 s21, s{K_AV+1}
              s_mov_b32 s22, 0x2000000""")
        if kvdelay:
            a(f"s_cmp_eq_u32 s{sW}, 1\ns_cbranch_scc0 L_h_A3")
            qb_consume()
            a.label("L_h_A3")
            lds_wait(16, 1, "L_h_kvw", 2)
        order = [(G, s) for s in range(8) for G in (2, 3)] if kvi else [(G, s) for G in (2, 3) for s in range(8)]
        for G, s in ([] if abl_Akv else order):
            r = slot(G, s)
            if TH: a(f"s_waitcnt vmcnt({TH - 1})")
            va, imm = addr(s, pata)
            a(f"buffer_load_dwordx4 v[{r}:{r+3}], v{va}, s[{12 if G == 2 else 20}:{15 if G == 2 else 23}], s{sOff} offen offset:{imm} nt")
    a.label("L_helper2")
    if aearly: kva_block()
    if aearly == 2: a("s_barrier")
    consts()
    a(f"""s_mov_b32 s{sSel0}, 0x05040100
          s_mov_b32 s{sSel1}, 0x07060302
          v_lshlrev_b32 v{vO0}, 4, v{vLane}""")
    epoch_tag()
    if nodup: a(f"s_bitcmp1_b32 s{sW}, 0\ns_cbranch_scc1 L_h_qdone\ns_mov_b32 s{sHH}, 0")
    else: a(f"s_and_b32 s{sHH}, s{sW}, 1")
    a(f"s_waitcnt vmcnt({16 if aearly else 0})")
    stamp(1)
    a.label("L_h_qloop")
    for k in range(8): a(f"v_mov_b32 v{vAcc+k}, 0")
    call("L_WS0"); call("L_WS1"); call("L_RED8")
    a(f"""s_lshr_b32 s{sT[0]}, s{sW}, 1
          s_xor_b32 s{sT[0]}, s{sT[0]}, 1
          s_lshl_b32 s{sT[0]}, s{sT[0]}, 5
          s_add_u32 s{sT[0]}, s{sT[0]}, s{sH}
          s_lshl_b32 s{sT[0]}, s{sT[0]}, 1
          s_add_u32 s{sT[0]}, s{sT[0]}, s{sHH}
          s_lshl_b32 s{sT[0]}, s{sT[0]}, 3
          s_add_u32 s{sT[0]}, s{sT[0]}, s{sR}
          s_lshl_b32 s{sT[0]}, s{sT[0]}, 10
          s_add_u32 s{sT[0]}, s{sT[0]}, {WS_QP}
          v_mov_b32 v{vG4}, v{vAcc}
          v_mov_b32 v{vG4+1}, s{sTag}
          v_mov_b32 v{vG4+2}, v{vAcc+1}
          v_mov_b32 v{vG4+3}, s{sTag+1}
          """)
    if abl_Ast: a(f"s_cmp_eq_u32 s{sW}, 0\ns_cbranch_scc0 L_h_nost")
    a(f"buffer_store_dwordx4 v[{vG4}:{vG4+3}], v{vO0}, s[16:19], s{sT[0]} offen {stf}")
    if abl_dbl:
        a(f"s_add_u32 s{sT[0]}, s{sT[0]}, {8 << 20}\nbuffer_store_dwordx4 v[{vG4}:{vG4+3}], v{vO0}, s[16:19], s{sT[0]} offen {stf}")
    a.label("L_h_nost")
    if nodup:
        a(f"""v_mov_b32 v{vP}, v{vP+1}
              s_add_u32 s{sHH}, s{sHH}, 1
              s_cmp_lt_u32 s{sHH}, 2
              s_cbranch_scc1 L_h_qloop""")
    a.label("L_h_qdone")
    stamp(2)
    def qb_consume():
        a(f"""s_add_u32 s{sT[1]}, s{sHB}, 32
              s_lshl_b32 s{sT[1]}, s{sT[1]}, 1
              s_add_u32 s{sT[1]}, s{sT[1]}, s{sB}
              s_lshl_b32 s{sT[1]}, s{sT[1]}, 13
              s_mov_b32 s{sT[2]}, {L_QB}
              s_mov_b32 s{sBr}, 1""")
        call("L_QC")
        a(f"""v_mov_b32 v{vU[0]}, {L_CNT + 16}
              v_mov_b32 v{vU[1]}, 1
              ds_write_b32 v{vU[0]}, v{vU[1]}""")
    if not nodup or abl_noA:
        a(f"s_cmp_eq_u32 s{sW}, 0\ns_cbranch_scc0 L_h_A")
        qb_consume()
    a.label("L_h_A")
    if not nodup: stamp(3)
    if abl_noA: a(f"s_mov_b32 s{sBr}, 1\ns_branch L_FIN")
    if not aearly: kva_block()
    if late2 and NSTUB > 8:
        for k in range(8, NSTUB): a(f"s_cmp_eq_u32 s{sW}, {(k - 8 + 2) % 4}\ns_cbranch_scc1 L_stub{k}")
        a.label("L_back1")
    if nodup and not kvdelay:
        a(f"s_cmp_eq_u32 s{sW}, 1\ns_cbranch_scc0 L_h_A2")
        qb_consume()
        a.label("L_h_A2")
        stamp(3)
    a(f"""s_mov_b32 s{sBr}, 0
          s_lshl_b32 s{sU}, s{sX}, 2
          s_add_u32 s{sU}, s{sU}, s{sW}
          s_lshl_b32 s{sU}, s{sU}, 1
          s_lshr_b32 s{sT[0]}, s{sI}, 4
          s_add_u32 s{sU}, s{sU}, s{sT[0]}
          s_lshl_b32 s{sT[1]}, s{sU}, 13
          s_lshl_b32 s{sT[2]}, s{sW}, 8
          s_add_u32 s{sT[2]}, s{sT[2]}, {L_QA}""")
    if not abl_Apoll: call("L_QC")
    else: a("s_waitcnt vmcnt(0)")
    helper_sync(0, "L_hs0")
    a(f"s_mov_b32 s{sHH}, 0")
    if abl_Acomp: a("s_branch L_A_done")
    a.label("L_A_loop")
    a(f"""s_lshl_b32 s{sT[0]}, s{sHH}, 8
          v_lshlrev_b32 v{vT[0]}, 4, v{vC}
          v_add_u32 v{vT[0]}, s{sT[0]}, v{vT[0]}
          ds_read_b128 v[{vQ}:{vQ+3}], v{vT[0]} offset:{L_QA}
          s_waitcnt lgkmcnt(0)""")
    call("L_KB2")
    a(f"v_mov_b32 v{vS+1}, v{vZA}\nv_mov_b32 v{vS}, v{vZA}")
    round_scores(vS, vS + 1, vT[0])
    a(f"v_mov_b32 v{vM}, v{vS}")
    wave_allreduce("v_max_f32", vM, vT[0])
    a(f"""v_sub_f32 v{vS}, v{vS}, v{vM}
          v_mul_f32 v{vS}, s{sLog2e}, v{vS}
          v_exp_f32 v{vS}, v{vS}
          v_mul_f32 v{vL}, 0.5, v{vS}
          v_cvt_pk_bf16_f32 v{vP+1}, v{vS}, 0""")
    wave_allreduce("v_add_f32", vL, vT[0])
    for k in range(8): a(f"v_mov_b32 v{vAcc+k}, 0")
    call("L_WS3L"); call("L_RED8")
    a(f"""s_lshl_b32 s{sT[0]}, s{sHH}, 2
          s_add_u32 s{sT[0]}, s{sT[0]}, s{sW}
          s_lshl_b32 s{sT[1]}, s{sT[0]}, 9
          s_lshl_b32 s{sT[0]}, s{sT[0]}, 3
          v_lshlrev_b32 v{vT[0]}, 3, v{vLane}
          v_add_u32 v{vT[0]}, s{sT[1]}, v{vT[0]}
          v_mov_b32 v{vT[1]}, s{sT[0]}
          ds_write_b64 v{vT[0]}, v[{vAcc}:{vAcc+1}] offset:{L_OA}
          s_mov_b64 exec, 1
          ds_write_b64 v{vT[1]}, v[{vM}:{vM+1}] offset:{L_MLA}
          s_mov_b64 exec, -1
          s_add_u32 s{sHH}, s{sHH}, 1
          s_cmp_lt_u32 s{sHH}, 4
          s_cbranch_scc1 L_A_loop""")
    a.label("L_A_done")
    helper_sync(4, "L_hs1")
    a(f"""s_lshl_b32 s{sT[0]}, s{sW}, 5
          v_mov_b32 v{vT[1]}, s{sT[0]}
          s_lshl_b32 s{sT[1]}, s{sW}, 11
          v_lshlrev_b32 v{vT[0]}, 3, v{vLane}
          v_add_u32 v{vT[0]}, s{sT[1]}, v{vT[0]}
          ds_read_b128 v[{R0}:{R0+3}], v{vT[1]} offset:{L_MLA}
          ds_read_b128 v[{R0+4}:{R0+7}], v{vT[1]} offset:{L_MLA+16}""")
    for k in range(4): a(f"ds_read_b64 v[{R0+8+2*k}:{R0+9+2*k}], v{vT[0]} offset:{L_OA + 512*k}")
    a(f"""s_waitcnt lgkmcnt(0)
          v_max3_f32 v{vM}, v{R0}, v{R0+2}, v{R0+4}
          v_max_f32 v{vM}, v{vM}, v{R0+6}""")
    for k in range(4): a(f"v_sub_f32 v{R0+2*k}, v{R0+2*k}, v{vM}")
    for k in range(4): a(f"v_mul_f32 v{R0+2*k}, s{sLog2e}, v{R0+2*k}")
    for k in range(4): a(f"v_exp_f32 v{R0+2*k}, v{R0+2*k}")
    a(f"""v_mul_f32 v{vL}, v{R0}, v{R0+1}
          v_mul_f32 v{vAcc}, v{R0}, v{R0+8}
          v_mul_f32 v{vAcc+1}, v{R0}, v{R0+9}""")
    for k in range(1, 4):
        a(f"""v_fmac_f32 v{vL}, v{R0+2*k}, v{R0+2*k+1}
              v_fmac_f32 v{vAcc}, v{R0+2*k}, v{R0+8+2*k}
              v_fmac_f32 v{vAcc+1}, v{R0+2*k}, v{R0+9+2*k}""")
    a(f"""s_lshl_b32 s{sPub}, s{sU}, 4
          s_and_b32 s{sT[0]}, s{sI}, 15
          s_add_u32 s{sPub}, s{sPub}, s{sT[0]}
          s_mul_i32 s{sPub}, s{sPub}, {REC}
          s_add_u32 s{sPub}, s{sPub}, {WS_PART}
          s_mov_b32 s{sPubO}, s{sPub}
          s_mov_b32 s{sShift}, 4""")
    if not abl_Ast: call("L_PUBPART"); call("L_PUBML")
    stamp(4)

    a.label("L_FIN")
    a(f"""s_cmp_eq_u32 s{sBr}, 0
          s_cselect_b32 s12, s{K_AWO}, s{K_BWO}
          s_cselect_b32 s13, s{K_AWO+1}, s{K_BWO+1}
          s_cselect_b32 s{sH}, s{sHA}, s{sHB}
          s_mov_b32 s14, 0x400000
          v_lshlrev_b32 v{vO0}, 13, v{vG}
          v_lshl_add_u32 v{vO0}, v{vC}, 3, v{vO0}
          v_add_u32 v{vO1}, 0x1000, v{vO0}
          s_lshl_b32 s{sOff}, s{sH}, 2
          s_add_u32 s{sOff}, s{sOff}, s{sW}
          s_lshl_b32 s{sOff}, s{sOff}, 15
          s_lshl_b32 s{sT[0]}, s{sR}, 7
          s_add_u32 s{sOff}, s{sOff}, s{sT[0]}""")
    PB = vRing
    vA0 = vLo
    a(f"""s_lshl_b32 s{sU}, s{sBr}, 5
          s_add_u32 s{sU}, s{sU}, s{sH}
          s_mul_i32 s{sT[1]}, s{sU}, {32 * REC}
          s_add_u32 s{sT[1]}, s{sT[1]}, {WS_PART}
          v_and_b32 v{vT[2]}, 31, v{vLane}
          v_mul_u32_u24 v{vT[3]}, {REC}, v{vT[2]}
          s_mov_b32 s{sSpin}, {SPIN}
          s_cmp_eq_u32 s{sBr}, 0
          s_cbranch_scc0 L_F_addrB
          s_lshl_b32 s{sT[0]}, s{sW}, 6
          s_add_u32 s{sP[0]}, s{sT[1]}, s{sT[0]}
          s_add_u32 s{sP[1]}, s{sP[0]}, 256
          s_add_u32 s{sP[2]}, s{sP[0]}, {16 * REC}
          s_add_u32 s{sP[3]}, s{sP[0]}, {16 * REC + 256}
          v_mul_u32_u24 v{vA0}, {REC}, v{vC}
          v_lshl_add_u32 v{vA0}, v{vG}, 4, v{vA0}""")
    if abl_Apoll: a(f"s_mov_b32 s{sBr}, 1\ns_branch L_FIN")
    a("s_branch L_F_ml0")
    a.label("L_F_addrB")
    a(f"""s_lshl_b32 s{sP[0]}, s{sH}, 14
          s_lshl_b32 s{sT[0]}, s{sW}, 8
          s_add_u32 s{sP[0]}, s{sP[0]}, s{sT[0]}
          s_add_u32 s{sP[0]}, s{sP[0]}, {WS_PB}
          s_add_u32 s{sP[1]}, s{sP[0]}, 1024
          s_add_u32 s{sP[2]}, s{sP[0]}, 8192
          s_add_u32 s{sP[3]}, s{sP[0]}, 9216
          v_lshrrev_b32 v{vA0}, 2, v{vC}
          v_lshlrev_b32 v{vA0}, 11, v{vA0}
          v_and_b32 v{vT[0]}, 3, v{vC}
          v_lshl_add_u32 v{vA0}, v{vT[0]}, 4, v{vA0}
          v_lshl_add_u32 v{vA0}, v{vG}, 6, v{vA0}
          s_waitcnt lgkmcnt(0)""")
    stamp(6)
    a("s_barrier")
    if ya == "mid" and not abl_noA:
        a(f"""s_cmp_eq_u32 s{sW}, 3
              s_cbranch_scc0 L_F_noya
              s_mov_b32 s{sT[3]}, s{sT[1]}
              s_mov_b32 s{sBr}, 0""")
        call("L_PUBY")
        a(f"s_mov_b32 s{sBr}, 1\ns_mov_b32 s{sT[1]}, s{sT[3]}\nL_F_noya:")
    if rank:
        a(f"s_cmp_eq_u32 s{sW}, 0\ns_cbranch_scc0 L_F_ml0")
        if rank == "m":
            a(f"""s_lshl_b32 s{sT[0]}, s{sX}, 12
                  s_add_u32 s{sT[0]}, s{sT[0]}, {WS_MK}
                  v_and_b32 v{vU[0]}, 31, v{vLane}
                  v_lshlrev_b32 v{vU[0]}, 7, v{vU[0]}
                  v_add_u32 v{vU[1]}, {WS_GM}, v{vU[0]}
                  v_add_u32 v{vU[0]}, s{sT[0]}, v{vU[0]}
                  s_lshl_b32 s{sT[3]}, s{sI}, 7
                  s_add_u32 s{sT[3]}, s{sT[3]}, s{sT[0]}
                  v_mov_b32 v{vG4+2}, s{sTag}
                  v_mov_b32 v{vG4+3}, s{sTag+1}""")
            if gw: a(f"s_mov_b32 exec_lo, 0\nv_mov_b32 v{vU[0]}, v{vU[1]}\ns_mov_b32 exec_lo, -1")
            else: a("s_mov_b32 exec_hi, 0")
            if not gdelay: a(f"buffer_load_dword v{vG4}, v{vU[0]}, s[16:19], 0 offen {gld}")
            a(f"""v_lshlrev_b32 v{vU[1]}, 3, v{vLane}
                  s_mov_b64 exec, 0xffff
                  buffer_store_dwordx2 v[{vG4+2}:{vG4+3}], v{vU[1]}, s[16:19], s{sT[3]} offen""")
            if gw or gx:
                a(f"""s_cmp_eq_u32 s{sR}, 5
                      s_cbranch_scc0 L_F_nogm
                      s_lshl_b32 s{sT[3]}, s{sHA}, 7
                      s_add_u32 s{sT[3]}, s{sT[3]}, {WS_GM}
                      buffer_store_dwordx2 v[{vG4+2}:{vG4+3}], v{vU[1]}, s[16:19], s{sT[3]} offen sc1
                      L_F_nogm:""")
            a("s_mov_b64 exec, -1")
            if gdelay: a(f"s_sleep {gdelay}\nbuffer_load_dword v{vG4}, v{vU[0]}, s[16:19], 0 offen {gld}")
            a(f"""s_waitcnt vmcnt(0)
                  v_cmp_eq_u32 vcc, s{sTag}, v{vG4}
                  s_nop 1
                  s_bcnt1_i32_b32 s{sT[0]}, vcc_lo""")
            if gw:
                a(f"s_bcnt1_i32_b32 s{sT[3]}, vcc_hi")
                if diag: a(f"s_mov_b32 s56, s{sT[3]}\ns_mov_b32 s57, 0")
                a(f"""s_mul_i32 s{sT[3]}, s{sT[3]}, {gw}
                      s_mul_i32 s{sT[0]}, s{sT[0]}, {4 - gw}
                      s_add_u32 s{sT[0]}, s{sT[0]}, s{sT[3]}
                      s_lshl_b32 s{sT[0]}, s{sT[0]}, 1
                      s_add_u32 s{sT[0]}, s{sT[0]}, {gbias}
                      s_min_u32 s{sT[0]}, s{sT[0]}, 255""")
            else:
                if gx:
                    a(f"""s_lshl_b32 s98, s{sX}, 7
                          s_add_u32 s98, s98, {WS_XL}
                          s_sub_u32 s{sT[3]}, s{sT[0]}, {glo}
                          s_cmp_le_u32 s{sT[3]}, {ghi - glo}
                          s_cbranch_scc0 L_F_gx1
                          {"s_branch L_F_gx1" if gnoread else ""}
                          v_lshlrev_b32 v{vU[0]}, 7, v{vLane}
                          s_mov_b32 s{sT[3]}, {WS_GM}
                          s_mov_b32 exec_hi, 0
                          buffer_load_dword v{vG4}, v{vU[0]}, s[16:19], s{sT[3]} offen sc1
                          s_mov_b32 exec_hi, -1
                          s_waitcnt vmcnt(0)
                          v_cmp_eq_u32 vcc, s{sTag}, v{vG4}
                          s_nop 1
                          s_bcnt1_i32_b32 s{sT[3]}, vcc_lo
                          v_mov_b32 v{vG4+3}, s{sT[3]}
                          s_mov_b64 exec, 0xffff
                          buffer_store_dwordx2 v[{vG4+2}:{vG4+3}], v{vU[1]}, s[16:19], s98 offen
                          s_mov_b64 exec, -1
                          L_F_gx1:
                          s_mov_b32 s99, {gpoll}
                          v_mov_b32 v{vU[0]}, 0
                          L_F_gx2:
                          s_mov_b64 exec, 1
                          buffer_load_dwordx2 v[{vG4}:{vG4+1}], v{vU[0]}, s[16:19], s98 offen nt
                          s_mov_b64 exec, -1
                          s_waitcnt vmcnt(0)
                          v_readfirstlane_b32 s{sT[3]}, v{vG4}
                          v_readfirstlane_b32 s100, v{vG4+1}
                          s_cmp_eq_u32 s{sT[3]}, s{sTag}
                          s_cbranch_scc1 L_F_gx3
                          s_mov_b32 s100, 20
                          s_sleep 16
                          s_sub_u32 s99, s99, 1
                          s_cbranch_scc0 L_F_gx2
                          L_F_gx3:
                          s_min_u32 s100, s100, 31""")
                    if diag: a(f"s_mov_b32 s56, s100\ns_mov_b32 s57, 0")
                    a(f"""s_and_b32 s100, s100, 28
                          s_lshr_b32 s100, {xtab}, s100
                          s_and_b32 s100, s100, 15""")
                a(f"s_lshl_b32 s{sT[0]}, s{sT[0]}, 3\ns_min_u32 s{sT[0]}, s{sT[0]}, 255")
        elif rank == "s":
            a(f"""s_mov_b32 s{sT[0]}, 1
                  s_atomic_add s{sT[0]}, s[{K_DBG}:{K_DBG+1}], 0 glc
                  s_waitcnt lgkmcnt(0)""")
        else:
            srd(20, K_DBG, 256)
            a(f"""v_mov_b32 v{vU[0]}, 0
                  v_mov_b32 v{vU[1]}, 1
                  s_mov_b64 exec, 1
                  buffer_atomic_add v{vU[1]}, v{vU[0]}, s[20:23], 0 offen sc0
                  s_mov_b64 exec, -1
                  s_waitcnt vmcnt(0)
                  v_readfirstlane_b32 s{sT[0]}, v{vU[1]}""")
        if diag: a(f"s_mov_b32 s58, s{sT[0]}\ns_mov_b32 s59, 0")
        if rtab == "table":
            a(f"s_load_dword s{sT[3]}, s[{K_WS}:{K_WS+1}], 49152\ns_waitcnt lgkmcnt(0)")
        else: a(f"s_mov_b32 s{sT[3]}, {rtab}")
        a(f"""s_lshr_b32 s{sT[0]}, s{sT[0]}, 3
              s_and_b32 s{sT[0]}, s{sT[0]}, 28
              s_lshr_b32 s{sT[0]}, s{sT[3]}, s{sT[0]}
              s_and_b32 s{sT[0]}, s{sT[0]}, 15
              s_add_u32 s{sT[0]}, s{sT[0]}, 16
              s_lshr_b32 s{sT[3]}, s{sX}, 2
              s_mul_i32 s{sT[3]}, s{sT[3]}, {xb}
              s_add_u32 s{sT[0]}, s{sT[0]}, {"s100" if gx else f"s{sT[3]}"}
              v_mov_b32 v{vU[0]}, {L_CNT + 20}
              v_mov_b32 v{vU[1]}, s{sT[0]}
              ds_write_b32 v{vU[0]}, v{vU[1]}""")
    def wo_loads():
        for e in range(8):
            a(f"buffer_load_dwordx2 v[{vRaw+2*e}:{vRaw+2*e+1}], v{vO0 + (e >> 2)}, s[12:15], s{sOff} offen offset:{(e & 3) * 1024} nt")
    def part_loads():
        for k in range(4):
            r = PB + 4 * k
            a(f"buffer_load_dwordx4 v[{r}:{r+3}], v{vA0}, s[16:19], s{sP[k]} offen {pld}")
    def perms():
        for ct in range(4):
            for k, (ea, eb) in enumerate(((0, 1), (4, 5), (2, 3), (6, 7))):
                a(f"v_perm_b32 v{vBop+4*ct+k}, v{vRaw+2*eb+(ct>>1)}, v{vRaw+2*ea+(ct>>1)}, s{sSel0 + (ct & 1)}")
    a.label("L_F_ml0")
    if wo_at == "mid": wo_loads()
    if wo_at == "touch":
        a(f"s_mov_b64 exec, 1\nbuffer_load_dword v{vRaw}, v{vO0}, s[12:15], s{sOff} offen nt\ns_mov_b64 exec, -1")
    a.label("L_F_mlpoll")
    if narrow: a("s_mov_b32 exec_hi, 0")
    a(f"""buffer_load_dwordx4 v[{vG4}:{vG4+3}], v{vT[3]}, s[16:19], s{sT[1]} offen offset:512 {ldf}
          s_waitcnt vmcnt(0)""")
    tagcheck([vG4], "L_F_mlpoll", "L_F_mlok", "always", narrow, 24)
    if wo_at == "mid": perms()
    a(f"v_mov_b32 v{vM}, v{vG4}")
    row_allreduce("v_max_f32", [vM])
    a(f"""v_sub_f32 v{vG4}, v{vG4}, v{vM}
          v_mul_f32 v{vG4}, s{sLog2e}, v{vG4}
          v_exp_f32 v{vG4}, v{vG4}
          v_mul_f32 v{vG4}, v{vG4}, v{vG4+2}
          v_mov_b32 v{vL}, v{vG4}""")
    row_allreduce("v_add_f32", [vL])
    a(f"""v_rcp_f32 v{vL}, v{vL}
          s_lshl_b32 s{sT[0]}, s{sW}, 7
          v_lshl_add_u32 v{vT[0]}, v{vT[2]}, 2, s{sT[0]}
          v_mul_f32 v{vG4}, v{vG4}, v{vL}
          v_lshl_add_u32 v{vT[1]}, v{vG}, 4, s{sT[0]}
          s_mov_b32 exec_hi, 0
          ds_write_b32 v{vT[0]}, v{vG4} offset:{L_WT}
          s_mov_b32 exec_hi, -1
          ds_read_b128 v[{vW}:{vW+3}], v{vT[1]} offset:{L_WT}
          ds_read_b128 v[{vW+4}:{vW+7}], v{vT[1]} offset:{L_WT+64}
          s_lshl_b32 s{sT[0]}, s{sBr}, 2
          s_add_u32 s{sT[0]}, s{sT[0]}, s{sW}
          s_lshl_b32 s{sT[0]}, s{sT[0]}, 9
          v_lshrrev_b32 v{vT[0]}, 1, v{vG}
          v_lshlrev_b32 v{vT[0]}, 5, v{vT[0]}
          v_and_b32 v{vT[1]}, 1, v{vG}
          v_lshl_add_u32 v{vT[1]}, v{vC}, 1, v{vT[1]}
          v_add_lshl_u32 v{vT[0]}, v{vT[0]}, v{vT[1]}, 3
          v_add_u32 v{vT[0]}, s{sT[0]}, v{vT[0]}
          v_mov_b32 v{vHi}, v{vT[0]}
          s_mov_b32 s{sSpin}, {SPIN}
          """)
    if fastf2:
        a(f"""v_mov_b32 v{vS}, {L_CNT + 8}
              v_mov_b32 v{vS+1}, 1
              v_lshlrev_b32 v{vS+2}, 3, v{vLane}
              v_lshlrev_b32 v{vS+3}, 4, v{vLane}
              v_lshrrev_b32 v{vS+5}, 5, v{vLane}
              v_lshlrev_b32 v{vS+4}, 10, v{vT[2]}
              v_lshl_add_u32 v{vS+4}, v{vS+5}, 4, v{vS+4}
              v_lshlrev_b32 v{vS+5}, 2, v{vS+5}
              v_bfe_u32 v{vS+6}, v{vLane}, 3, 1
              v_lshl_add_u32 v{vS+5}, v{vS+6}, 10, v{vS+5}
              v_bfe_u32 v{vS+6}, v{vLane}, 2, 1
              v_lshl_add_u32 v{vS+5}, v{vS+6}, 1, v{vS+5}
              v_mov_b32 v{vQ+1}, s{sTag}
              v_mov_b32 v{vQ+3}, s{sTag+1}
              s_add_u32 s98, s{sR}, 8
              s_lshl_b32 s98, s98, 5
              s_add_u32 s98, s98, s{sHA}
              s_lshl_b32 s98, s98, 10
              s_add_u32 s98, s98, {WS_Y}
              s_lshl_b32 s99, s{sX}, 15
              s_lshl_b32 s{sT[0]}, s{sI}, 5
              s_add_u32 s99, s99, s{sT[0]}
              s_add_u32 s99, s99, {WS_Y}
              s_add_u32 s{sT[3]}, s99, {8 << 15}
              s_lshr_b32 s{sT[2]}, s{sI}, 4
              s_lshl_b32 s{sT[2]}, s{sT[2]}, 11
              s_lshl_b32 s{sT[0]}, s{sX}, 7
              s_add_u32 s{sT[2]}, s{sT[2]}, s{sT[0]}
              s_and_b32 s{sT[0]}, s{sI}, 15
              s_lshl_b32 s{sT[0]}, s{sT[0]}, 3
              s_add_u32 s{sT[2]}, s{sT[2]}, s{sT[0]}""")
        srd(20, K_OUT, 4096)
    a(f"s_cmp_eq_u32 s{sBr}, 0\ns_cbranch_scc1 {'L_F_goA' if aser else 'L_F_go'}")
    if ya == "flag":
        a(f"s_cmp_eq_u32 s{sW}, 3\ns_cbranch_scc0 L_F_b2")
        lds_wait(24, 1, "L_F_yaw", 4)
        a(f"s_mov_b32 s{sBr}, 0")
        call("L_PUBY")
        a(f"s_mov_b32 s{sBr}, 1\ns_mov_b32 s{sSpin}, {SPIN}\nL_F_b2:")
    a("s_barrier")
    tstamp(1)
    if abl_notail: a("s_branch L_exit")
    if ya == "h3" and not abl_noA:
        a(f"""s_cmp_eq_u32 s{sW}, 3
              s_cbranch_scc0 L_F_go
              s_mov_b32 s{sBr}, 0""")
        call("L_PUBY")
        a(f"s_mov_b32 s{sBr}, 1")
    a.label("L_F_go")
    if wo_at == "mid":
        a("s_mov_b64 vcc, -1")
    else:
        wo_loads(); part_loads()
        a("s_waitcnt vmcnt(4)")
        tstamp(2)
        perms()
        a("s_branch L_F_pwait")
    a.label("L_F_ppoll")
    if masked: a("s_mov_b64 exec, vcc")
    part_loads()
    if masked: a("s_mov_b64 exec, -1")
    a.label("L_F_pwait")
    a("s_waitcnt vmcnt(0)")
    tagcheck([PB + 4 * k for k in range(4)], "L_F_ppoll", "L_F_pok", True)
    tstamp(3)
    for b in range(2):
        a(f"v_mov_b32 v{PB+8*b+1}, v{PB+8*b+4}\nv_mov_b32 v{PB+8*b+3}, v{PB+8*b+6}")
    if fastf2:
        D = vRing + 32
        a("s_waitcnt lgkmcnt(0)")
        def fm(k):
            b = k // 4; d = D + 4 * k
            a(f"v_mul_f32 v{vAcc+k}, v{vW+4*b}, v{d}")
            for i in range(1, 4): a(f"v_fmac_f32 v{vAcc+k}, v{vW+4*b+i}, v{d+i}")
        order = [0, 4, 1, 5, 2, 6, 3, 7]
        for n, k in enumerate(order):
            b, ct = k // 4, k % 4; d = D + 4 * k
            a(f"v_mfma_f32_16x16x32_bf16 v[{d}:{d+3}], v[{PB+8*b}:{PB+8*b+3}], v[{vBop+4*ct}:{vBop+4*ct+3}], 0")
            if n >= f2lag: fm(order[n - f2lag])
        for n in range(8 - f2lag, 8): fm(order[n])
        for e in range(4): a(f"v_permlane32_swap_b32 v{vAcc+e}, v{vAcc+e+4}")
        for e in range(4): a(f"v_add_f32 v{vAcc+e}, v{vAcc+e}, v{vAcc+e+4}")
        for e in range(2): a(f"v_permlane16_swap_b32 v{vAcc+e}, v{vAcc+e+2}")
        for e in range(2): a(f"v_add_f32 v{vAcc+e}, v{vAcc+e}, v{vAcc+e+2}")
        a(f"""ds_write_b64 v{vHi}, v[{vAcc}:{vAcc+1}] offset:{L_YR}
              s_cmp_eq_u32 s{sBr}, 0
              s_mov_b32 s{sBr}, 1""")
        if diag:
            a("s_cbranch_scc0 L_F_tail"); stamp(5); a("s_branch L_FIN"); a.label("L_F_tail")
        else:
            a("s_cbranch_scc1 L_FIN")
        a(f"""s_mov_b64 exec, 1
              ds_add_rtn_u32 v{vU[2]}, v{vS}, v{vS+1}
              s_mov_b64 exec, -1""")
        for k in range(4): a(f"ds_read_b64 v[{vt+2*k}:{vt+2*k+1}], v{vS+2} offset:{L_YR + 2048 + 512*k}")
        a(f"""s_mov_b32 s{sSpin}, {SPIN}
              s_mov_b64 vcc, -1
              s_waitcnt lgkmcnt(0)
              v_readfirstlane_b32 s{sT[0]}, v{vU[2]}
              v_add_f32 v{vQ}, v{vt}, v{vt+2}
              v_add_f32 v{vQ+2}, v{vt+1}, v{vt+3}
              v_add_f32 v{vt+4}, v{vt+4}, v{vt+6}
              v_add_f32 v{vt+5}, v{vt+5}, v{vt+7}
              s_cmp_eq_u32 s{sT[0]}, 3
              s_cbranch_scc0 {"L_F_nl" if f3first else "L_exit"}
              v_add_f32 v{vQ}, v{vQ}, v{vt+4}
              v_add_f32 v{vQ+2}, v{vQ+2}, v{vt+5}
              buffer_store_dwordx4 v[{vQ}:{vQ+3}], v{vS+3}, s[16:19], s98 offen {yst}""")
        tstamp(4)
        if f3first:
            a(f"s_branch L_exit\nL_F_nl:\ns_cmp_eq_u32 s{sT[0]}, {f3first - 1}\ns_cbranch_scc0 L_exit")
        a.label("L_F_ypoll")
        a("s_mov_b64 exec, vcc")
        a(f"buffer_load_dwordx4 v[{R0+4}:{R0+7}], v{vS+4}, s[16:19], s{sT[3]} offen {yld}")
        if not abl_noA: a(f"buffer_load_dwordx4 v[{R0}:{R0+3}], v{vS+4}, s[16:19], s99 offen {yld}")
        a("s_mov_b64 exec, -1\ns_waitcnt vmcnt(0)")
        tagcheck([R0 + 4] if abl_noA else [R0, R0 + 4], "L_F_ypoll", "L_F_yok")
        tstamp(5)
        a(f"""v_add_f32_dpp v{R0}, v{R0}, v{R0} row_mirror row_mask:0xf bank_mask:0x3
              v_add_f32_dpp v{R0+2}, v{R0+2}, v{R0+2} row_mirror row_mask:0xf bank_mask:0x3
              v_add_f32_dpp v{R0}, v{R0+4}, v{R0+4} row_mirror row_mask:0xf bank_mask:0xc
              v_add_f32_dpp v{R0+2}, v{R0+6}, v{R0+6} row_mirror row_mask:0xf bank_mask:0xc
              v_add_f32_dpp v{R0}, v{R0}, v{R0} row_half_mirror row_mask:0xf bank_mask:0x5
              v_add_f32_dpp v{R0}, v{R0+2}, v{R0+2} row_half_mirror row_mask:0xf bank_mask:0xa
              v_add_f32_dpp v{R0}, v{R0}, v{R0} quad_perm:[2,3,0,1] row_mask:0xf bank_mask:0xf
              v_add_f32_dpp v{R0}, v{R0}, v{R0} quad_perm:[1,0,3,2] row_mask:0xf bank_mask:0xf
              v_mov_b32 v{R0+1}, v{R0}
              v_permlane16_swap_b32 v{R0}, v{R0+1}
              v_add_f32 v{R0}, v{R0}, v{R0+1}
              v_cvt_pk_bf16_f32 v{R0}, v{R0}, v{R0}
              s_mov_b32 exec_lo, 0x1111
              s_mov_b32 exec_hi, 0x1111
              buffer_store_short v{R0}, v{vS+5}, s[20:23], s{sT[2]} offen
              s_mov_b64 exec, -1""")
    else:
        D = vRing + 32
        for b in range(2):
            for ct in range(4):
                d = D + (b * 4 + ct) * 4
                a(f"v_mfma_f32_16x16x32_bf16 v[{d}:{d+3}], v[{PB+8*b}:{PB+8*b+3}], v[{vBop+4*ct}:{vBop+4*ct+3}], 0")
        a("s_waitcnt lgkmcnt(0)")
        for i in range(4):
            for b in range(2):
                for ct in range(4):
                    d = D + (b * 4 + ct) * 4
                    if i == 0: a(f"v_mul_f32 v{vAcc+b*4+ct}, v{vW+4*b}, v{d}")
                    else: a(f"v_fmac_f32 v{vAcc+b*4+ct}, v{vW+4*b+i}, v{d+i}")
        call("L_RED8")
        a(f"""ds_write_b64 v{vHi}, v[{vAcc}:{vAcc+1}] offset:{L_YR}
              s_cmp_eq_u32 s{sBr}, 0
              s_mov_b32 s{sBr}, 1""")
        if diag:
            a("s_cbranch_scc0 L_F_tail"); stamp(5); a("s_branch L_FIN"); a.label("L_F_tail")
        else:
            a("s_cbranch_scc1 L_FIN")
        a(f"""v_mov_b32 v{vU[0]}, {L_CNT + 8}
              v_mov_b32 v{vU[1]}, 1
              s_mov_b64 exec, 1
              ds_add_rtn_u32 v{vU[2]}, v{vU[0]}, v{vU[1]}
              s_mov_b64 exec, -1
              s_waitcnt lgkmcnt(0)
              v_readfirstlane_b32 s{sT[0]}, v{vU[2]}
              s_cmp_eq_u32 s{sT[0]}, 3
              s_cbranch_scc0 L_exit""")
        call("L_PUBY")
        if ya == "last" and not abl_noA:
            a(f"s_mov_b32 s{sBr}, 0"); call("L_PUBY"); a(f"s_mov_b32 s{sBr}, 1")
        tstamp(4)
        a(f"""s_lshl_b32 s{sT[1]}, s{sX}, 15
              s_lshl_b32 s{sT[0]}, s{sI}, 5
              s_add_u32 s{sT[1]}, s{sT[1]}, s{sT[0]}
              s_add_u32 s{sT[1]}, s{sT[1]}, {WS_Y}
              s_add_u32 s{sT[3]}, s{sT[1]}, {8 << 15}
              v_lshrrev_b32 v{vT[0]}, 5, v{vLane}
              v_lshlrev_b32 v{vT[1]}, 10, v{vT[2]}
              v_lshl_add_u32 v{vT[1]}, v{vT[0]}, 4, v{vT[1]}
              v_lshlrev_b32 v{vT[0]}, 2, v{vT[0]}
              s_lshr_b32 s{sT[2]}, s{sI}, 4
              s_lshl_b32 s{sT[2]}, s{sT[2]}, 11
              s_lshl_b32 s{sT[0]}, s{sX}, 7
              s_add_u32 s{sT[2]}, s{sT[2]}, s{sT[0]}
              s_and_b32 s{sT[0]}, s{sI}, 15
              s_lshl_b32 s{sT[0]}, s{sT[0]}, 3
              s_add_u32 s{sT[2]}, s{sT[2]}, s{sT[0]}
              s_mov_b32 s{sSpin}, {SPIN}""")
        srd(20, K_OUT, 4096)
        if masked: a("s_mov_b64 vcc, -1")
        a.label("L_F_ypoll")
        if masked: a("s_mov_b64 exec, vcc")
        a(f"buffer_load_dwordx4 v[{R0+4}:{R0+7}], v{vT[1]}, s[16:19], s{sT[3]} offen {yld}")
        if not abl_noA: a(f"buffer_load_dwordx4 v[{R0}:{R0+3}], v{vT[1]}, s[16:19], s{sT[1]} offen {yld}")
        if masked: a("s_mov_b64 exec, -1")
        a("s_waitcnt vmcnt(0)")
        tagcheck([R0 + 4] if abl_noA else [R0, R0 + 4], "L_F_ypoll", "L_F_yok")
        tstamp(5)
        row_allreduce("v_add_f32", [R0, R0 + 2, R0 + 4, R0 + 6])
        for k in range(4): a(f"v_mov_b32 v{R0+2*k+1}, v{R0+2*k}")
        for k in range(4): a(f"v_permlane16_swap_b32 v{R0+2*k}, v{R0+2*k+1}")
        for k in range(4): a(f"v_add_f32 v{R0+2*k}, v{R0+2*k}, v{R0+2*k+1}")
        a(f"""v_cvt_pk_bf16_f32 v{R0}, v{R0}, v{R0+2}
              v_cvt_pk_bf16_f32 v{R0+4}, v{R0+4}, v{R0+6}
              s_mov_b32 exec_lo, 1
              s_mov_b32 exec_hi, 1
              buffer_store_dword v{R0}, v{vT[0]}, s[20:23], s{sT[2]} offen
              buffer_store_dword v{R0+4}, v{vT[0]}, s[20:23], s{sT[2]} offen offset:1024
              s_mov_b64 exec, -1""")
    a(f"""s_nop 0
          s_cmp_eq_u32 s2, 0
          s_cbranch_scc0 L_exit
          v_mov_b32 v{vT[0]}, {WS_EPOCH}
          v_mov_b32 v{vT[1]}, s{sEp}
          s_mov_b64 exec, 1
          buffer_store_dword v{vT[1]}, v{vT[0]}, s[16:19], 0 offen sc1
          s_mov_b64 exec, -1""")

    if aser:
        a("s_branch L_exit")
        a.label("L_F_goA")
        for k in range(4):
            r = PB + 4 * k
            a(f"buffer_load_dwordx4 v[{r}:{r+3}], v{vA0}, s[16:19], s{sP[k]} offen {pld}\ns_waitcnt vmcnt({aser - 1})")
        a("s_branch L_F_pwait")
    a.label("L_exit")
    if fixdur:
        a.label("L_fix")
        a(f"""s_memrealtime s[50:51]
              s_waitcnt lgkmcnt(0)
              s_sub_u32 s50, s50, s48
              s_cmp_lt_u32 s50, {fixdur}
              s_cbranch_scc1 L_fix""")
    if diag:
        stamp(7)
        a(f"""s_lshl_b32 s{sT[0]}, s2, 3
              s_add_u32 s{sT[0]}, s{sT[0]}, s{sWave}
              s_lshl_b32 s{sT[0]}, s{sT[0]}, 6
              s_add_u32 s{sT[0]}, s{sT[0]}, {STAMP_OFF}
              s_waitcnt vmcnt(0) lgkmcnt(0)
              v_mov_b32 v{vT[0]}, 0""")
        for k in range(16): a(f"v_mov_b32 v{vRing+k}, s{48+k}")
        a("s_mov_b64 exec, 1")
        for k in range(4): a(f"buffer_store_dwordx4 v[{vRing+4*k}:{vRing+4*k+3}], v{vT[0]}, s[16:19], s{sT[0]} offen offset:{16*k}")
    a.label("L_end")
    a("s_endpgm")

    body, nops = a.render(nstub=NSTUB if stubs else 0, total=NSTUB)
    head = open(f"cdna_kernels/{NAME}.s.ref").read().split("; Override launch")[0]
    txt = head + f"""; Emitted by a hand-written generator script (dev/gen.py). One persistent workgroup per CU, one launch.
;   workgroup j: x = j&7, i = j>>3, head h = 4x + (i>>3), batch (i>>2)&1, key split i&3, column slice r = i&7
;   waves 4-7 stream 2048 keys of branch-B K then V (32-slot register ring, bounded number of loads in flight),
;     exact per-wave softmax (true max), publish a normalised partial o plus (max, sum)
;   waves 0-3: q partials (64 rows of wq per workgroup), branch-A attention (128 keys x 4 heads per workgroup),
;     combination of the partials + output projection (MFMA) and the final sum over heads
;   hand-offs go through d_ws as 16-byte granules carrying a per-launch tag (epoch word in d_ws + 1); a consumer that
;     keeps missing data writes its L2 back, so results do not depend on where workgroups are placed
; @launch grid=(256,1,1) block=(512,1,1) lds={LDS_BYTES}
.amdgcn_target "amdgcn-amd-amdhsa--gfx950"
.text
.globl {NAME}_kernel
.p2align 12
.p2align 8
.type {NAME}_kernel,@function
{body}.section .rodata,"a"
.p2align 6
.amdhsa_kernel {NAME}_kernel
  .amdhsa_next_free_vgpr {NVGPR}
  .amdhsa_next_free_sgpr 102
  .amdhsa_accum_offset {NVGPR}
  .amdhsa_group_segment_fixed_size 0
  .amdhsa_kernarg_size 104
  .amdhsa_user_sgpr_count 2
  .amdhsa_user_sgpr_kernarg_segment_ptr 1
  .amdhsa_system_sgpr_workgroup_id_x 1
  .amdhsa_float_denorm_mode_32 3
.end_amdhsa_kernel
"""
    return txt, nops, a.code_bytes

if __name__ == "__main__":
    out = sys.argv[1]
    kw = json.loads(sys.argv[2]) if len(sys.argv) > 2 else {}
    txt, nops, nb = gen(**kw)
    open(out, "w").write(txt)
    print(out, "lines", txt.count("\n"), "auto nops", nops, "code bytes", nb)
```

```python
import sys, json
sys.path.insert(0, "dev")
from asmlib import Asm
NAME = "concat_heads__sliding_block_cached__mha_block_cached__decode"

WS_EPOCH, WS_Y, WS_QP, WS_PART, WS_PB = 0, 64 << 10, 1 << 20, 2 << 20, (3 << 20) + (512 << 10)
WS_MK = 16 << 10
WS_GM = 8 << 10
WS_XL = 4 << 10
REC = 640
WS_SIZE = 512 << 20
STAMP_OFF = 64 << 20
L_QB, L_QA, L_CNT, L_MLA, L_WT, L_OA, L_YR = 0, 256, 1280, 1408, 1536, 2048, 10240
LDS_BYTES = 16384
vLane, vO0, vO1 = 1, 2, 3
vT = [4, 5, 6, 7]
vQ = 8
vAcc = 12
vt = 20
vZ0, vZ1, vZA = 28, 29, 30
vP = 32
vLo, vHi = 34, 35
vS = 36
vG4 = 44
vM, vL, vC, vG = 48, 49, 50, 51
vU = [52, 53, 54, 55]
vW = 56
vRing = 64
vRaw = 192
vAd = 208
vBop = 208
NVGPR = 224
sWave, sW, sX, sI, sH, sB, sS, sR = 3, 4, 5, 6, 7, 8, 9, 10
sOff = 24
sT = [25, 26, 27, 11]
sTag = 28
sRet = 30
sEp = 32
sMc1, sMc0 = 34, 36
sScale, sLog2e, sHiMask = 38, 39, 40
sSpin, sBr, sHH = 41, 42, 43
sPub, sU = 44, 45
sSel0, sSel1 = 46, 47
sPubO, sShift = 90, 91
sCnt, sMask = 92, 93
sHA, sHB = 96, 97
sP = [92, 93, 94, 95]
K_AX, K_AK, K_AV, K_AWQ, K_AWO, K_BX, K_BK, K_BV, K_BWQ, K_BWO, K_OUT, K_DBG, K_WS = [64 + 2 * i for i in range(13)]
SPIN = 1 << 18

def slot(G, s): return vRing + (G * 8 + s) * 4

def gen(NSTUB=8, diag=False, bar0=True, asleep=32, stubs=True, abl_noA=False, abl_noq=False, abl_notail=False,
        TK=(5,5,5,5,5,5,5,6), TV=(16,), vfrom=7, TH=14, early_bar=False, masked=True, pre=-1, midbar=2, wo_at="mid", pat=2, pata=2, bperm=None, lag=2, nfast=4, endlag=3, midg=5, fastend=True, fastf2=True, f2lag=3, f3first=True, rank='m', rtab=1412571392, gw=0, gdelay=0, gld='nt', gbias=0, gx=False, glo=15, ghi=17, gpoll=4, xtab=0x33221100, gnoread=False, rfrom=2, rmax=6, nodup=True, bhint=False, hmap=2, ph=1, phm=2, wxa=5, kvi=False, wb=0, phb=(18, 17), aearly=False, g0free=False, table=False, xorph=False, phx=0, phs=0, latefree=0, pld="nt", ya="flag", tsleep=0, local=True, slow=128, perm=0, ldf="nt", yld="sc1", yst="sc1", sprio=0, abl_Apoll=False, abl_Acomp=False, abl_Akv=False, abl_Ast=False, narrow=True, aser=1, qser=4, n0=3, xb=1, lateslots=(), stublate=False, TF=None, kvdelay=0, TQ=0, latemask=0xf0, vboost=0, tlb=0, yag=15, late2=True, h2early=True, abl_dbl=False, fixdur=0):
    assert max(TK) <= 16 and max(TV) <= 16
    two = tuple(TK) != tuple(TV)
    def iss(c, G): call(f"L_ISS{'V' if (two and c >= vfrom) else 'K'}{G}")
    a = Asm()
    uid = [0]
    stf = "" if local else "sc1"
    def tstamp(i):
        if diag == 3: a(f"s_memrealtime s[{48+2*i}:{49+2*i}]")
    def stamp(i):
        if diag == 2 and i in (1, 2): return
        if diag: a(f"s_memrealtime s[{48+2*i}:{49+2*i}]")
        if diag == 2 and i == 0: a("s_memtime s[50:51]")
        if diag == 2 and i == 5: a("s_memtime s[52:53]")
    def srd(base, ptr, size):
        a(f"s_mov_b32 s{base}, s{ptr}\ns_mov_b32 s{base+1}, s{ptr+1}\ns_mov_b32 s{base+2}, {size}\ns_mov_b32 s{base+3}, 0x00020000")
    def addr(s, p):
        if p == 8: return (vAd + (s >> 2), (s & 3) * 1024)
        return (vAd + s // p, (s % p) * 1024)
    def addr_setup(p, wx=-1):
        if wx >= 0: a(f"s_lshr_b32 s{sT[0]}, s2, {wx}\ns_xor_b32 s{sT[0]}, s{sT[0]}, s{sW}\ns_and_b32 s{sT[0]}, s{sT[0]}, 3")
        a(f"""s_lshl_b32 s{sT[0]}, s{sT[0] if wx >= 0 else sW}, {10 + p.bit_length() - 1}
              v_lshlrev_b32 v{vAd}, 4, v{vLane}
              v_add_u32 v{vAd}, s{sT[0]}, v{vAd}""")
        if p == 8: a(f"v_add_u32 v{vAd+1}, 0x1000, v{vAd}")
        else:
            for k in range(1, 8 // p): a(f"v_add_u32 v{vAd+k}, {k * p * 4096}, v{vAd}")
    def issue(G, tp, bar_at=-1):
        for s in range(8):
            if s == bar_at: a("s_barrier")
            if bar_at >= 0 and s == 5 and stublate: touch([(4, 5), (5, 0), (6, 2), (7, 7)])
            r = slot(G, s)
            t = tp[s % len(tp)]
            if t and tp is TK and s in lateslots:
                uid[0] += 1
                a(f"s_waitcnt vmcnt({t})\ns_cbranch_vccnz L_lt{uid[0]}\ns_waitcnt vmcnt({t - 1})\nL_lt{uid[0]}:")
            elif t: a(f"s_waitcnt vmcnt({t - 1})")
            va, imm = (vAd + s, 0) if bperm else addr(s, pat)
            a(f"buffer_load_dwordx4 v[{r}:{r+3}], v{va}, s[12:15], s{sOff} offen offset:{imm} nt")
        if xorph: a(f"s_add_u32 s{sCnt}, s{sCnt}, 0x8000\ns_and_b32 s{sCnt}, s{sCnt}, 0x7ffff\ns_xor_b32 s{sOff}, s{sCnt}, s{sMask}")
        elif wb:
            hole = 3 << wb
            a(f"s_or_b32 s{sOff}, s{sOff}, {hole}\ns_add_u32 s{sOff}, s{sOff}, 0x2000\ns_and_b32 s{sOff}, s{sOff}, {0x7ffff & ~hole}")
        else: a(f"s_add_u32 s{sOff}, s{sOff}, 0x8000\ns_and_b32 s{sOff}, s{sOff}, 0x7ffff")
    def call(lbl): a(f"s_call_b64 s[{sRet}:{sRet+1}], {lbl}")
    def ret(): a(f"s_setpc_b64 s[{sRet}:{sRet+1}]")
    def row_allreduce(op, regs):
        for m in ("row_mirror", "row_half_mirror", "quad_perm:[2,3,0,1]", "quad_perm:[1,0,3,2]"):
            for x in regs: a(f"{op}_dpp v{x}, v{x}, v{x} {m} row_mask:0xf bank_mask:0xf")
    def xrow(op, x, tmp, which):
        a(f"v_mov_b32 v{tmp}, v{x}\nv_permlane{which}_swap_b32 v{x}, v{tmp}\n{op} v{x}, v{x}, v{tmp}")
    def wave_allreduce(op, x, tmp):
        row_allreduce(op, [x]); xrow(op, x, tmp, 16); xrow(op, x, tmp, 32)
    def round_scores(x, y, t):
        a(f"""v_cvt_pk_bf16_f32 v{t}, v{x}, v{y}
              v_lshlrev_b32 v{x}, 16, v{t}
              v_and_b32 v{y}, s{sHiMask}, v{t}
              v_mul_f32 v{x}, s{sScale}, v{x}
              v_mul_f32 v{y}, s{sScale}, v{y}
              v_cvt_pk_bf16_f32 v{t}, v{x}, v{y}
              v_lshlrev_b32 v{x}, 16, v{t}
              v_and_b32 v{y}, s{sHiMask}, v{t}""")
    def tagcheck(bufs, lbl_retry, lbl_ok, backoff=False, restore=False, patience=None):
        acc = vU[0]
        first = True
        for b in bufs:
            a(f"v_xor_b32 v{vU[1]}, s{sTag}, v{b+1}\nv_xor_b32 v{vU[2]}, s{sTag+1}, v{b+3}")
            if first: a(f"v_or_b32 v{acc}, v{vU[1]}, v{vU[2]}")
            else: a(f"v_or3_b32 v{acc}, v{acc}, v{vU[1]}, v{vU[2]}")
            first = False
        a(f"v_cmp_ne_u32 vcc, 0, v{acc}")
        if restore: a("s_mov_b64 exec, -1")
        a(f"s_cbranch_vccz {lbl_ok}")
        if backoff == "always": a(f"s_sleep {asleep}")
        elif backoff and asleep:
            a(f"s_cmp_eq_u32 s{sBr}, 0\ns_cbranch_scc0 {lbl_ok}_nb\ns_sleep {asleep}\n{lbl_ok}_nb:")
        if tsleep: a(f"s_sleep {tsleep}")
        if local:
            a(f"""s_cmp_gt_u32 s{sSpin}, {SPIN - (patience or slow)}
                  s_cbranch_scc1 {lbl_ok}_fast
                  buffer_wbl2 sc1
                  s_waitcnt vmcnt(0)
                  s_sleep 16
                  {lbl_ok}_fast:""")
        a(f"""s_sub_u32 s{sSpin}, s{sSpin}, 1
              s_cbranch_scc0 {lbl_retry}""")
        a.label(lbl_ok)
    def lds_wait(off, atleast, name, sleep=0):
        a(f"v_mov_b32 v{vU[0]}, {L_CNT + off}\ns_mov_b32 s{sSpin}, {SPIN * 64}")
        a.label(name)
        a(f"""ds_read_b32 v{vU[1]}, v{vU[0]}
              s_waitcnt lgkmcnt(0)
              v_readfirstlane_b32 s{sT[0]}, v{vU[1]}
              s_cmp_ge_u32 s{sT[0]}, {atleast}
              s_cbranch_scc1 {name}_ok""")
        if sleep: a(f"s_sleep {sleep}")
        a(f"""s_sub_u32 s{sSpin}, s{sSpin}, 1
              s_cbranch_scc0 {name}""")
        a.label(name + "_ok")
    def helper_sync(off, name):
        a(f"""v_mov_b32 v{vU[0]}, {L_CNT + off}
              v_mov_b32 v{vU[1]}, 1
              s_mov_b64 exec, 1
              ds_add_u32 v{vU[0]}, v{vU[1]}
              s_mov_b64 exec, -1""")
        lds_wait(off, 4, name, 1)
    def epoch_load():
        a(f"s_load_dwordx2 s[{sEp}:{sEp+1}], s[{K_WS}:{K_WS+1}], {WS_EPOCH}")
    def epoch_tag():
        a(f"""s_waitcnt lgkmcnt(0)
              s_add_u32 s{sEp}, s{sEp}, 1
              s_xor_b32 s{sTag}, s{sEp}, 0x5bd1e995
              s_mul_i32 s{sTag+1}, s{sEp}, 0x9e3779b1
              s_add_u32 s{sTag+1}, s{sTag+1}, s{sEp+1}""")
    def consts():
        a(f"""s_mov_b32 s{sMc1}, 0xcccccccc
              s_mov_b32 s{sMc1+1}, 0xcccccccc
              s_mov_b32 s{sMc0}, 0xaaaaaaaa
              s_mov_b32 s{sMc0+1}, 0xaaaaaaaa
              s_mov_b32 s{sScale}, 0x3db504f3
              s_mov_b32 s{sLog2e}, 0x3fb8aa3b
              s_mov_b32 s{sHiMask}, 0xffff0000""")
        srd(16, K_WS, WS_SIZE)
    R0 = vRing

    a.label(f"{NAME}_kernel")
    a(f"""s_cmp_ge_u32 s2, 256
          s_cbranch_scc1 L_end
          s_load_dwordx16 s[64:79], s[0:1], 0
          s_load_dwordx8 s[80:87], s[0:1], 64
          s_load_dwordx2 s[88:89], s[0:1], 96""")
    stamp(0)
    if fixdur: a("s_memrealtime s[48:49]")
    if perm:
        a(f"s_mul_i32 s2, s2, {perm}\ns_lshr_b32 s{sT[0]}, s2, 8\ns_and_b32 s2, s2, 255")
        a(f"s_lshr_b32 s{sT[0]}, s2, 3\ns_xor_b32 s2, s2, s{sT[0]}")
    if hmap == 0: hb_code = f"s_lshl_b32 s{sHB}, s{sH}, 3\ns_add_u32 s{sHB}, s{sHB}, s{sX}"
    elif hmap == 1: hb_code = (f"s_and_b32 s{sHB}, s{sH}, 1\ns_lshr_b32 s{sH}, s{sH}, 1\ns_lshl_b32 s{sH}, s{sH}, 4\ns_add_u32 s{sHB}, s{sHB}, s{sH}\n"
                               f"s_lshl_b32 s{sT[0]}, s{sX}, 1\ns_add_u32 s{sHB}, s{sHB}, s{sT[0]}")
    elif hmap == 6:
        hb_code = (f"s_and_b32 s{sHB}, s{sH}, 1\ns_lshr_b32 s{sH}, s{sH}, 1\ns_lshl_b32 s{sH}, s{sH}, 3\ns_add_u32 s{sHB}, s{sHB}, s{sH}\n"
                   f"s_and_b32 s{sT[0]}, s{sX}, 3\ns_lshl_b32 s{sT[0]}, s{sT[0]}, 1\ns_add_u32 s{sHB}, s{sHB}, s{sT[0]}\n"
                   f"s_and_b32 s{sT[0]}, s{sX}, 4\ns_lshl_b32 s{sT[0]}, s{sT[0]}, 2\ns_add_u32 s{sHB}, s{sHB}, s{sT[0]}")
    else: hb_code = f"s_mov_b32 s{sHB}, s{sHA}"
    a(f"""v_lshrrev_b32 v{vT[0]}, 6, v0
          v_and_b32 v{vLane}, 63, v0
          v_readfirstlane_b32 s{sWave}, v{vT[0]}
          s_and_b32 s{sX}, s2, 7
          s_lshr_b32 s{sI}, s2, 3
          s_lshr_b32 s{sH}, s{sI}, 3
          s_lshl_b32 s{sT[0]}, s{sX}, 2
          s_add_u32 s{sHA}, s{sH}, s{sT[0]}
          {hb_code}
          s_bfe_u32 s{sB}, s{sI}, 0x10002
          s_and_b32 s{sS}, s{sI}, 3
          s_and_b32 s{sR}, s{sI}, 7
          s_and_b32 s{sW}, s{sWave}, 3
          v_and_b32 v{vC}, 15, v{vLane}
          v_lshrrev_b32 v{vG}, 4, v{vLane}""")
    if table:
        a(f"""s_waitcnt lgkmcnt(0)
              s_lshl_b32 s{sT[0]}, s2, 2
              {f"s_add_u32 s{sT[0]}, s{sT[0]}, s{sW}" if xorph else ""}
              {f"s_lshl_b32 s{sT[0]}, s{sT[0]}, 2" if xorph else ""}
              s_add_u32 s{sT[0]}, s{sT[0]}, 32768
              s_load_dword s98, s[{K_WS}:{K_WS+1}], s{sT[0]}
              s_waitcnt lgkmcnt(0)
              s_lshr_b32 s{sHB}, s98, 8
              s_and_b32 s{sHB}, s{sHB}, 31""")
    def touch(pairs):
        for w_, k_ in pairs:
            uid[0] += 1
            a(f"s_cmp_eq_u32 s{sWave}, {w_}\ns_cbranch_scc0 L_tc{uid[0]}")
            call(f"L_stub{k_}")
            a.label(f"L_tc{uid[0]}")
    if stublate: touch([(1, 6), (3, 1)])
    else: touch([(k, k) for k in range(8)])
    a(f"""s_cmp_lt_u32 s{sWave}, 4
          s_cbranch_scc0 L_stream""")

    a(f"s_cmp_lt_u32 s{sW}, 2\ns_cselect_b32 s{sH}, s{sHB}, s{sHA}")
    if nodup:
        a(f"s_lshl_b32 s{sT[0]}, s{sR}, 6")
    else:
        a(f"""s_and_b32 s{sT[0]}, s{sW}, 1
              s_lshl_b32 s{sT[0]}, s{sT[0]}, 9
              s_lshl_b32 s{sT[1]}, s{sR}, 6
              s_add_u32 s{sT[0]}, s{sT[0]}, s{sT[1]}""")
    a(f"""v_add_lshl_u32 v{vT[0]}, s{sT[0]}, v{vLane}, 1
          v_lshlrev_b32 v{vO0}, 17, v{vG}
          v_lshl_add_u32 v{vO0}, v{vC}, 4, v{vO0}
          s_lshl_b32 s{sOff}, s{sR}, 19
          s_lshl_b32 s{sT[0]}, s{sH}, 8
          s_add_u32 s{sOff}, s{sOff}, s{sT[0]}
          s_mov_b32 s14, 0x400000
          s_mov_b32 s15, 0x00020000
          s_mov_b32 s22, 2048
          s_mov_b32 s23, 0x00020000
          v_lshlrev_b32 v{vU[0]}, 2, v{vC}
          v_mov_b32 v{vU[1]}, 0
          ds_write_b32 v{vU[0]}, v{vU[1]} offset:{L_CNT}
          s_waitcnt lgkmcnt(0)
          s_cmp_lt_u32 s{sW}, 2
          s_cselect_b32 s12, s{K_BWQ}, s{K_AWQ}
          s_cselect_b32 s13, s{K_BWQ+1}, s{K_AWQ+1}
          s_cselect_b32 s20, s{K_BX}, s{K_AX}
          s_cselect_b32 s21, s{K_BX+1}, s{K_AX+1}""")
    epoch_load()
    first = 1 if nodup else 2
    if aearly == 2: pass
    elif h2early: a(f"s_bitcmp0_b32 s{sW}, 0\ns_cbranch_scc1 L_h_go\ns_barrier")
    elif bar0: a(f"s_cmp_lt_u32 s{sW}, {first}\ns_cbranch_scc1 L_h_go\ns_barrier")
    else: a("s_barrier")
    if nodup: a(f"s_bitcmp1_b32 s{sW}, 0\ns_cbranch_scc1 L_helper2")
    a.label("L_h_go")
    a(f"buffer_load_ushort v{vP}, v{vT[0]}, s[20:23], 0 offen nt")
    if nodup: a(f"buffer_load_ushort v{vP+1}, v{vT[0]}, s[20:23], 0 offen offset:1024 nt")
    for k in range(16):
        r = slot(k & 1, k >> 1)
        if TQ and k == TQ and h2early: a("s_barrier")
        if TQ and k >= TQ: a(f"s_waitcnt vmcnt({TQ - 1})")
        a(f"buffer_load_dwordx4 v[{r}:{r+3}], v{vO0}, s[12:15], s{sOff} offen nt")
        if k < 15: a(f"s_add_u32 s{sOff}, s{sOff}, 0x2000")
    if h2early:
        if not TQ and aearly != 2: a("s_barrier")
        if stublate: touch([(0, 3), (2, 4)])
    elif bar0: a(f"s_cmp_lt_u32 s{sW}, {first}\ns_cbranch_scc0 L_helper2\ns_barrier")
    a("s_branch L_helper2")

    a.label("L_stream")
    if vboost: a(f"s_mov_b64 vcc, {0 if vboost == 1 else -1}")
    elif lateslots: a(f"s_lshr_b32 vcc_lo, {latemask}, s{sX}\ns_and_b32 vcc_lo, vcc_lo, 1\ns_mov_b32 vcc_hi, 0")
    if sprio: a(f"s_setprio {sprio}")
    if wb:
        assert pat == 8
        a(f"""s_lshl_b32 s{sT[0]}, s{sW}, {wb}
              v_lshlrev_b32 v{vAd}, 4, v{vLane}
              v_add_u32 v{vAd}, s{sT[0]}, v{vAd}
              v_add_u32 v{vAd+1}, 0x1000, v{vAd}""")
    elif bperm:
        if bperm == "table":
            a(f"s_waitcnt lgkmcnt(0)\ns_load_dwordx8 s[56:63], s[{K_WS}:{K_WS+1}], 49152\ns_waitcnt lgkmcnt(0)")
            sh = [f"s{56+k}" for k in range(7)]
        else: sh = [str(v) for v in bperm]
        a(f"""v_lshlrev_b32 v{vAd}, 4, v{vC}
              v_and_b32 v{vT[0]}, 1, v{vG}
              v_lshl_add_u32 v{vAd}, v{vT[0]}, {sh[0]}, v{vAd}
              v_lshrrev_b32 v{vT[0]}, 1, v{vG}
              v_lshl_add_u32 v{vAd}, v{vT[0]}, {sh[1]}, v{vAd}
              s_and_b32 s{sT[0]}, s{sW}, 1
              s_lshl_b32 s{sT[0]}, s{sT[0]}, {sh[2]}
              s_lshr_b32 s{sT[1]}, s{sW}, 1
              s_lshl_b32 s{sT[1]}, s{sT[1]}, {sh[3]}
              s_add_u32 s{sT[0]}, s{sT[0]}, s{sT[1]}
              v_add_u32 v{vAd}, s{sT[0]}, v{vAd}""")
        for b in range(3):
            a(f"s_lshl_b32 s{sT[0]}, 1, {sh[4+b]}")
            for k in range(1 << b): a(f"v_add_u32 v{vAd + (1 << b) + k}, s{sT[0]}, v{vAd + k}")
    else: addr_setup(pat)
    if table: ph_code = f"s_and_b32 s{sOff}, s98, 15\ns_lshl_b32 s{sOff}, s{sOff}, 15"
    elif phm == 0: ph_code = f"s_and_b32 s{sOff}, s{sI}, 15\ns_lshl_b32 s{sOff}, s{sOff}, 15"
    elif phm == 1: ph_code = f"s_lshl_b32 s{sOff}, s{sB}, 18"
    elif phm == 2: ph_code = f"s_lshl_b32 s{sOff}, s{sB}, {phb[0]}\ns_lshr_b32 s{sT[0]}, s{sI}, 4\ns_lshl_b32 s{sT[0]}, s{sT[0]}, {phb[1]}\ns_add_u32 s{sOff}, s{sOff}, s{sT[0]}"
    elif phm == 3: ph_code = f"s_lshl_b32 s{sOff}, s{sB}, 17"
    a(f"""s_mov_b32 s{sH}, s{sHB}
          s_lshl_b32 s{sU}, s{sB}, 5
          s_add_u32 s{sU}, s{sU}, s{sH}
          s_lshl_b32 s{sU}, s{sU}, 2
          s_add_u32 s{sU}, s{sU}, s{sS}
          s_lshl_b32 s{sU}, s{sU}, 19
          {ph_code}
          s_mov_b32 s14, 0x80000
          s_mov_b32 s15, 0x00020000""")
    if xorph:
        a(f"""s_and_b32 s{sMask}, s98, 0x3c
              s_lshl_b32 s{sMask}, s{sMask}, 13
              s_mov_b32 s{sCnt}, 0
              s_mov_b32 s{sOff}, s{sMask}
              s_and_b32 s{sT[0]}, s98, 3
              s_lshl_b32 s{sT[0]}, s{sT[0]}, 13""")
        for k in range(8 // pat): a(f"v_xor_b32 v{vAd+k}, s{sT[0]}, v{vAd+k}")
    a(f"""s_waitcnt lgkmcnt(0)
          s_add_u32 s12, s{K_BK}, s{sU}
          s_addc_u32 s13, s{K_BK+1}, 0""")
    epoch_load()
    def touch_v():
        uid[0] += 1
        a(f"""s_cmp_eq_u32 s{sW}, 0
              s_cbranch_scc0 L_tv{uid[0]}
              s_add_u32 s20, s{K_BV}, s{sU}
              s_addc_u32 s21, s{K_BV+1}, 0
              s_mov_b32 s22, 0x80000
              s_mov_b32 s23, 0x00020000
              v_mov_b32 v{vU[2]}, 0
              s_mov_b64 exec, 1
              buffer_load_dword v{vU[3]}, v{vU[2]}, s[20:23], s{sOff} offen nt
              s_mov_b64 exec, -1
              L_tv{uid[0]}:""")
    if tlb & 1: touch_v()
    issue(0, (0,) if g0free else (TF or TK), n0)
    for G in range(1, 4):
        if TF: issue(G, TF)
        elif G <= latefree:
            a(f"s_cmp_lt_u32 s{sX}, 4\ns_cbranch_scc1 L_s_f{G}")
            call(f"L_ISSV{G}")
            a(f"s_branch L_s_g{G}\nL_s_f{G}:")
            iss(0, G)
            a.label(f"L_s_g{G}")
        else: iss(0, G)
    stamp(1)
    consts()
    epoch_tag()
    if not abl_noq: lds_wait(16, 1, "L_s_qwait", 1)
    a(f"""v_lshlrev_b32 v{vT[0]}, 4, v{vC}
          ds_read_b128 v[{vQ}:{vQ+3}], v{vT[0]} offset:{L_QB}
          s_waitcnt lgkmcnt(0)""")
    stamp(2)
    for c in range(3):
        if tlb & 2 and c == 2: touch_v()
        for G in range(4):
            call(f"L_KB{G}"); iss(c + 1, G)
        a(f"v_mov_b32 v{vS+2*c}, v{vZ0}\nv_mov_b32 v{vS+2*c+1}, v{vZ1}")
    a(f"s_add_u32 s12, s{K_BV}, s{sU}\ns_addc_u32 s13, s{K_BV+1}, 0")
    call("L_KB0"); iss(4, 0); call("L_KB1")
    a("s_waitcnt vmcnt(16)")
    call("L_KB2"); iss(4, 1)
    a("s_waitcnt vmcnt(16)")
    call("L_KB3")
    a(f"v_mov_b32 v{vS+6}, v{vZ0}\nv_mov_b32 v{vS+7}, v{vZ1}")
    stamp(3)
    for k in range(0, 8, 2): round_scores(vS + k, vS + k + 1, vT[0])
    a(f"""v_max3_f32 v{vM}, v{vS}, v{vS+1}, v{vS+2}
          v_max3_f32 v{vM}, v{vM}, v{vS+3}, v{vS+4}
          v_max3_f32 v{vM}, v{vM}, v{vS+5}, v{vS+6}
          v_max_f32 v{vM}, v{vM}, v{vS+7}""")
    wave_allreduce("v_max_f32", vM, vT[0])
    iss(4, 2)
    for k in range(8): a(f"v_sub_f32 v{vS+k}, v{vS+k}, v{vM}")
    for k in range(8): a(f"v_mul_f32 v{vS+k}, s{sLog2e}, v{vS+k}")
    for k in range(8): a(f"v_exp_f32 v{vS+k}, v{vS+k}")
    a(f"v_add_f32 v{vL}, v{vS}, v{vS+1}")
    for k in range(2, 8): a(f"v_add_f32 v{vL}, v{vL}, v{vS+k}")
    if not fastend:
        for k in range(8): a(f"v_cvt_pk_bf16_f32 v{vS+k}, v{vS+k}, 0")
    wave_allreduce("v_add_f32", vL, vT[0])
    if fastend:
        a(f"v_rcp_f32 v{vT[0]}, v{vL}")
        for k in range(8): a(f"v_mul_f32 v{vS+k}, v{vS+k}, v{vT[0]}")
        for k in range(8): a(f"v_cvt_pk_bf16_f32 v{vS+k}, v{vS+k}, 0")
    a(f"""s_add_u32 s{sPub}, s{sH}, 32
          s_lshl_b32 s{sPub}, s{sPub}, 1
          s_add_u32 s{sPub}, s{sPub}, s{sB}
          s_lshl_b32 s{sPub}, s{sPub}, 2
          s_add_u32 s{sPub}, s{sPub}, s{sS}
          s_lshl_b32 s{sPubO}, s{sPub}, 11
          s_add_u32 s{sPubO}, s{sPubO}, {WS_PB - (256 << 11)}
          s_lshl_b32 s{sPub}, s{sPub}, 2
          s_add_u32 s{sPub}, s{sPub}, s{sW}
          s_mul_i32 s{sPub}, s{sPub}, {REC}
          s_add_u32 s{sPub}, s{sPub}, {WS_PART}
          s_mov_b32 s{sShift}, 6""")
    call("L_PUBML")
    iss(4, 3)
    for k in range(8): a(f"v_mov_b32 v{vAcc+k}, 0")
    stamp(4)
    a(f"""s_lshl_b32 s{sT[0]}, s{sW}, 4
          s_add_u32 s{sPubO}, s{sPubO}, s{sT[0]}
          v_lshrrev_b32 v{vU[3]}, 1, v{vG}
          v_lshlrev_b32 v{vU[3]}, 4, v{vU[3]}
          v_add_lshl_u32 v{vU[3]}, v{vU[3]}, v{vC}, 6""")
    if vboost: a(f"s_mov_b64 vcc, {-1 if vboost == 1 else 0}")
    issued, done = 4, 0
    def ws(k):
        if k % 2 == 0: a(f"v_mov_b32 v{vP + (k % 4) // 2}, v{vS + k // 2}")
        if k == midg: a("s_barrier")
        if k == 15:
            call("L_WS3L"); return
        a(f"s_waitcnt vmcnt({8 * (issued - k - 1)})")
        call(f"L_WS{k % 4}")
    while issued < 16:
        fast = issued >= 16 - (rmax if rank else nfast)
        want = (endlag if fast else lag)
        n = 0
        while done <= issued - 4 or (done < issued - want + 1 and n < 2 and done < issued - 1):
            ws(done); done += 1; n += 1
        left = 16 - issued
        if rank and left <= rmax:
            if left == rmax:
                a(f"""v_mov_b32 v{vU[0]}, {L_CNT + 20}
                      ds_read_b32 v{vU[1]}, v{vU[0]}
                      s_waitcnt lgkmcnt(0)
                      v_readfirstlane_b32 s{sHH}, v{vU[1]}
                      s_cmp_eq_u32 s{sHH}, 0
                      s_cselect_b32 s{sHH}, 19, s{sHH}""")
            a(f"s_cmp_ge_u32 s{sHH}, {16 + left}\ns_cbranch_scc1 L_s_v{left}")
            call(f"L_ISSK{issued % 4}")
            a(f"s_branch L_s_w{left}\nL_s_v{left}:")
            call(f"L_ISSV{issued % 4}")
            a.label(f"L_s_w{left}")
        else: call(f"L_ISS{'V' if (fast and two) else 'K'}{issued % 4}")
        issued += 1
        if ya == "flag" and issued == yag:
            a(f"v_mov_b32 v{vU[0]}, {L_CNT + 24}\nv_mov_b32 v{vU[1]}, 1\nds_write_b32 v{vU[0]}, v{vU[1]}")
    if early_bar: a("s_barrier")
    while done < 16:
        ws(done); done += 1
    stamp(5)
    if fastend:
        for e in range(4): a(f"v_permlane32_swap_b32 v{vAcc+e}, v{vAcc+e+4}")
        for e in range(4): a(f"v_add_f32 v{vAcc+e}, v{vAcc+e}, v{vAcc+e+4}")
        for e in range(2): a(f"v_permlane16_swap_b32 v{vAcc+e}, v{vAcc+e+2}")
        for e in range(2): a(f"v_add_f32 v{vAcc+e}, v{vAcc+e}, v{vAcc+e+2}")
        a(f"""v_cvt_pk_bf16_f32 v{vG4}, v{vAcc}, v{vAcc+1}
              v_cvt_pk_bf16_f32 v{vG4+2}, v{vAcc}, v{vAcc+1}
              v_permlane16_swap_b32 v{vG4}, v{vG4+2}
              s_mov_b32 exec_lo, 0xffff
              s_mov_b32 exec_hi, 0xffff
              buffer_store_dwordx4 v[{vG4}:{vG4+3}], v{vU[3]}, s[16:19], s{sPubO} offen {stf}
              s_mov_b64 exec, -1""")
    else:
        call("L_RED8")
        call("L_PUBPART")
    stamp(6)
    if not early_bar: a("s_barrier")
    if ya == "s0" and not abl_noA:
        a(f"""s_cmp_eq_u32 s{sW}, 0
              s_cbranch_scc0 L_exit
              s_mov_b32 s{sBr}, 0""")
        call("L_PUBY")
    a("s_branch L_exit")

    for nm, tp in ((("K", TK), ("V", TV)) if two else (("K", TK),)):
        for G in range(4):
            a.label(f"L_ISS{nm}{G}")
            issue(G, tp); ret()

    for G in range(4):
        a.label(f"L_KB{G}")
        for s in range(8): a(f"v_mov_b32 v{vt+s}, 0")
        for j in range(4):
            for s in range(8): a(f"v_dot2c_f32_bf16 v{vt+s}, v{slot(G, s)+j}, v{vQ+j}")
        for k in range(4):
            a(f"v_add_f32_dpp v{vt+k}, v{vt+k}, v{vt+k} row_mirror row_mask:0xf bank_mask:0x3")
        for k in range(4):
            a(f"v_add_f32_dpp v{vt+k}, v{vt+k+4}, v{vt+k+4} row_mirror row_mask:0xf bank_mask:0xc")
        for k in range(2):
            a(f"v_add_f32_dpp v{vt+k}, v{vt+k}, v{vt+k} row_half_mirror row_mask:0xf bank_mask:0x5")
        for k in range(2):
            a(f"v_add_f32_dpp v{vt+k}, v{vt+k+2}, v{vt+k+2} row_half_mirror row_mask:0xf bank_mask:0xa")
        for k in range(2):
            a(f"v_add_f32_dpp v{vt+k}, v{vt+k}, v{vt+k} quad_perm:[2,3,0,1] row_mask:0xf bank_mask:0xf")
        a(f"v_cndmask_b32 v{vt}, v{vt}, v{vt+1}, s[{sMc1}:{sMc1+1}]")
        if G % 2 == 0:
            a(f"v_add_f32_dpp v{vZA}, v{vt}, v{vt} quad_perm:[1,0,3,2] row_mask:0xf bank_mask:0xf")
        else:
            a(f"v_add_f32_dpp v{vt}, v{vt}, v{vt} quad_perm:[1,0,3,2] row_mask:0xf bank_mask:0xf")
            a(f"v_cndmask_b32 v{vZ0 + G // 2}, v{vZA}, v{vt}, s[{sMc0}:{sMc0+1}]")
        ret()

    for G, last in ((0, False), (1, False), (2, False), (3, False), (3, True)):
        a.label(f"L_WS{G}" + ("L" if last else ""))
        a("s_nop 1")
        for s in range(8):
            r = slot(G, s)
            a(f"v_mov_b32_dpp v{vLo}, v{vP + G // 2} row_newbcast:{2*s + (G & 1)} row_mask:0xf bank_mask:0xf")
            a(f"v_lshlrev_b32 v{vHi}, 16, v{vLo}")
            if last: a(f"s_waitcnt vmcnt({7-s})")
            for j in range(4):
                a(f"v_dot2c_f32_bf16 v{vAcc+2*j}, v{r+j}, v{vLo}")
                a(f"v_dot2c_f32_bf16 v{vAcc+2*j+1}, v{r+j}, v{vHi}")
        a("s_nop 1")
        ret()

    a.label("L_RED8")
    a("s_nop 1")
    for e in range(4): a(f"v_permlane32_swap_b32 v{vAcc+e}, v{vAcc+e+4}")
    for e in range(4): a(f"v_add_f32 v{vAcc+e}, v{vAcc+e}, v{vAcc+e+4}")
    for e in range(2): a(f"v_permlane16_swap_b32 v{vAcc+e}, v{vAcc+e+2}")
    for e in range(2): a(f"v_add_f32 v{vAcc+e}, v{vAcc+e}, v{vAcc+e+2}")
    ret()

    a.label("L_PUBML")
    a(f"""v_mov_b32 v{vG4}, v{vM}
          v_mov_b32 v{vG4+1}, s{sTag}
          v_mov_b32 v{vG4+2}, v{vL}
          v_mov_b32 v{vG4+3}, s{sTag+1}
          v_lshlrev_b32 v{vT[0]}, 4, v{vLane}
          s_mov_b64 exec, 0xff
          buffer_store_dwordx4 v[{vG4}:{vG4+3}], v{vT[0]}, s[16:19], s{sPub} offen offset:512 {stf}
          s_mov_b64 exec, -1
          s_nop 0""")
    ret()

    a.label("L_PUBPART")
    a(f"""v_rcp_f32 v{vT[0]}, v{vL}
          v_lshrrev_b32 v{vT[1]}, 1, v{vG}
          v_lshlrev_b32 v{vT[1]}, 4, v{vT[1]}
          v_add_lshl_u32 v{vT[1]}, v{vT[1]}, v{vC}, s{sShift}
          v_mul_f32 v{vAcc}, v{vAcc}, v{vT[0]}
          v_mul_f32 v{vAcc+1}, v{vAcc+1}, v{vT[0]}
          v_cvt_pk_bf16_f32 v{vG4}, v{vAcc}, v{vAcc+1}
          v_mov_b32 v{vG4+1}, s{sTag}
          v_mov_b32 v{vG4+2}, v{vG4}
          v_mov_b32 v{vG4+3}, s{sTag+1}
          v_permlane16_swap_b32 v{vG4}, v{vG4+2}
          s_mov_b32 exec_lo, 0xffff
          s_mov_b32 exec_hi, 0xffff
          buffer_store_dwordx4 v[{vG4}:{vG4+3}], v{vT[1]}, s[16:19], s{sPubO} offen {stf}
          s_mov_b64 exec, -1
          s_nop 0""")
    ret()

    a.label("L_PUBY")
    a(f"""s_lshl_b32 s{sT[0]}, s{sBr}, 11
          v_lshl_add_u32 v{vT[0]}, v{vLane}, 3, s{sT[0]}""")
    for k in range(4): a(f"ds_read_b64 v[{vt+2*k}:{vt+2*k+1}], v{vT[0]} offset:{L_YR + 512*k}")
    a(f"""s_lshl_b32 s{sT[0]}, s{sBr}, 3
          s_add_u32 s{sT[1]}, s{sT[0]}, s{sR}
          s_lshl_b32 s{sT[1]}, s{sT[1]}, 5
          s_add_u32 s{sT[1]}, s{sT[1]}, s{sHA}
          s_lshl_b32 s{sT[1]}, s{sT[1]}, 10
          s_add_u32 s{sT[1]}, s{sT[1]}, {WS_Y}
          v_lshlrev_b32 v{vT[1]}, 4, v{vLane}
          v_mov_b32 v{vG4+1}, s{sTag}
          v_mov_b32 v{vG4+3}, s{sTag+1}
          s_waitcnt lgkmcnt(0)
          v_add_f32 v{vG4}, v{vt}, v{vt+2}
          v_add_f32 v{vG4+2}, v{vt+1}, v{vt+3}
          v_add_f32 v{vt+4}, v{vt+4}, v{vt+6}
          v_add_f32 v{vt+5}, v{vt+5}, v{vt+7}
          v_add_f32 v{vG4}, v{vG4}, v{vt+4}
          v_add_f32 v{vG4+2}, v{vG4+2}, v{vt+5}
          buffer_store_dwordx4 v[{vG4}:{vG4+3}], v{vT[1]}, s[16:19], s{sT[1]} offen {yst}
          s_nop 0""")
    ret()

    a.label("L_QC")
    a(f"""v_lshlrev_b32 v{vO0}, 4, v{vLane}
          v_add_u32 v{vO1}, 0x1000, v{vO0}
          s_add_u32 s{sT[1]}, s{sT[1]}, {WS_QP}
          s_mov_b32 s{sSpin}, {SPIN}
          {"s_nop 0" if bhint else f"s_cmp_eq_u32 s{sBr}, 0"}
          {"s_nop 0" if bhint else "s_cbranch_scc0 L_QC_poll"}
          v_and_b32 v{vT[0]}, 7, v{vLane}
          v_lshlrev_b32 v{vT[0]}, 10, v{vT[0]}""")
    a.label("L_QC_hint")
    if narrow: a("s_mov_b64 exec, 0xff")
    a(f"""buffer_load_dwordx4 v[{vRing}:{vRing+3}], v{vT[0]}, s[16:19], s{sT[1]} offen offset:1008 {ldf}
          s_waitcnt vmcnt(0)""")
    tagcheck([vRing], "L_QC_hint", "L_QC_hok", True, narrow, 24)
    a(f"s_mov_b32 s{sSpin}, {SPIN}")
    a.label("L_QC_poll")
    for p in range(8):
        r = vRing + 4 * p
        if qser and p >= qser: a(f"s_waitcnt vmcnt({qser - 1})")
        a(f"buffer_load_dwordx4 v[{r}:{r+3}], v{vO0 + (p >> 2)}, s[16:19], s{sT[1]} offen offset:{(p & 3) * 1024} {ldf}")
    a("s_waitcnt vmcnt(0)")
    tagcheck([vRing + 4 * p for p in range(8)], "L_QC_poll", "L_QC_ok", patience=24)
    for p in range(1, 8):
        a(f"v_add_f32 v{vRing}, v{vRing}, v{vRing+4*p}\nv_add_f32 v{vRing+2}, v{vRing+2}, v{vRing+4*p+2}")
    a(f"""v_cvt_pk_bf16_f32 v{vT[0]}, v{vRing}, v{vRing+2}
          v_lshl_add_u32 v{vT[1]}, v{vC}, 2, v{vG}
          v_lshlrev_b32 v{vT[1]}, 2, v{vT[1]}
          v_add_u32 v{vT[1]}, s{sT[2]}, v{vT[1]}
          ds_write_b32 v{vT[1]}, v{vT[0]}""")
    ret()

    def kva_block():
        a(f"""s_lshr_b32 s{sT[0]}, s{sI}, 4
              s_lshl_b32 s{sT[0]}, s{sT[0]}, 3
              s_add_u32 s{sT[0]}, s{sT[0]}, s{sX}
              s_lshl_b32 s{sOff}, s{sT[0]}, 21
              s_and_b32 s{sT[0]}, s{sI}, 15
              s_lshl_b32 s{sT[0]}, s{sT[0]}, 15
              s_add_u32 s{sOff}, s{sOff}, s{sT[0]}
              s_add_u32 s{sOff}, s{sOff}, {6144*256}
              s_mov_b32 s14, 0x2000000""")
        addr_setup(pata, wxa)
        a(f"""s_mov_b32 s12, s{K_AK}
              s_mov_b32 s13, s{K_AK+1}
              s_mov_b32 s20, s{K_AV}
              s_mov_b32 s21, s{K_AV+1}
              s_mov_b32 s22, 0x2000000""")
        if kvdelay:
            a(f"s_cmp_eq_u32 s{sW}, 1\ns_cbranch_scc0 L_h_A3")
            qb_consume()
            a.label("L_h_A3")
            lds_wait(16, 1, "L_h_kvw", 2)
        order = [(G, s) for s in range(8) for G in (2, 3)] if kvi else [(G, s) for G in (2, 3) for s in range(8)]
        for G, s in ([] if abl_Akv else order):
            r = slot(G, s)
            if TH: a(f"s_waitcnt vmcnt({TH - 1})")
            va, imm = addr(s, pata)
            a(f"buffer_load_dwordx4 v[{r}:{r+3}], v{va}, s[{12 if G == 2 else 20}:{15 if G == 2 else 23}], s{sOff} offen offset:{imm} nt")
    a.label("L_helper2")
    if aearly: kva_block()
    if aearly == 2: a("s_barrier")
    consts()
    a(f"""s_mov_b32 s{sSel0}, 0x05040100
          s_mov_b32 s{sSel1}, 0x07060302
          v_lshlrev_b32 v{vO0}, 4, v{vLane}""")
    if tlb & 4:
        a(f"""s_cmp_eq_u32 s{sW}, 3
              s_cbranch_scc0 L_h_notlb
              v_mov_b32 v{vU[2]}, 0
              s_lshl_b32 s{sT[0]}, s{sHA}, 17
              s_mov_b32 s22, 0x400000
              s_mov_b64 exec, 1
              s_mov_b32 s20, s{K_AWO}
              s_mov_b32 s21, s{K_AWO+1}
              buffer_load_dword v{vU[3]}, v{vU[2]}, s[20:23], s{sT[0]} offen nt
              s_mov_b32 s20, s{K_BWO}
              s_mov_b32 s21, s{K_BWO+1}
              buffer_load_dword v{vU[3]}, v{vU[2]}, s[20:23], s{sT[0]} offen nt
              s_mov_b32 s{sT[0]}, {WS_PB - 4096}
              buffer_load_dword v{vU[3]}, v{vU[2]}, s[16:19], s{sT[0]} offen nt
              s_mov_b32 s20, s{K_OUT}
              s_mov_b32 s21, s{K_OUT+1}
              s_mov_b32 s22, 4096
              buffer_load_dword v{vU[3]}, v{vU[2]}, s[20:23], 0 offen nt
              s_mov_b64 exec, -1
              L_h_notlb:""")
    epoch_tag()
    if nodup: a(f"s_bitcmp1_b32 s{sW}, 0\ns_cbranch_scc1 L_h_qdone\ns_mov_b32 s{sHH}, 0")
    else: a(f"s_and_b32 s{sHH}, s{sW}, 1")
    a(f"s_waitcnt vmcnt({16 if aearly else 0})")
    stamp(1)
    a.label("L_h_qloop")
    for k in range(8): a(f"v_mov_b32 v{vAcc+k}, 0")
    call("L_WS0"); call("L_WS1"); call("L_RED8")
    a(f"""s_lshr_b32 s{sT[0]}, s{sW}, 1
          s_xor_b32 s{sT[0]}, s{sT[0]}, 1
          s_lshl_b32 s{sT[0]}, s{sT[0]}, 5
          s_add_u32 s{sT[0]}, s{sT[0]}, s{sH}
          s_lshl_b32 s{sT[0]}, s{sT[0]}, 1
          s_add_u32 s{sT[0]}, s{sT[0]}, s{sHH}
          s_lshl_b32 s{sT[0]}, s{sT[0]}, 3
          s_add_u32 s{sT[0]}, s{sT[0]}, s{sR}
          s_lshl_b32 s{sT[0]}, s{sT[0]}, 10
          s_add_u32 s{sT[0]}, s{sT[0]}, {WS_QP}
          v_mov_b32 v{vG4}, v{vAcc}
          v_mov_b32 v{vG4+1}, s{sTag}
          v_mov_b32 v{vG4+2}, v{vAcc+1}
          v_mov_b32 v{vG4+3}, s{sTag+1}
          """)
    if abl_Ast: a(f"s_cmp_eq_u32 s{sW}, 0\ns_cbranch_scc0 L_h_nost")
    a(f"buffer_store_dwordx4 v[{vG4}:{vG4+3}], v{vO0}, s[16:19], s{sT[0]} offen {stf}")
    if abl_dbl:
        a(f"s_add_u32 s{sT[0]}, s{sT[0]}, {8 << 20}\nbuffer_store_dwordx4 v[{vG4}:{vG4+3}], v{vO0}, s[16:19], s{sT[0]} offen {stf}")
    a.label("L_h_nost")
    if nodup:
        a(f"""v_mov_b32 v{vP}, v{vP+1}
              s_add_u32 s{sHH}, s{sHH}, 1
              s_cmp_lt_u32 s{sHH}, 2
              s_cbranch_scc1 L_h_qloop""")
    a.label("L_h_qdone")
    stamp(2)
    def qb_consume():
        a(f"""s_add_u32 s{sT[1]}, s{sHB}, 32
              s_lshl_b32 s{sT[1]}, s{sT[1]}, 1
              s_add_u32 s{sT[1]}, s{sT[1]}, s{sB}
              s_lshl_b32 s{sT[1]}, s{sT[1]}, 13
              s_mov_b32 s{sT[2]}, {L_QB}
              s_mov_b32 s{sBr}, 1""")
        call("L_QC")
        a(f"""v_mov_b32 v{vU[0]}, {L_CNT + 16}
              v_mov_b32 v{vU[1]}, 1
              ds_write_b32 v{vU[0]}, v{vU[1]}""")
    if not nodup or abl_noA:
        a(f"s_cmp_eq_u32 s{sW}, 0\ns_cbranch_scc0 L_h_A")
        qb_consume()
    a.label("L_h_A")
    if not nodup: stamp(3)
    if abl_noA: a(f"s_mov_b32 s{sBr}, 1\ns_branch L_FIN")
    if not aearly: kva_block()
    if late2 and NSTUB > 8:
        for k in range(8, NSTUB): a(f"s_cmp_eq_u32 s{sW}, {(k - 8 + 2) % 4}\ns_cbranch_scc1 L_stub{k}")
        a.label("L_back1")
    if nodup and not kvdelay:
        a(f"s_cmp_eq_u32 s{sW}, 1\ns_cbranch_scc0 L_h_A2")
        qb_consume()
        a.label("L_h_A2")
        stamp(3)
    a(f"""s_mov_b32 s{sBr}, 0
          s_lshl_b32 s{sU}, s{sX}, 2
          s_add_u32 s{sU}, s{sU}, s{sW}
          s_lshl_b32 s{sU}, s{sU}, 1
          s_lshr_b32 s{sT[0]}, s{sI}, 4
          s_add_u32 s{sU}, s{sU}, s{sT[0]}
          s_lshl_b32 s{sT[1]}, s{sU}, 13
          s_lshl_b32 s{sT[2]}, s{sW}, 8
          s_add_u32 s{sT[2]}, s{sT[2]}, {L_QA}""")
    if not abl_Apoll: call("L_QC")
    else: a("s_waitcnt vmcnt(0)")
    helper_sync(0, "L_hs0")
    a(f"s_mov_b32 s{sHH}, 0")
    if abl_Acomp: a("s_branch L_A_done")
    a.label("L_A_loop")
    a(f"""s_lshl_b32 s{sT[0]}, s{sHH}, 8
          v_lshlrev_b32 v{vT[0]}, 4, v{vC}
          v_add_u32 v{vT[0]}, s{sT[0]}, v{vT[0]}
          ds_read_b128 v[{vQ}:{vQ+3}], v{vT[0]} offset:{L_QA}
          s_waitcnt lgkmcnt(0)""")
    call("L_KB2")
    a(f"v_mov_b32 v{vS+1}, v{vZA}\nv_mov_b32 v{vS}, v{vZA}")
    round_scores(vS, vS + 1, vT[0])
    a(f"v_mov_b32 v{vM}, v{vS}")
    wave_allreduce("v_max_f32", vM, vT[0])
    a(f"""v_sub_f32 v{vS}, v{vS}, v{vM}
          v_mul_f32 v{vS}, s{sLog2e}, v{vS}
          v_exp_f32 v{vS}, v{vS}
          v_mul_f32 v{vL}, 0.5, v{vS}
          v_cvt_pk_bf16_f32 v{vP+1}, v{vS}, 0""")
    wave_allreduce("v_add_f32", vL, vT[0])
    for k in range(8): a(f"v_mov_b32 v{vAcc+k}, 0")
    call("L_WS3L"); call("L_RED8")
    a(f"""s_lshl_b32 s{sT[0]}, s{sHH}, 2
          s_add_u32 s{sT[0]}, s{sT[0]}, s{sW}
          s_lshl_b32 s{sT[1]}, s{sT[0]}, 9
          s_lshl_b32 s{sT[0]}, s{sT[0]}, 3
          v_lshlrev_b32 v{vT[0]}, 3, v{vLane}
          v_add_u32 v{vT[0]}, s{sT[1]}, v{vT[0]}
          v_mov_b32 v{vT[1]}, s{sT[0]}
          ds_write_b64 v{vT[0]}, v[{vAcc}:{vAcc+1}] offset:{L_OA}
          s_mov_b64 exec, 1
          ds_write_b64 v{vT[1]}, v[{vM}:{vM+1}] offset:{L_MLA}
          s_mov_b64 exec, -1
          s_add_u32 s{sHH}, s{sHH}, 1
          s_cmp_lt_u32 s{sHH}, 4
          s_cbranch_scc1 L_A_loop""")
    a.label("L_A_done")
    helper_sync(4, "L_hs1")
    a(f"""s_lshl_b32 s{sT[0]}, s{sW}, 5
          v_mov_b32 v{vT[1]}, s{sT[0]}
          s_lshl_b32 s{sT[1]}, s{sW}, 11
          v_lshlrev_b32 v{vT[0]}, 3, v{vLane}
          v_add_u32 v{vT[0]}, s{sT[1]}, v{vT[0]}
          ds_read_b128 v[{R0}:{R0+3}], v{vT[1]} offset:{L_MLA}
          ds_read_b128 v[{R0+4}:{R0+7}], v{vT[1]} offset:{L_MLA+16}""")
    for k in range(4): a(f"ds_read_b64 v[{R0+8+2*k}:{R0+9+2*k}], v{vT[0]} offset:{L_OA + 512*k}")
    a(f"""s_waitcnt lgkmcnt(0)
          v_max3_f32 v{vM}, v{R0}, v{R0+2}, v{R0+4}
          v_max_f32 v{vM}, v{vM}, v{R0+6}""")
    for k in range(4): a(f"v_sub_f32 v{R0+2*k}, v{R0+2*k}, v{vM}")
    for k in range(4): a(f"v_mul_f32 v{R0+2*k}, s{sLog2e}, v{R0+2*k}")
    for k in range(4): a(f"v_exp_f32 v{R0+2*k}, v{R0+2*k}")
    a(f"""v_mul_f32 v{vL}, v{R0}, v{R0+1}
          v_mul_f32 v{vAcc}, v{R0}, v{R0+8}
          v_mul_f32 v{vAcc+1}, v{R0}, v{R0+9}""")
    for k in range(1, 4):
        a(f"""v_fmac_f32 v{vL}, v{R0+2*k}, v{R0+2*k+1}
              v_fmac_f32 v{vAcc}, v{R0+2*k}, v{R0+8+2*k}
              v_fmac_f32 v{vAcc+1}, v{R0+2*k}, v{R0+9+2*k}""")
    a(f"""s_lshl_b32 s{sPub}, s{sU}, 4
          s_and_b32 s{sT[0]}, s{sI}, 15
          s_add_u32 s{sPub}, s{sPub}, s{sT[0]}
          s_mul_i32 s{sPub}, s{sPub}, {REC}
          s_add_u32 s{sPub}, s{sPub}, {WS_PART}
          s_mov_b32 s{sPubO}, s{sPub}
          s_mov_b32 s{sShift}, 4""")
    if not abl_Ast: call("L_PUBPART"); call("L_PUBML")
    stamp(4)

    a.label("L_FIN")
    a(f"""s_cmp_eq_u32 s{sBr}, 0
          s_cselect_b32 s12, s{K_AWO}, s{K_BWO}
          s_cselect_b32 s13, s{K_AWO+1}, s{K_BWO+1}
          s_cselect_b32 s{sH}, s{sHA}, s{sHB}
          s_mov_b32 s14, 0x400000
          v_lshlrev_b32 v{vO0}, 13, v{vG}
          v_lshl_add_u32 v{vO0}, v{vC}, 3, v{vO0}
          v_add_u32 v{vO1}, 0x1000, v{vO0}
          s_lshl_b32 s{sOff}, s{sH}, 2
          s_add_u32 s{sOff}, s{sOff}, s{sW}
          s_lshl_b32 s{sOff}, s{sOff}, 15
          s_lshl_b32 s{sT[0]}, s{sR}, 7
          s_add_u32 s{sOff}, s{sOff}, s{sT[0]}""")
    PB = vRing
    vA0 = vLo
    a(f"""s_lshl_b32 s{sU}, s{sBr}, 5
          s_add_u32 s{sU}, s{sU}, s{sH}
          s_mul_i32 s{sT[1]}, s{sU}, {32 * REC}
          s_add_u32 s{sT[1]}, s{sT[1]}, {WS_PART}
          v_and_b32 v{vT[2]}, 31, v{vLane}
          v_mul_u32_u24 v{vT[3]}, {REC}, v{vT[2]}
          s_mov_b32 s{sSpin}, {SPIN}
          s_cmp_eq_u32 s{sBr}, 0
          s_cbranch_scc0 L_F_addrB
          s_lshl_b32 s{sT[0]}, s{sW}, 6
          s_add_u32 s{sP[0]}, s{sT[1]}, s{sT[0]}
          s_add_u32 s{sP[1]}, s{sP[0]}, 256
          s_add_u32 s{sP[2]}, s{sP[0]}, {16 * REC}
          s_add_u32 s{sP[3]}, s{sP[0]}, {16 * REC + 256}
          v_mul_u32_u24 v{vA0}, {REC}, v{vC}
          v_lshl_add_u32 v{vA0}, v{vG}, 4, v{vA0}""")
    if abl_Apoll: a(f"s_mov_b32 s{sBr}, 1\ns_branch L_FIN")
    a("s_branch L_F_ml0")
    a.label("L_F_addrB")
    a(f"""s_lshl_b32 s{sP[0]}, s{sH}, 14
          s_lshl_b32 s{sT[0]}, s{sW}, 8
          s_add_u32 s{sP[0]}, s{sP[0]}, s{sT[0]}
          s_add_u32 s{sP[0]}, s{sP[0]}, {WS_PB}
          s_add_u32 s{sP[1]}, s{sP[0]}, 1024
          s_add_u32 s{sP[2]}, s{sP[0]}, 8192
          s_add_u32 s{sP[3]}, s{sP[0]}, 9216
          v_lshrrev_b32 v{vA0}, 2, v{vC}
          v_lshlrev_b32 v{vA0}, 11, v{vA0}
          v_and_b32 v{vT[0]}, 3, v{vC}
          v_lshl_add_u32 v{vA0}, v{vT[0]}, 4, v{vA0}
          v_lshl_add_u32 v{vA0}, v{vG}, 6, v{vA0}
          s_waitcnt lgkmcnt(0)""")
    stamp(6)
    a("s_barrier")
    if ya == "mid" and not abl_noA:
        a(f"""s_cmp_eq_u32 s{sW}, 3
              s_cbranch_scc0 L_F_noya
              s_mov_b32 s{sT[3]}, s{sT[1]}
              s_mov_b32 s{sBr}, 0""")
        call("L_PUBY")
        a(f"s_mov_b32 s{sBr}, 1\ns_mov_b32 s{sT[1]}, s{sT[3]}\nL_F_noya:")
    if rank:
        a(f"s_cmp_eq_u32 s{sW}, 0\ns_cbranch_scc0 L_F_ml0")
        if rank == "m":
            a(f"""s_lshl_b32 s{sT[0]}, s{sX}, 12
                  s_add_u32 s{sT[0]}, s{sT[0]}, {WS_MK}
                  v_and_b32 v{vU[0]}, 31, v{vLane}
                  v_lshlrev_b32 v{vU[0]}, 7, v{vU[0]}
                  v_add_u32 v{vU[1]}, {WS_GM}, v{vU[0]}
                  v_add_u32 v{vU[0]}, s{sT[0]}, v{vU[0]}
                  s_lshl_b32 s{sT[3]}, s{sI}, 7
                  s_add_u32 s{sT[3]}, s{sT[3]}, s{sT[0]}
                  v_mov_b32 v{vG4+2}, s{sTag}
                  v_mov_b32 v{vG4+3}, s{sTag+1}""")
            if gw: a(f"s_mov_b32 exec_lo, 0\nv_mov_b32 v{vU[0]}, v{vU[1]}\ns_mov_b32 exec_lo, -1")
            else: a("s_mov_b32 exec_hi, 0")
            if not gdelay: a(f"buffer_load_dword v{vG4}, v{vU[0]}, s[16:19], 0 offen {gld}")
            a(f"""v_lshlrev_b32 v{vU[1]}, 3, v{vLane}
                  s_mov_b64 exec, 0xffff
                  buffer_store_dwordx2 v[{vG4+2}:{vG4+3}], v{vU[1]}, s[16:19], s{sT[3]} offen""")
            if gw or gx:
                a(f"""s_cmp_eq_u32 s{sR}, 5
                      s_cbranch_scc0 L_F_nogm
                      s_lshl_b32 s{sT[3]}, s{sHA}, 7
                      s_add_u32 s{sT[3]}, s{sT[3]}, {WS_GM}
                      buffer_store_dwordx2 v[{vG4+2}:{vG4+3}], v{vU[1]}, s[16:19], s{sT[3]} offen sc1
                      L_F_nogm:""")
            a("s_mov_b64 exec, -1")
            if gdelay: a(f"s_sleep {gdelay}\nbuffer_load_dword v{vG4}, v{vU[0]}, s[16:19], 0 offen {gld}")
            a(f"""s_waitcnt vmcnt(0)
                  v_cmp_eq_u32 vcc, s{sTag}, v{vG4}
                  s_nop 1
                  s_bcnt1_i32_b32 s{sT[0]}, vcc_lo""")
            if gw:
                a(f"s_bcnt1_i32_b32 s{sT[3]}, vcc_hi")
                if diag: a(f"s_mov_b32 s56, s{sT[3]}\ns_mov_b32 s57, 0")
                a(f"""s_mul_i32 s{sT[3]}, s{sT[3]}, {gw}
                      s_mul_i32 s{sT[0]}, s{sT[0]}, {4 - gw}
                      s_add_u32 s{sT[0]}, s{sT[0]}, s{sT[3]}
                      s_lshl_b32 s{sT[0]}, s{sT[0]}, 1
                      s_add_u32 s{sT[0]}, s{sT[0]}, {gbias}
                      s_min_u32 s{sT[0]}, s{sT[0]}, 255""")
            else:
                if gx:
                    a(f"""s_lshl_b32 s98, s{sX}, 7
                          s_add_u32 s98, s98, {WS_XL}
                          s_sub_u32 s{sT[3]}, s{sT[0]}, {glo}
                          s_cmp_le_u32 s{sT[3]}, {ghi - glo}
                          s_cbranch_scc0 L_F_gx1
                          {"s_branch L_F_gx1" if gnoread else ""}
                          v_lshlrev_b32 v{vU[0]}, 7, v{vLane}
                          s_mov_b32 s{sT[3]}, {WS_GM}
                          s_mov_b32 exec_hi, 0
                          buffer_load_dword v{vG4}, v{vU[0]}, s[16:19], s{sT[3]} offen sc1
                          s_mov_b32 exec_hi, -1
                          s_waitcnt vmcnt(0)
                          v_cmp_eq_u32 vcc, s{sTag}, v{vG4}
                          s_nop 1
                          s_bcnt1_i32_b32 s{sT[3]}, vcc_lo
                          v_mov_b32 v{vG4+3}, s{sT[3]}
                          s_mov_b64 exec, 0xffff
                          buffer_store_dwordx2 v[{vG4+2}:{vG4+3}], v{vU[1]}, s[16:19], s98 offen
                          s_mov_b64 exec, -1
                          L_F_gx1:
                          s_mov_b32 s99, {gpoll}
                          v_mov_b32 v{vU[0]}, 0
                          L_F_gx2:
                          s_mov_b64 exec, 1
                          buffer_load_dwordx2 v[{vG4}:{vG4+1}], v{vU[0]}, s[16:19], s98 offen nt
                          s_mov_b64 exec, -1
                          s_waitcnt vmcnt(0)
                          v_readfirstlane_b32 s{sT[3]}, v{vG4}
                          v_readfirstlane_b32 s100, v{vG4+1}
                          s_cmp_eq_u32 s{sT[3]}, s{sTag}
                          s_cbranch_scc1 L_F_gx3
                          s_mov_b32 s100, 20
                          s_sleep 16
                          s_sub_u32 s99, s99, 1
                          s_cbranch_scc0 L_F_gx2
                          L_F_gx3:
                          s_min_u32 s100, s100, 31""")
                    if diag: a(f"s_mov_b32 s56, s100\ns_mov_b32 s57, 0")
                    a(f"""s_and_b32 s100, s100, 28
                          s_lshr_b32 s100, {xtab}, s100
                          s_and_b32 s100, s100, 15""")
                a(f"s_lshl_b32 s{sT[0]}, s{sT[0]}, 3\ns_min_u32 s{sT[0]}, s{sT[0]}, 255")
        elif rank == "s":
            a(f"""s_mov_b32 s{sT[0]}, 1
                  s_atomic_add s{sT[0]}, s[{K_DBG}:{K_DBG+1}], 0 glc
                  s_waitcnt lgkmcnt(0)""")
        else:
            srd(20, K_DBG, 256)
            a(f"""v_mov_b32 v{vU[0]}, 0
                  v_mov_b32 v{vU[1]}, 1
                  s_mov_b64 exec, 1
                  buffer_atomic_add v{vU[1]}, v{vU[0]}, s[20:23], 0 offen sc0
                  s_mov_b64 exec, -1
                  s_waitcnt vmcnt(0)
                  v_readfirstlane_b32 s{sT[0]}, v{vU[1]}""")
        if diag: a(f"s_mov_b32 s58, s{sT[0]}\ns_mov_b32 s59, 0")
        if rtab == "table":
            a(f"s_load_dword s{sT[3]}, s[{K_WS}:{K_WS+1}], 49152\ns_waitcnt lgkmcnt(0)")
        else: a(f"s_mov_b32 s{sT[3]}, {rtab}")
        a(f"""s_lshr_b32 s{sT[0]}, s{sT[0]}, 3
              s_and_b32 s{sT[0]}, s{sT[0]}, 28
              s_lshr_b32 s{sT[0]}, s{sT[3]}, s{sT[0]}
              s_and_b32 s{sT[0]}, s{sT[0]}, 15
              s_add_u32 s{sT[0]}, s{sT[0]}, 16
              s_lshr_b32 s{sT[3]}, s{sX}, 2
              s_mul_i32 s{sT[3]}, s{sT[3]}, {xb}
              s_add_u32 s{sT[0]}, s{sT[0]}, {"s100" if gx else f"s{sT[3]}"}
              v_mov_b32 v{vU[0]}, {L_CNT + 20}
              v_mov_b32 v{vU[1]}, s{sT[0]}
              ds_write_b32 v{vU[0]}, v{vU[1]}""")
    def wo_loads():
        for e in range(8):
            a(f"buffer_load_dwordx2 v[{vRaw+2*e}:{vRaw+2*e+1}], v{vO0 + (e >> 2)}, s[12:15], s{sOff} offen offset:{(e & 3) * 1024} nt")
    def part_loads():
        for k in range(4):
            r = PB + 4 * k
            a(f"buffer_load_dwordx4 v[{r}:{r+3}], v{vA0}, s[16:19], s{sP[k]} offen {pld}")
    def perms():
        for ct in range(4):
            for k, (ea, eb) in enumerate(((0, 1), (4, 5), (2, 3), (6, 7))):
                a(f"v_perm_b32 v{vBop+4*ct+k}, v{vRaw+2*eb+(ct>>1)}, v{vRaw+2*ea+(ct>>1)}, s{sSel0 + (ct & 1)}")
    a.label("L_F_ml0")
    if wo_at == "mid": wo_loads()
    if wo_at == "touch":
        a(f"s_mov_b64 exec, 1\nbuffer_load_dword v{vRaw}, v{vO0}, s[12:15], s{sOff} offen nt\ns_mov_b64 exec, -1")
    a.label("L_F_mlpoll")
    if narrow: a("s_mov_b32 exec_hi, 0")
    a(f"""buffer_load_dwordx4 v[{vG4}:{vG4+3}], v{vT[3]}, s[16:19], s{sT[1]} offen offset:512 {ldf}
          s_waitcnt vmcnt(0)""")
    tagcheck([vG4], "L_F_mlpoll", "L_F_mlok", "always", narrow, 24)
    if wo_at == "mid": perms()
    a(f"v_mov_b32 v{vM}, v{vG4}")
    row_allreduce("v_max_f32", [vM])
    a(f"""v_sub_f32 v{vG4}, v{vG4}, v{vM}
          v_mul_f32 v{vG4}, s{sLog2e}, v{vG4}
          v_exp_f32 v{vG4}, v{vG4}
          v_mul_f32 v{vG4}, v{vG4}, v{vG4+2}
          v_mov_b32 v{vL}, v{vG4}""")
    row_allreduce("v_add_f32", [vL])
    a(f"""v_rcp_f32 v{vL}, v{vL}
          s_lshl_b32 s{sT[0]}, s{sW}, 7
          v_lshl_add_u32 v{vT[0]}, v{vT[2]}, 2, s{sT[0]}
          v_mul_f32 v{vG4}, v{vG4}, v{vL}
          v_lshl_add_u32 v{vT[1]}, v{vG}, 4, s{sT[0]}
          s_mov_b32 exec_hi, 0
          ds_write_b32 v{vT[0]}, v{vG4} offset:{L_WT}
          s_mov_b32 exec_hi, -1
          ds_read_b128 v[{vW}:{vW+3}], v{vT[1]} offset:{L_WT}
          ds_read_b128 v[{vW+4}:{vW+7}], v{vT[1]} offset:{L_WT+64}
          s_lshl_b32 s{sT[0]}, s{sBr}, 2
          s_add_u32 s{sT[0]}, s{sT[0]}, s{sW}
          s_lshl_b32 s{sT[0]}, s{sT[0]}, 9
          v_lshrrev_b32 v{vT[0]}, 1, v{vG}
          v_lshlrev_b32 v{vT[0]}, 5, v{vT[0]}
          v_and_b32 v{vT[1]}, 1, v{vG}
          v_lshl_add_u32 v{vT[1]}, v{vC}, 1, v{vT[1]}
          v_add_lshl_u32 v{vT[0]}, v{vT[0]}, v{vT[1]}, 3
          v_add_u32 v{vT[0]}, s{sT[0]}, v{vT[0]}
          v_mov_b32 v{vHi}, v{vT[0]}
          s_mov_b32 s{sSpin}, {SPIN}
          """)
    if fastf2:
        a(f"""v_mov_b32 v{vS}, {L_CNT + 8}
              v_mov_b32 v{vS+1}, 1
              v_lshlrev_b32 v{vS+2}, 3, v{vLane}
              v_lshlrev_b32 v{vS+3}, 4, v{vLane}
              v_lshrrev_b32 v{vS+5}, 5, v{vLane}
              v_lshlrev_b32 v{vS+4}, 10, v{vT[2]}
              v_lshl_add_u32 v{vS+4}, v{vS+5}, 4, v{vS+4}
              v_lshlrev_b32 v{vS+5}, 2, v{vS+5}
              v_bfe_u32 v{vS+6}, v{vLane}, 3, 1
              v_lshl_add_u32 v{vS+5}, v{vS+6}, 10, v{vS+5}
              v_bfe_u32 v{vS+6}, v{vLane}, 2, 1
              v_lshl_add_u32 v{vS+5}, v{vS+6}, 1, v{vS+5}
              v_mov_b32 v{vQ+1}, s{sTag}
              v_mov_b32 v{vQ+3}, s{sTag+1}
              s_add_u32 s98, s{sR}, 8
              s_lshl_b32 s98, s98, 5
              s_add_u32 s98, s98, s{sHA}
              s_lshl_b32 s98, s98, 10
              s_add_u32 s98, s98, {WS_Y}
              s_lshl_b32 s99, s{sX}, 15
              s_lshl_b32 s{sT[0]}, s{sI}, 5
              s_add_u32 s99, s99, s{sT[0]}
              s_add_u32 s99, s99, {WS_Y}
              s_add_u32 s{sT[3]}, s99, {8 << 15}
              s_lshr_b32 s{sT[2]}, s{sI}, 4
              s_lshl_b32 s{sT[2]}, s{sT[2]}, 11
              s_lshl_b32 s{sT[0]}, s{sX}, 7
              s_add_u32 s{sT[2]}, s{sT[2]}, s{sT[0]}
              s_and_b32 s{sT[0]}, s{sI}, 15
              s_lshl_b32 s{sT[0]}, s{sT[0]}, 3
              s_add_u32 s{sT[2]}, s{sT[2]}, s{sT[0]}""")
        srd(20, K_OUT, 4096)
    a(f"s_cmp_eq_u32 s{sBr}, 0\ns_cbranch_scc1 {'L_F_goA' if aser else 'L_F_go'}")
    if ya == "flag":
        a(f"s_cmp_eq_u32 s{sW}, 3\ns_cbranch_scc0 L_F_b2")
        lds_wait(24, 1, "L_F_yaw", 4)
        a(f"s_mov_b32 s{sBr}, 0")
        call("L_PUBY")
        a(f"s_mov_b32 s{sBr}, 1\ns_mov_b32 s{sSpin}, {SPIN}\nL_F_b2:")
    a("s_barrier")
    tstamp(1)
    if abl_notail: a("s_branch L_exit")
    if ya == "h3" and not abl_noA:
        a(f"""s_cmp_eq_u32 s{sW}, 3
              s_cbranch_scc0 L_F_go
              s_mov_b32 s{sBr}, 0""")
        call("L_PUBY")
        a(f"s_mov_b32 s{sBr}, 1")
    a.label("L_F_go")
    if wo_at == "mid":
        a("s_mov_b64 vcc, -1")
    else:
        wo_loads(); part_loads()
        a("s_waitcnt vmcnt(4)")
        tstamp(2)
        perms()
        a("s_branch L_F_pwait")
    a.label("L_F_ppoll")
    if masked: a("s_mov_b64 exec, vcc")
    part_loads()
    if masked: a("s_mov_b64 exec, -1")
    a.label("L_F_pwait")
    a("s_waitcnt vmcnt(0)")
    tagcheck([PB + 4 * k for k in range(4)], "L_F_ppoll", "L_F_pok", True)
    tstamp(3)
    for b in range(2):
        a(f"v_mov_b32 v{PB+8*b+1}, v{PB+8*b+4}\nv_mov_b32 v{PB+8*b+3}, v{PB+8*b+6}")
    if fastf2:
        D = vRing + 32
        a("s_waitcnt lgkmcnt(0)")
        def fm(k):
            b = k // 4; d = D + 4 * k
            a(f"v_mul_f32 v{vAcc+k}, v{vW+4*b}, v{d}")
            for i in range(1, 4): a(f"v_fmac_f32 v{vAcc+k}, v{vW+4*b+i}, v{d+i}")
        order = [0, 4, 1, 5, 2, 6, 3, 7]
        for n, k in enumerate(order):
            b, ct = k // 4, k % 4; d = D + 4 * k
            a(f"v_mfma_f32_16x16x32_bf16 v[{d}:{d+3}], v[{PB+8*b}:{PB+8*b+3}], v[{vBop+4*ct}:{vBop+4*ct+3}], 0")
            if n >= f2lag: fm(order[n - f2lag])
        for n in range(8 - f2lag, 8): fm(order[n])
        for e in range(4): a(f"v_permlane32_swap_b32 v{vAcc+e}, v{vAcc+e+4}")
        for e in range(4): a(f"v_add_f32 v{vAcc+e}, v{vAcc+e}, v{vAcc+e+4}")
        for e in range(2): a(f"v_permlane16_swap_b32 v{vAcc+e}, v{vAcc+e+2}")
        for e in range(2): a(f"v_add_f32 v{vAcc+e}, v{vAcc+e}, v{vAcc+e+2}")
        a(f"""ds_write_b64 v{vHi}, v[{vAcc}:{vAcc+1}] offset:{L_YR}
              s_cmp_eq_u32 s{sBr}, 0
              s_mov_b32 s{sBr}, 1""")
        if diag:
            a("s_cbranch_scc0 L_F_tail"); stamp(5); a("s_branch L_FIN"); a.label("L_F_tail")
        else:
            a("s_cbranch_scc1 L_FIN")
        a(f"""s_mov_b64 exec, 1
              ds_add_rtn_u32 v{vU[2]}, v{vS}, v{vS+1}
              s_mov_b64 exec, -1""")
        for k in range(4): a(f"ds_read_b64 v[{vt+2*k}:{vt+2*k+1}], v{vS+2} offset:{L_YR + 2048 + 512*k}")
        a(f"""s_mov_b32 s{sSpin}, {SPIN}
              s_mov_b64 vcc, -1
              s_waitcnt lgkmcnt(0)
              v_readfirstlane_b32 s{sT[0]}, v{vU[2]}
              v_add_f32 v{vQ}, v{vt}, v{vt+2}
              v_add_f32 v{vQ+2}, v{vt+1}, v{vt+3}
              v_add_f32 v{vt+4}, v{vt+4}, v{vt+6}
              v_add_f32 v{vt+5}, v{vt+5}, v{vt+7}
              s_cmp_eq_u32 s{sT[0]}, 3
              s_cbranch_scc0 {"L_F_nl" if f3first else "L_exit"}
              v_add_f32 v{vQ}, v{vQ}, v{vt+4}
              v_add_f32 v{vQ+2}, v{vQ+2}, v{vt+5}
              buffer_store_dwordx4 v[{vQ}:{vQ+3}], v{vS+3}, s[16:19], s98 offen {yst}""")
        tstamp(4)
        if f3first:
            a(f"s_branch L_exit\nL_F_nl:\ns_cmp_eq_u32 s{sT[0]}, {f3first - 1}\ns_cbranch_scc0 L_exit")
        a.label("L_F_ypoll")
        a("s_mov_b64 exec, vcc")
        a(f"buffer_load_dwordx4 v[{R0+4}:{R0+7}], v{vS+4}, s[16:19], s{sT[3]} offen {yld}")
        if not abl_noA: a(f"buffer_load_dwordx4 v[{R0}:{R0+3}], v{vS+4}, s[16:19], s99 offen {yld}")
        a("s_mov_b64 exec, -1\ns_waitcnt vmcnt(0)")
        tagcheck([R0 + 4] if abl_noA else [R0, R0 + 4], "L_F_ypoll", "L_F_yok")
        tstamp(5)
        a(f"""v_add_f32_dpp v{R0}, v{R0}, v{R0} row_mirror row_mask:0xf bank_mask:0x3
              v_add_f32_dpp v{R0+2}, v{R0+2}, v{R0+2} row_mirror row_mask:0xf bank_mask:0x3
              v_add_f32_dpp v{R0}, v{R0+4}, v{R0+4} row_mirror row_mask:0xf bank_mask:0xc
              v_add_f32_dpp v{R0+2}, v{R0+6}, v{R0+6} row_mirror row_mask:0xf bank_mask:0xc
              v_add_f32_dpp v{R0}, v{R0}, v{R0} row_half_mirror row_mask:0xf bank_mask:0x5
              v_add_f32_dpp v{R0}, v{R0+2}, v{R0+2} row_half_mirror row_mask:0xf bank_mask:0xa
              v_add_f32_dpp v{R0}, v{R0}, v{R0} quad_perm:[2,3,0,1] row_mask:0xf bank_mask:0xf
              v_add_f32_dpp v{R0}, v{R0}, v{R0} quad_perm:[1,0,3,2] row_mask:0xf bank_mask:0xf
              v_mov_b32 v{R0+1}, v{R0}
              v_permlane16_swap_b32 v{R0}, v{R0+1}
              v_add_f32 v{R0}, v{R0}, v{R0+1}
              v_cvt_pk_bf16_f32 v{R0}, v{R0}, v{R0}
              s_mov_b32 exec_lo, 0x1111
              s_mov_b32 exec_hi, 0x1111
              buffer_store_short v{R0}, v{vS+5}, s[20:23], s{sT[2]} offen
              s_mov_b64 exec, -1""")
    else:
        D = vRing + 32
        for b in range(2):
            for ct in range(4):
                d = D + (b * 4 + ct) * 4
                a(f"v_mfma_f32_16x16x32_bf16 v[{d}:{d+3}], v[{PB+8*b}:{PB+8*b+3}], v[{vBop+4*ct}:{vBop+4*ct+3}], 0")
        a("s_waitcnt lgkmcnt(0)")
        for i in range(4):
            for b in range(2):
                for ct in range(4):
                    d = D + (b * 4 + ct) * 4
                    if i == 0: a(f"v_mul_f32 v{vAcc+b*4+ct}, v{vW+4*b}, v{d}")
                    else: a(f"v_fmac_f32 v{vAcc+b*4+ct}, v{vW+4*b+i}, v{d+i}")
        call("L_RED8")
        a(f"""ds_write_b64 v{vHi}, v[{vAcc}:{vAcc+1}] offset:{L_YR}
              s_cmp_eq_u32 s{sBr}, 0
              s_mov_b32 s{sBr}, 1""")
        if diag:
            a("s_cbranch_scc0 L_F_tail"); stamp(5); a("s_branch L_FIN"); a.label("L_F_tail")
        else:
            a("s_cbranch_scc1 L_FIN")
        a(f"""v_mov_b32 v{vU[0]}, {L_CNT + 8}
              v_mov_b32 v{vU[1]}, 1
              s_mov_b64 exec, 1
              ds_add_rtn_u32 v{vU[2]}, v{vU[0]}, v{vU[1]}
              s_mov_b64 exec, -1
              s_waitcnt lgkmcnt(0)
              v_readfirstlane_b32 s{sT[0]}, v{vU[2]}
              s_cmp_eq_u32 s{sT[0]}, 3
              s_cbranch_scc0 L_exit""")
        call("L_PUBY")
        if ya == "last" and not abl_noA:
            a(f"s_mov_b32 s{sBr}, 0"); call("L_PUBY"); a(f"s_mov_b32 s{sBr}, 1")
        tstamp(4)
        a(f"""s_lshl_b32 s{sT[1]}, s{sX}, 15
              s_lshl_b32 s{sT[0]}, s{sI}, 5
              s_add_u32 s{sT[1]}, s{sT[1]}, s{sT[0]}
              s_add_u32 s{sT[1]}, s{sT[1]}, {WS_Y}
              s_add_u32 s{sT[3]}, s{sT[1]}, {8 << 15}
              v_lshrrev_b32 v{vT[0]}, 5, v{vLane}
              v_lshlrev_b32 v{vT[1]}, 10, v{vT[2]}
              v_lshl_add_u32 v{vT[1]}, v{vT[0]}, 4, v{vT[1]}
              v_lshlrev_b32 v{vT[0]}, 2, v{vT[0]}
              s_lshr_b32 s{sT[2]}, s{sI}, 4
              s_lshl_b32 s{sT[2]}, s{sT[2]}, 11
              s_lshl_b32 s{sT[0]}, s{sX}, 7
              s_add_u32 s{sT[2]}, s{sT[2]}, s{sT[0]}
              s_and_b32 s{sT[0]}, s{sI}, 15
              s_lshl_b32 s{sT[0]}, s{sT[0]}, 3
              s_add_u32 s{sT[2]}, s{sT[2]}, s{sT[0]}
              s_mov_b32 s{sSpin}, {SPIN}""")
        srd(20, K_OUT, 4096)
        if masked: a("s_mov_b64 vcc, -1")
        a.label("L_F_ypoll")
        if masked: a("s_mov_b64 exec, vcc")
        a(f"buffer_load_dwordx4 v[{R0+4}:{R0+7}], v{vT[1]}, s[16:19], s{sT[3]} offen {yld}")
        if not abl_noA: a(f"buffer_load_dwordx4 v[{R0}:{R0+3}], v{vT[1]}, s[16:19], s{sT[1]} offen {yld}")
        if masked: a("s_mov_b64 exec, -1")
        a("s_waitcnt vmcnt(0)")
        tagcheck([R0 + 4] if abl_noA else [R0, R0 + 4], "L_F_ypoll", "L_F_yok")
        tstamp(5)
        row_allreduce("v_add_f32", [R0, R0 + 2, R0 + 4, R0 + 6])
        for k in range(4): a(f"v_mov_b32 v{R0+2*k+1}, v{R0+2*k}")
        for k in range(4): a(f"v_permlane16_swap_b32 v{R0+2*k}, v{R0+2*k+1}")
        for k in range(4): a(f"v_add_f32 v{R0+2*k}, v{R0+2*k}, v{R0+2*k+1}")
        a(f"""v_cvt_pk_bf16_f32 v{R0}, v{R0}, v{R0+2}
              v_cvt_pk_bf16_f32 v{R0+4}, v{R0+4}, v{R0+6}
              s_mov_b32 exec_lo, 1
              s_mov_b32 exec_hi, 1
              buffer_store_dword v{R0}, v{vT[0]}, s[20:23], s{sT[2]} offen
              buffer_store_dword v{R0+4}, v{vT[0]}, s[20:23], s{sT[2]} offen offset:1024
              s_mov_b64 exec, -1""")
    a(f"""s_nop 0
          s_cmp_eq_u32 s2, 0
          s_cbranch_scc0 L_exit
          v_mov_b32 v{vT[0]}, {WS_EPOCH}
          v_mov_b32 v{vT[1]}, s{sEp}
          s_mov_b64 exec, 1
          buffer_store_dword v{vT[1]}, v{vT[0]}, s[16:19], 0 offen sc1
          s_mov_b64 exec, -1""")

    if aser:
        a("s_branch L_exit")
        a.label("L_F_goA")
        for k in range(4):
            r = PB + 4 * k
            a(f"buffer_load_dwordx4 v[{r}:{r+3}], v{vA0}, s[16:19], s{sP[k]} offen {pld}\ns_waitcnt vmcnt({aser - 1})")
        a("s_branch L_F_pwait")
    a.label("L_exit")
    if fixdur:
        a.label("L_fix")
        a(f"""s_memrealtime s[50:51]
              s_waitcnt lgkmcnt(0)
              s_sub_u32 s50, s50, s48
              s_cmp_lt_u32 s50, {fixdur}
              s_cbranch_scc1 L_fix""")
    if diag:
        stamp(7)
        a(f"""s_lshl_b32 s{sT[0]}, s2, 3
              s_add_u32 s{sT[0]}, s{sT[0]}, s{sWave}
              s_lshl_b32 s{sT[0]}, s{sT[0]}, 6
              s_add_u32 s{sT[0]}, s{sT[0]}, {STAMP_OFF}
              s_waitcnt vmcnt(0) lgkmcnt(0)
              v_mov_b32 v{vT[0]}, 0""")
        for k in range(16): a(f"v_mov_b32 v{vRing+k}, s{48+k}")
        a("s_mov_b64 exec, 1")
        for k in range(4): a(f"buffer_store_dwordx4 v[{vRing+4*k}:{vRing+4*k+3}], v{vT[0]}, s[16:19], s{sT[0]} offen offset:{16*k}")
    a.label("L_end")
    a("s_endpgm")

    body, nops = a.render(nstub=NSTUB if stubs else 0, total=NSTUB)
    head = open(f"cdna_kernels/{NAME}.s.ref").read().split("; Override launch")[0]
    txt = head + f"""; Emitted by a hand-written generator script (dev/gen.py). One persistent workgroup per CU, one launch.
;   workgroup j: x = j&7, i = j>>3, head h = 4x + (i>>3), batch (i>>2)&1, key split i&3, column slice r = i&7
;   waves 4-7 stream 2048 keys of branch-B K then V (32-slot register ring, bounded number of loads in flight),
;     exact per-wave softmax (true max), publish a normalised partial o plus (max, sum)
;   waves 0-3: q partials (64 rows of wq per workgroup), branch-A attention (128 keys x 4 heads per workgroup),
;     combination of the partials + output projection (MFMA) and the final sum over heads
;   hand-offs go through d_ws as 16-byte granules carrying a per-launch tag (epoch word in d_ws + 1); a consumer that
;     keeps missing data writes its L2 back, so results do not depend on where workgroups are placed
; @launch grid=(256,1,1) block=(512,1,1) lds={LDS_BYTES}
.amdgcn_target "amdgcn-amd-amdhsa--gfx950"
.text
.globl {NAME}_kernel
.p2align 12
.p2align 8
.type {NAME}_kernel,@function
{body}.section .rodata,"a"
.p2align 6
.amdhsa_kernel {NAME}_kernel
  .amdhsa_next_free_vgpr {NVGPR}
  .amdhsa_next_free_sgpr 102
  .amdhsa_accum_offset {NVGPR}
  .amdhsa_group_segment_fixed_size 0
  .amdhsa_kernarg_size 104
  .amdhsa_user_sgpr_count 2
  .amdhsa_user_sgpr_kernarg_segment_ptr 1
  .amdhsa_system_sgpr_workgroup_id_x 1
  .amdhsa_float_denorm_mode_32 3
.end_amdhsa_kernel
"""
    return txt, nops, a.code_bytes

if __name__ == "__main__":
    out = sys.argv[1]
    kw = json.loads(sys.argv[2]) if len(sys.argv) > 2 else {}
    txt, nops, nb = gen(**kw)
    open(out, "w").write(txt)
    print(out, "lines", txt.count("\n"), "auto nops", nops, "code bytes", nb)
```

```python
import sys, json
sys.path.insert(0, "dev")
from asmlib import Asm
NAME = "concat_heads__sliding_block_cached__mha_block_cached__decode"

WS_EPOCH, WS_Y, WS_QP, WS_PART, WS_PB = 0, 64 << 10, 1 << 20, 2 << 20, (3 << 20) + (512 << 10)
WS_MK = 16 << 10
WS_GM = 8 << 10
WS_XL = 4 << 10
REC = 640
WS_SIZE = 512 << 20
STAMP_OFF = 64 << 20
L_QB, L_QA, L_CNT, L_MLA, L_WT, L_OA, L_YR = 0, 256, 1280, 1408, 1536, 2048, 10240
LDS_BYTES = 16384
vLane, vO0, vO1 = 1, 2, 3
vT = [4, 5, 6, 7]
vQ = 8
vAcc = 12
vt = 20
vZ0, vZ1, vZA = 28, 29, 30
vP = 32
vLo, vHi = 34, 35
vS = 36
vG4 = 44
vM, vL, vC, vG = 48, 49, 50, 51
vU = [52, 53, 54, 55]
vW = 56
vRing = 64
vRaw = 192
vAd = 208
vBop = 208
NVGPR = 224
sWave, sW, sX, sI, sH, sB, sS, sR = 3, 4, 5, 6, 7, 8, 9, 10
sOff = 24
sT = [25, 26, 27, 11]
sTag = 28
sRet = 30
sEp = 32
sMc1, sMc0 = 34, 36
sScale, sLog2e, sHiMask = 38, 39, 40
sSpin, sBr, sHH = 41, 42, 43
sPub, sU = 44, 45
sSel0, sSel1 = 46, 47
sPubO, sShift = 90, 91
sCnt, sMask = 92, 93
sHA, sHB = 96, 97
sP = [92, 93, 94, 95]
K_AX, K_AK, K_AV, K_AWQ, K_AWO, K_BX, K_BK, K_BV, K_BWQ, K_BWO, K_OUT, K_DBG, K_WS = [64 + 2 * i for i in range(13)]
SPIN = 1 << 18

def slot(G, s): return vRing + (G * 8 + s) * 4

def gen(NSTUB=8, diag=False, bar0=True, asleep=32, stubs=True, abl_noA=False, abl_noq=False, abl_notail=False,
        TK=(5,5,5,5,5,5,5,6), TV=(16,), vfrom=7, TH=14, early_bar=False, masked=True, pre=-1, midbar=2, wo_at="mid", pat=2, pata=2, bperm=None, lag=2, nfast=4, endlag=3, midg=5, fastend=True, fastf2=True, f2lag=3, f3first=True, rank='m', rtab=1412571392, gw=0, gdelay=0, gld='nt', gbias=0, gx=False, glo=15, ghi=17, gpoll=4, xtab=0x33221100, gnoread=False, rfrom=2, rmax=6, nodup=True, bhint=True, hmap=2, ph=1, phm=2, wxa=5, kvi=False, wb=0, phb=(18, 17), aearly=False, g0free=False, table=False, xorph=False, phx=0, phs=0, latefree=0, pld="nt", ya="flag", tsleep=0, local=True, slow=128, perm=0, ldf="nt", yld="sc1", yst="sc1", sprio=0, abl_Apoll=False, abl_Acomp=False, abl_Akv=False, abl_Ast=False, narrow=True, aser=1, qser=4, n0=3, xb=1, lateslots=(), stublate=False, TF=None, kvdelay=0, TQ=0, latemask=0xf0, vboost=0, tlb=0, xf='', xlast=False, hf=None, mf=None, preg=-1, yag=15, late2=True, h2early=True, abl_dbl=False, fixdur=0):
    assert max(TK) <= 16 and max(TV) <= 16
    two = tuple(TK) != tuple(TV)
    def iss(c, G): call(f"L_ISS{'V' if (two and c >= vfrom) else 'K'}{G}")
    a = Asm()
    uid = [0]
    stf = "" if local else "sc1"
    def tstamp(i):
        if diag == 3: a(f"s_memrealtime s[{48+2*i}:{49+2*i}]")
    def stamp(i):
        if diag == 2 and i in (1, 2): return
        if diag: a(f"s_memrealtime s[{48+2*i}:{49+2*i}]")
        if diag == 2 and i == 0: a("s_memtime s[50:51]")
        if diag == 2 and i == 5: a("s_memtime s[52:53]")
    def srd(base, ptr, size):
        a(f"s_mov_b32 s{base}, s{ptr}\ns_mov_b32 s{base+1}, s{ptr+1}\ns_mov_b32 s{base+2}, {size}\ns_mov_b32 s{base+3}, 0x00020000")
    def addr(s, p):
        if p == 8: return (vAd + (s >> 2), (s & 3) * 1024)
        return (vAd + s // p, (s % p) * 1024)
    def addr_setup(p, wx=-1):
        if wx >= 0: a(f"s_lshr_b32 s{sT[0]}, s2, {wx}\ns_xor_b32 s{sT[0]}, s{sT[0]}, s{sW}\ns_and_b32 s{sT[0]}, s{sT[0]}, 3")
        a(f"""s_lshl_b32 s{sT[0]}, s{sT[0] if wx >= 0 else sW}, {10 + p.bit_length() - 1}
              v_lshlrev_b32 v{vAd}, 4, v{vLane}
              v_add_u32 v{vAd}, s{sT[0]}, v{vAd}""")
        if p == 8: a(f"v_add_u32 v{vAd+1}, 0x1000, v{vAd}")
        else:
            for k in range(1, 8 // p): a(f"v_add_u32 v{vAd+k}, {k * p * 4096}, v{vAd}")
    def issue(G, tp, bar_at=-1):
        for s in range(8):
            if s == bar_at: a("s_barrier")
            if bar_at >= 0 and s == 5 and stublate: touch([(4, 5), (5, 0), (6, 2), (7, 7)])
            r = slot(G, s)
            t = tp[s % len(tp)]
            if t and tp is TK and s in lateslots:
                uid[0] += 1
                a(f"s_waitcnt vmcnt({t})\ns_cbranch_vccnz L_lt{uid[0]}\ns_waitcnt vmcnt({t - 1})\nL_lt{uid[0]}:")
            elif t: a(f"s_waitcnt vmcnt({t - 1})")
            va, imm = (vAd + s, 0) if bperm else addr(s, pat)
            a(f"buffer_load_dwordx4 v[{r}:{r+3}], v{va}, s[12:15], s{sOff} offen offset:{imm} nt")
        if xorph: a(f"s_add_u32 s{sCnt}, s{sCnt}, 0x8000\ns_and_b32 s{sCnt}, s{sCnt}, 0x7ffff\ns_xor_b32 s{sOff}, s{sCnt}, s{sMask}")
        elif wb:
            hole = 3 << wb
            a(f"s_or_b32 s{sOff}, s{sOff}, {hole}\ns_add_u32 s{sOff}, s{sOff}, 0x2000\ns_and_b32 s{sOff}, s{sOff}, {0x7ffff & ~hole}")
        else: a(f"s_add_u32 s{sOff}, s{sOff}, 0x8000\ns_and_b32 s{sOff}, s{sOff}, 0x7ffff")
    def call(lbl): a(f"s_call_b64 s[{sRet}:{sRet+1}], {lbl}")
    def ret(): a(f"s_setpc_b64 s[{sRet}:{sRet+1}]")
    def row_allreduce(op, regs):
        for m in ("row_mirror", "row_half_mirror", "quad_perm:[2,3,0,1]", "quad_perm:[1,0,3,2]"):
            for x in regs: a(f"{op}_dpp v{x}, v{x}, v{x} {m} row_mask:0xf bank_mask:0xf")
    def xrow(op, x, tmp, which):
        a(f"v_mov_b32 v{tmp}, v{x}\nv_permlane{which}_swap_b32 v{x}, v{tmp}\n{op} v{x}, v{x}, v{tmp}")
    def wave_allreduce(op, x, tmp):
        row_allreduce(op, [x]); xrow(op, x, tmp, 16); xrow(op, x, tmp, 32)
    def round_scores(x, y, t):
        a(f"""v_cvt_pk_bf16_f32 v{t}, v{x}, v{y}
              v_lshlrev_b32 v{x}, 16, v{t}
              v_and_b32 v{y}, s{sHiMask}, v{t}
              v_mul_f32 v{x}, s{sScale}, v{x}
              v_mul_f32 v{y}, s{sScale}, v{y}
              v_cvt_pk_bf16_f32 v{t}, v{x}, v{y}
              v_lshlrev_b32 v{x}, 16, v{t}
              v_and_b32 v{y}, s{sHiMask}, v{t}""")
    def tagcheck(bufs, lbl_retry, lbl_ok, backoff=False, restore=False, patience=None):
        acc = vU[0]
        first = True
        for b in bufs:
            a(f"v_xor_b32 v{vU[1]}, s{sTag}, v{b+1}\nv_xor_b32 v{vU[2]}, s{sTag+1}, v{b+3}")
            if first: a(f"v_or_b32 v{acc}, v{vU[1]}, v{vU[2]}")
            else: a(f"v_or3_b32 v{acc}, v{acc}, v{vU[1]}, v{vU[2]}")
            first = False
        a(f"v_cmp_ne_u32 vcc, 0, v{acc}")
        if restore: a("s_mov_b64 exec, -1")
        a(f"s_cbranch_vccz {lbl_ok}")
        if backoff == "always": a(f"s_sleep {asleep}")
        elif backoff and asleep:
            a(f"s_cmp_eq_u32 s{sBr}, 0\ns_cbranch_scc0 {lbl_ok}_nb\ns_sleep {asleep}\n{lbl_ok}_nb:")
        if tsleep: a(f"s_sleep {tsleep}")
        if local:
            a(f"""s_cmp_gt_u32 s{sSpin}, {SPIN - (patience or slow)}
                  s_cbranch_scc1 {lbl_ok}_fast
                  buffer_wbl2 sc1
                  s_waitcnt vmcnt(0)
                  s_sleep 16
                  {lbl_ok}_fast:""")
        a(f"""s_sub_u32 s{sSpin}, s{sSpin}, 1
              s_cbranch_scc0 {lbl_retry}""")
        a.label(lbl_ok)
    def lds_wait(off, atleast, name, sleep=0):
        a(f"v_mov_b32 v{vU[0]}, {L_CNT + off}\ns_mov_b32 s{sSpin}, {SPIN * 64}")
        a.label(name)
        a(f"""ds_read_b32 v{vU[1]}, v{vU[0]}
              s_waitcnt lgkmcnt(0)
              v_readfirstlane_b32 s{sT[0]}, v{vU[1]}
              s_cmp_ge_u32 s{sT[0]}, {atleast}
              s_cbranch_scc1 {name}_ok""")
        if sleep: a(f"s_sleep {sleep}")
        a(f"""s_sub_u32 s{sSpin}, s{sSpin}, 1
              s_cbranch_scc0 {name}""")
        a.label(name + "_ok")
    def helper_sync(off, name):
        a(f"""v_mov_b32 v{vU[0]}, {L_CNT + off}
              v_mov_b32 v{vU[1]}, 1
              s_mov_b64 exec, 1
              ds_add_u32 v{vU[0]}, v{vU[1]}
              s_mov_b64 exec, -1""")
        lds_wait(off, 4, name, 1)
    def epoch_load():
        a(f"s_load_dwordx2 s[{sEp}:{sEp+1}], s[{K_WS}:{K_WS+1}], {WS_EPOCH}")
    def epoch_tag():
        a(f"""s_waitcnt lgkmcnt(0)
              s_add_u32 s{sEp}, s{sEp}, 1
              s_xor_b32 s{sTag}, s{sEp}, 0x5bd1e995
              s_mul_i32 s{sTag+1}, s{sEp}, 0x9e3779b1
              s_add_u32 s{sTag+1}, s{sTag+1}, s{sEp+1}""")
    def consts():
        a(f"""s_mov_b32 s{sMc1}, 0xcccccccc
              s_mov_b32 s{sMc1+1}, 0xcccccccc
              s_mov_b32 s{sMc0}, 0xaaaaaaaa
              s_mov_b32 s{sMc0+1}, 0xaaaaaaaa
              s_mov_b32 s{sScale}, 0x3db504f3
              s_mov_b32 s{sLog2e}, 0x3fb8aa3b
              s_mov_b32 s{sHiMask}, 0xffff0000""")
        srd(16, K_WS, WS_SIZE)
    R0 = vRing

    a.label(f"{NAME}_kernel")
    a(f"""s_cmp_ge_u32 s2, 256
          s_cbranch_scc1 L_end
          s_load_dwordx16 s[64:79], s[0:1], 0
          s_load_dwordx8 s[80:87], s[0:1], 64
          s_load_dwordx2 s[88:89], s[0:1], 96""")
    stamp(0)
    if fixdur: a("s_memrealtime s[48:49]")
    if perm:
        a(f"s_mul_i32 s2, s2, {perm}\ns_lshr_b32 s{sT[0]}, s2, 8\ns_and_b32 s2, s2, 255")
        a(f"s_lshr_b32 s{sT[0]}, s2, 3\ns_xor_b32 s2, s2, s{sT[0]}")
    if hmap == 0: hb_code = f"s_lshl_b32 s{sHB}, s{sH}, 3\ns_add_u32 s{sHB}, s{sHB}, s{sX}"
    elif hmap == 1: hb_code = (f"s_and_b32 s{sHB}, s{sH}, 1\ns_lshr_b32 s{sH}, s{sH}, 1\ns_lshl_b32 s{sH}, s{sH}, 4\ns_add_u32 s{sHB}, s{sHB}, s{sH}\n"
                               f"s_lshl_b32 s{sT[0]}, s{sX}, 1\ns_add_u32 s{sHB}, s{sHB}, s{sT[0]}")
    elif hmap == 6:
        hb_code = (f"s_and_b32 s{sHB}, s{sH}, 1\ns_lshr_b32 s{sH}, s{sH}, 1\ns_lshl_b32 s{sH}, s{sH}, 3\ns_add_u32 s{sHB}, s{sHB}, s{sH}\n"
                   f"s_and_b32 s{sT[0]}, s{sX}, 3\ns_lshl_b32 s{sT[0]}, s{sT[0]}, 1\ns_add_u32 s{sHB}, s{sHB}, s{sT[0]}\n"
                   f"s_and_b32 s{sT[0]}, s{sX}, 4\ns_lshl_b32 s{sT[0]}, s{sT[0]}, 2\ns_add_u32 s{sHB}, s{sHB}, s{sT[0]}")
    else: hb_code = f"s_mov_b32 s{sHB}, s{sHA}"
    a(f"""v_lshrrev_b32 v{vT[0]}, 6, v0
          v_and_b32 v{vLane}, 63, v0
          v_readfirstlane_b32 s{sWave}, v{vT[0]}
          s_and_b32 s{sX}, s2, 7
          s_lshr_b32 s{sI}, s2, 3
          s_lshr_b32 s{sH}, s{sI}, 3
          s_lshl_b32 s{sT[0]}, s{sX}, 2
          s_add_u32 s{sHA}, s{sH}, s{sT[0]}
          {hb_code}
          s_bfe_u32 s{sB}, s{sI}, 0x10002
          s_and_b32 s{sS}, s{sI}, 3
          s_and_b32 s{sR}, s{sI}, 7
          s_and_b32 s{sW}, s{sWave}, 3
          v_and_b32 v{vC}, 15, v{vLane}
          v_lshrrev_b32 v{vG}, 4, v{vLane}""")
    if table:
        a(f"""s_waitcnt lgkmcnt(0)
              s_lshl_b32 s{sT[0]}, s2, 2
              {f"s_add_u32 s{sT[0]}, s{sT[0]}, s{sW}" if xorph else ""}
              {f"s_lshl_b32 s{sT[0]}, s{sT[0]}, 2" if xorph else ""}
              s_add_u32 s{sT[0]}, s{sT[0]}, 32768
              s_load_dword s98, s[{K_WS}:{K_WS+1}], s{sT[0]}
              s_waitcnt lgkmcnt(0)
              s_lshr_b32 s{sHB}, s98, 8
              s_and_b32 s{sHB}, s{sHB}, 31""")
    def touch(pairs):
        for w_, k_ in pairs:
            uid[0] += 1
            a(f"s_cmp_eq_u32 s{sWave}, {w_}\ns_cbranch_scc0 L_tc{uid[0]}")
            call(f"L_stub{k_}")
            a.label(f"L_tc{uid[0]}")
    if stublate: touch([(1, 6), (3, 1)])
    else: touch([(k, k) for k in range(8)])
    a(f"""s_cmp_lt_u32 s{sWave}, 4
          s_cbranch_scc0 L_stream""")

    a(f"s_cmp_lt_u32 s{sW}, 2\ns_cselect_b32 s{sH}, s{sHB}, s{sHA}")
    if nodup:
        a(f"s_lshl_b32 s{sT[0]}, s{sR}, 6")
    else:
        a(f"""s_and_b32 s{sT[0]}, s{sW}, 1
              s_lshl_b32 s{sT[0]}, s{sT[0]}, 9
              s_lshl_b32 s{sT[1]}, s{sR}, 6
              s_add_u32 s{sT[0]}, s{sT[0]}, s{sT[1]}""")
    a(f"""v_add_lshl_u32 v{vT[0]}, s{sT[0]}, v{vLane}, 1
          v_lshlrev_b32 v{vO0}, 17, v{vG}
          v_lshl_add_u32 v{vO0}, v{vC}, 4, v{vO0}
          s_lshl_b32 s{sOff}, s{sR}, 19
          s_lshl_b32 s{sT[0]}, s{sH}, 8
          s_add_u32 s{sOff}, s{sOff}, s{sT[0]}
          s_mov_b32 s14, 0x400000
          s_mov_b32 s15, 0x00020000
          s_mov_b32 s22, 2048
          s_mov_b32 s23, 0x00020000
          v_lshlrev_b32 v{vU[0]}, 2, v{vC}
          v_mov_b32 v{vU[1]}, 0
          ds_write_b32 v{vU[0]}, v{vU[1]} offset:{L_CNT}
          s_waitcnt lgkmcnt(0)
          s_cmp_lt_u32 s{sW}, 2
          s_cselect_b32 s12, s{K_BWQ}, s{K_AWQ}
          s_cselect_b32 s13, s{K_BWQ+1}, s{K_AWQ+1}
          s_cselect_b32 s20, s{K_BX}, s{K_AX}
          s_cselect_b32 s21, s{K_BX+1}, s{K_AX+1}""")
    epoch_load()
    first = 1 if nodup else 2
    if aearly == 2: pass
    elif h2early: a(f"s_bitcmp0_b32 s{sW}, 0\ns_cbranch_scc1 L_h_go\ns_barrier")
    elif bar0: a(f"s_cmp_lt_u32 s{sW}, {first}\ns_cbranch_scc1 L_h_go\ns_barrier")
    else: a("s_barrier")
    if nodup: a(f"s_bitcmp1_b32 s{sW}, 0\ns_cbranch_scc1 L_helper2")
    a.label("L_h_go")
    def x_loads():
        a(f"buffer_load_ushort v{vP}, v{vT[0]}, s[20:23], 0 offen {xf}")
        if nodup: a(f"buffer_load_ushort v{vP+1}, v{vT[0]}, s[20:23], 0 offen offset:1024 {xf}")
    if not xlast: x_loads()
    for k in range(16):
        r = slot(k & 1, k >> 1)
        if TQ and k == TQ and h2early: a("s_barrier")
        if TQ and k >= TQ: a(f"s_waitcnt vmcnt({TQ - 1})")
        a(f"buffer_load_dwordx4 v[{r}:{r+3}], v{vO0}, s[12:15], s{sOff} offen nt")
        if k < 15: a(f"s_add_u32 s{sOff}, s{sOff}, 0x2000")
    if xlast: x_loads()
    if h2early:
        if not TQ and aearly != 2: a("s_barrier")
        if stublate: touch([(0, 3), (2, 4)])
    elif bar0: a(f"s_cmp_lt_u32 s{sW}, {first}\ns_cbranch_scc0 L_helper2\ns_barrier")
    a("s_branch L_helper2")

    a.label("L_stream")
    if vboost: a(f"s_mov_b64 vcc, {0 if vboost == 1 else -1}")
    elif lateslots: a(f"s_lshr_b32 vcc_lo, {latemask}, s{sX}\ns_and_b32 vcc_lo, vcc_lo, 1\ns_mov_b32 vcc_hi, 0")
    if sprio: a(f"s_setprio {sprio}")
    if wb:
        assert pat == 8
        a(f"""s_lshl_b32 s{sT[0]}, s{sW}, {wb}
              v_lshlrev_b32 v{vAd}, 4, v{vLane}
              v_add_u32 v{vAd}, s{sT[0]}, v{vAd}
              v_add_u32 v{vAd+1}, 0x1000, v{vAd}""")
    elif bperm:
        if bperm == "table":
            a(f"s_waitcnt lgkmcnt(0)\ns_load_dwordx8 s[56:63], s[{K_WS}:{K_WS+1}], 49152\ns_waitcnt lgkmcnt(0)")
            sh = [f"s{56+k}" for k in range(7)]
        else: sh = [str(v) for v in bperm]
        a(f"""v_lshlrev_b32 v{vAd}, 4, v{vC}
              v_and_b32 v{vT[0]}, 1, v{vG}
              v_lshl_add_u32 v{vAd}, v{vT[0]}, {sh[0]}, v{vAd}
              v_lshrrev_b32 v{vT[0]}, 1, v{vG}
              v_lshl_add_u32 v{vAd}, v{vT[0]}, {sh[1]}, v{vAd}
              s_and_b32 s{sT[0]}, s{sW}, 1
              s_lshl_b32 s{sT[0]}, s{sT[0]}, {sh[2]}
              s_lshr_b32 s{sT[1]}, s{sW}, 1
              s_lshl_b32 s{sT[1]}, s{sT[1]}, {sh[3]}
              s_add_u32 s{sT[0]}, s{sT[0]}, s{sT[1]}
              v_add_u32 v{vAd}, s{sT[0]}, v{vAd}""")
        for b in range(3):
            a(f"s_lshl_b32 s{sT[0]}, 1, {sh[4+b]}")
            for k in range(1 << b): a(f"v_add_u32 v{vAd + (1 << b) + k}, s{sT[0]}, v{vAd + k}")
    else: addr_setup(pat)
    if table: ph_code = f"s_and_b32 s{sOff}, s98, 15\ns_lshl_b32 s{sOff}, s{sOff}, 15"
    elif phm == 0: ph_code = f"s_and_b32 s{sOff}, s{sI}, 15\ns_lshl_b32 s{sOff}, s{sOff}, 15"
    elif phm == 1: ph_code = f"s_lshl_b32 s{sOff}, s{sB}, 18"
    elif phm == 2: ph_code = f"s_lshl_b32 s{sOff}, s{sB}, {phb[0]}\ns_lshr_b32 s{sT[0]}, s{sI}, 4\ns_lshl_b32 s{sT[0]}, s{sT[0]}, {phb[1]}\ns_add_u32 s{sOff}, s{sOff}, s{sT[0]}"
    elif phm == 3: ph_code = f"s_lshl_b32 s{sOff}, s{sB}, 17"
    a(f"""s_mov_b32 s{sH}, s{sHB}
          s_lshl_b32 s{sU}, s{sB}, 5
          s_add_u32 s{sU}, s{sU}, s{sH}
          s_lshl_b32 s{sU}, s{sU}, 2
          s_add_u32 s{sU}, s{sU}, s{sS}
          s_lshl_b32 s{sU}, s{sU}, 19
          {ph_code}
          s_mov_b32 s14, 0x80000
          s_mov_b32 s15, 0x00020000""")
    if xorph:
        a(f"""s_and_b32 s{sMask}, s98, 0x3c
              s_lshl_b32 s{sMask}, s{sMask}, 13
              s_mov_b32 s{sCnt}, 0
              s_mov_b32 s{sOff}, s{sMask}
              s_and_b32 s{sT[0]}, s98, 3
              s_lshl_b32 s{sT[0]}, s{sT[0]}, 13""")
        for k in range(8 // pat): a(f"v_xor_b32 v{vAd+k}, s{sT[0]}, v{vAd+k}")
    a(f"""s_waitcnt lgkmcnt(0)
          s_add_u32 s12, s{K_BK}, s{sU}
          s_addc_u32 s13, s{K_BK+1}, 0""")
    epoch_load()
    def touch_v():
        uid[0] += 1
        a(f"""s_cmp_eq_u32 s{sW}, 0
              s_cbranch_scc0 L_tv{uid[0]}
              s_add_u32 s20, s{K_BV}, s{sU}
              s_addc_u32 s21, s{K_BV+1}, 0
              s_mov_b32 s22, 0x80000
              s_mov_b32 s23, 0x00020000
              v_mov_b32 v{vU[2]}, 0
              s_mov_b64 exec, 1
              buffer_load_dword v{vU[3]}, v{vU[2]}, s[20:23], s{sOff} offen nt
              s_mov_b64 exec, -1
              L_tv{uid[0]}:""")
    if tlb & 1: touch_v()
    issue(0, (0,) if g0free else (TF or TK), n0)
    for G in range(1, 4):
        if TF: issue(G, TF)
        elif G <= latefree:
            a(f"s_cmp_lt_u32 s{sX}, 4\ns_cbranch_scc1 L_s_f{G}")
            call(f"L_ISSV{G}")
            a(f"s_branch L_s_g{G}\nL_s_f{G}:")
            iss(0, G)
            a.label(f"L_s_g{G}")
        else: iss(0, G)
    stamp(1)
    consts()
    epoch_tag()
    if not abl_noq: lds_wait(16, 1, "L_s_qwait", 1)
    a(f"""v_lshlrev_b32 v{vT[0]}, 4, v{vC}
          ds_read_b128 v[{vQ}:{vQ+3}], v{vT[0]} offset:{L_QB}
          s_waitcnt lgkmcnt(0)""")
    stamp(2)
    for c in range(3):
        if tlb & 2 and c == 2: touch_v()
        for G in range(4):
            call(f"L_KB{G}"); iss(c + 1, G)
        a(f"v_mov_b32 v{vS+2*c}, v{vZ0}\nv_mov_b32 v{vS+2*c+1}, v{vZ1}")
    a(f"s_add_u32 s12, s{K_BV}, s{sU}\ns_addc_u32 s13, s{K_BV+1}, 0")
    call("L_KB0"); iss(4, 0); call("L_KB1")
    a("s_waitcnt vmcnt(16)")
    call("L_KB2"); iss(4, 1)
    a("s_waitcnt vmcnt(16)")
    call("L_KB3")
    a(f"v_mov_b32 v{vS+6}, v{vZ0}\nv_mov_b32 v{vS+7}, v{vZ1}")
    stamp(3)
    for k in range(0, 8, 2): round_scores(vS + k, vS + k + 1, vT[0])
    a(f"""v_max3_f32 v{vM}, v{vS}, v{vS+1}, v{vS+2}
          v_max3_f32 v{vM}, v{vM}, v{vS+3}, v{vS+4}
          v_max3_f32 v{vM}, v{vM}, v{vS+5}, v{vS+6}
          v_max_f32 v{vM}, v{vM}, v{vS+7}""")
    wave_allreduce("v_max_f32", vM, vT[0])
    iss(4, 2)
    for k in range(8): a(f"v_sub_f32 v{vS+k}, v{vS+k}, v{vM}")
    for k in range(8): a(f"v_mul_f32 v{vS+k}, s{sLog2e}, v{vS+k}")
    for k in range(8): a(f"v_exp_f32 v{vS+k}, v{vS+k}")
    a(f"v_add_f32 v{vL}, v{vS}, v{vS+1}")
    for k in range(2, 8): a(f"v_add_f32 v{vL}, v{vL}, v{vS+k}")
    if not fastend:
        for k in range(8): a(f"v_cvt_pk_bf16_f32 v{vS+k}, v{vS+k}, 0")
    wave_allreduce("v_add_f32", vL, vT[0])
    if fastend:
        a(f"v_rcp_f32 v{vT[0]}, v{vL}")
        for k in range(8): a(f"v_mul_f32 v{vS+k}, v{vS+k}, v{vT[0]}")
        for k in range(8): a(f"v_cvt_pk_bf16_f32 v{vS+k}, v{vS+k}, 0")
    a(f"""s_add_u32 s{sPub}, s{sH}, 32
          s_lshl_b32 s{sPub}, s{sPub}, 1
          s_add_u32 s{sPub}, s{sPub}, s{sB}
          s_lshl_b32 s{sPub}, s{sPub}, 2
          s_add_u32 s{sPub}, s{sPub}, s{sS}
          s_lshl_b32 s{sPubO}, s{sPub}, 11
          s_add_u32 s{sPubO}, s{sPubO}, {WS_PB - (256 << 11)}
          s_lshl_b32 s{sPub}, s{sPub}, 2
          s_add_u32 s{sPub}, s{sPub}, s{sW}
          s_mul_i32 s{sPub}, s{sPub}, {REC}
          s_add_u32 s{sPub}, s{sPub}, {WS_PART}
          s_mov_b32 s{sShift}, 6""")
    call("L_PUBML")
    iss(4, 3)
    for k in range(8): a(f"v_mov_b32 v{vAcc+k}, 0")
    stamp(4)
    a(f"""s_lshl_b32 s{sT[0]}, s{sW}, 4
          s_add_u32 s{sPubO}, s{sPubO}, s{sT[0]}
          v_lshrrev_b32 v{vU[3]}, 1, v{vG}
          v_lshlrev_b32 v{vU[3]}, 4, v{vU[3]}
          v_add_lshl_u32 v{vU[3]}, v{vU[3]}, v{vC}, 6""")
    if vboost: a(f"s_mov_b64 vcc, {-1 if vboost == 1 else 0}")
    issued, done = 4, 0
    def ws(k):
        if k % 2 == 0: a(f"v_mov_b32 v{vP + (k % 4) // 2}, v{vS + k // 2}")
        if k == preg:
            assert preg + 2 <= midg
            a(f"""v_not_b32 v{vt+1}, s{sTag}
                  v_not_b32 v{vt+3}, s{sTag+1}
                  s_mul_i32 s{sT[0]}, s{sW}, 496
                  v_lshl_add_u32 v{vT[0]}, v{vLane}, 4, s{sT[0]}
                  s_mov_b32 exec_hi, 0
                  buffer_store_dwordx4 v[{vt}:{vt+3}], v{vT[0]}, s[16:19], s{sPubO} offen {stf}
                  s_mov_b32 exec_hi, -1""")
        if k == midg: a("s_barrier")
        if k == 15:
            call("L_WS3L"); return
        a(f"s_waitcnt vmcnt({8 * (issued - k - 1)})")
        call(f"L_WS{k % 4}")
    while issued < 16:
        fast = issued >= 16 - (rmax if rank else nfast)
        want = (endlag if fast else lag)
        n = 0
        while done <= issued - 4 or (done < issued - want + 1 and n < 2 and done < issued - 1):
            ws(done); done += 1; n += 1
        left = 16 - issued
        if rank and left <= rmax:
            if left == rmax:
                a(f"""v_mov_b32 v{vU[0]}, {L_CNT + 20}
                      ds_read_b32 v{vU[1]}, v{vU[0]}
                      s_waitcnt lgkmcnt(0)
                      v_readfirstlane_b32 s{sHH}, v{vU[1]}
                      s_cmp_eq_u32 s{sHH}, 0
                      s_cselect_b32 s{sHH}, 19, s{sHH}""")
            a(f"s_cmp_ge_u32 s{sHH}, {16 + left}\ns_cbranch_scc1 L_s_v{left}")
            call(f"L_ISSK{issued % 4}")
            a(f"s_branch L_s_w{left}\nL_s_v{left}:")
            call(f"L_ISSV{issued % 4}")
            a.label(f"L_s_w{left}")
        else: call(f"L_ISS{'V' if (fast and two) else 'K'}{issued % 4}")
        issued += 1
        if ya == "flag" and issued == yag:
            a(f"v_mov_b32 v{vU[0]}, {L_CNT + 24}\nv_mov_b32 v{vU[1]}, 1\nds_write_b32 v{vU[0]}, v{vU[1]}")
    if early_bar: a("s_barrier")
    while done < 16:
        ws(done); done += 1
    stamp(5)
    if fastend:
        for e in range(4): a(f"v_permlane32_swap_b32 v{vAcc+e}, v{vAcc+e+4}")
        for e in range(4): a(f"v_add_f32 v{vAcc+e}, v{vAcc+e}, v{vAcc+e+4}")
        for e in range(2): a(f"v_permlane16_swap_b32 v{vAcc+e}, v{vAcc+e+2}")
        for e in range(2): a(f"v_add_f32 v{vAcc+e}, v{vAcc+e}, v{vAcc+e+2}")
        a(f"""v_cvt_pk_bf16_f32 v{vG4}, v{vAcc}, v{vAcc+1}
              v_cvt_pk_bf16_f32 v{vG4+2}, v{vAcc}, v{vAcc+1}
              v_permlane16_swap_b32 v{vG4}, v{vG4+2}
              s_mov_b32 exec_lo, 0xffff
              s_mov_b32 exec_hi, 0xffff
              buffer_store_dwordx4 v[{vG4}:{vG4+3}], v{vU[3]}, s[16:19], s{sPubO} offen {stf}
              s_mov_b64 exec, -1""")
    else:
        call("L_RED8")
        call("L_PUBPART")
    stamp(6)
    if not early_bar: a("s_barrier")
    if ya == "s0" and not abl_noA:
        a(f"""s_cmp_eq_u32 s{sW}, 0
              s_cbranch_scc0 L_exit
              s_mov_b32 s{sBr}, 0""")
        call("L_PUBY")
    a("s_branch L_exit")

    for nm, tp in ((("K", TK), ("V", TV)) if two else (("K", TK),)):
        for G in range(4):
            a.label(f"L_ISS{nm}{G}")
            issue(G, tp); ret()

    for G in range(4):
        a.label(f"L_KB{G}")
        for s in range(8): a(f"v_mov_b32 v{vt+s}, 0")
        for j in range(4):
            for s in range(8): a(f"v_dot2c_f32_bf16 v{vt+s}, v{slot(G, s)+j}, v{vQ+j}")
        for k in range(4):
            a(f"v_add_f32_dpp v{vt+k}, v{vt+k}, v{vt+k} row_mirror row_mask:0xf bank_mask:0x3")
        for k in range(4):
            a(f"v_add_f32_dpp v{vt+k}, v{vt+k+4}, v{vt+k+4} row_mirror row_mask:0xf bank_mask:0xc")
        for k in range(2):
            a(f"v_add_f32_dpp v{vt+k}, v{vt+k}, v{vt+k} row_half_mirror row_mask:0xf bank_mask:0x5")
        for k in range(2):
            a(f"v_add_f32_dpp v{vt+k}, v{vt+k+2}, v{vt+k+2} row_half_mirror row_mask:0xf bank_mask:0xa")
        for k in range(2):
            a(f"v_add_f32_dpp v{vt+k}, v{vt+k}, v{vt+k} quad_perm:[2,3,0,1] row_mask:0xf bank_mask:0xf")
        a(f"v_cndmask_b32 v{vt}, v{vt}, v{vt+1}, s[{sMc1}:{sMc1+1}]")
        if G % 2 == 0:
            a(f"v_add_f32_dpp v{vZA}, v{vt}, v{vt} quad_perm:[1,0,3,2] row_mask:0xf bank_mask:0xf")
        else:
            a(f"v_add_f32_dpp v{vt}, v{vt}, v{vt} quad_perm:[1,0,3,2] row_mask:0xf bank_mask:0xf")
            a(f"v_cndmask_b32 v{vZ0 + G // 2}, v{vZA}, v{vt}, s[{sMc0}:{sMc0+1}]")
        ret()

    for G, last in ((0, False), (1, False), (2, False), (3, False), (3, True)):
        a.label(f"L_WS{G}" + ("L" if last else ""))
        a("s_nop 1")
        for s in range(8):
            r = slot(G, s)
            a(f"v_mov_b32_dpp v{vLo}, v{vP + G // 2} row_newbcast:{2*s + (G & 1)} row_mask:0xf bank_mask:0xf")
            a(f"v_lshlrev_b32 v{vHi}, 16, v{vLo}")
            if last: a(f"s_waitcnt vmcnt({7-s})")
            for j in range(4):
                a(f"v_dot2c_f32_bf16 v{vAcc+2*j}, v{r+j}, v{vLo}")
                a(f"v_dot2c_f32_bf16 v{vAcc+2*j+1}, v{r+j}, v{vHi}")
        a("s_nop 1")
        ret()

    a.label("L_RED8")
    a("s_nop 1")
    for e in range(4): a(f"v_permlane32_swap_b32 v{vAcc+e}, v{vAcc+e+4}")
    for e in range(4): a(f"v_add_f32 v{vAcc+e}, v{vAcc+e}, v{vAcc+e+4}")
    for e in range(2): a(f"v_permlane16_swap_b32 v{vAcc+e}, v{vAcc+e+2}")
    for e in range(2): a(f"v_add_f32 v{vAcc+e}, v{vAcc+e}, v{vAcc+e+2}")
    ret()

    a.label("L_PUBML")
    a(f"""v_mov_b32 v{vG4}, v{vM}
          v_mov_b32 v{vG4+1}, s{sTag}
          v_mov_b32 v{vG4+2}, v{vL}
          v_mov_b32 v{vG4+3}, s{sTag+1}
          v_lshlrev_b32 v{vT[0]}, 4, v{vLane}
          s_mov_b64 exec, 0xff
          buffer_store_dwordx4 v[{vG4}:{vG4+3}], v{vT[0]}, s[16:19], s{sPub} offen offset:512 {stf}
          s_mov_b64 exec, -1
          s_nop 0""")
    ret()

    a.label("L_PUBPART")
    a(f"""v_rcp_f32 v{vT[0]}, v{vL}
          v_lshrrev_b32 v{vT[1]}, 1, v{vG}
          v_lshlrev_b32 v{vT[1]}, 4, v{vT[1]}
          v_add_lshl_u32 v{vT[1]}, v{vT[1]}, v{vC}, s{sShift}
          v_mul_f32 v{vAcc}, v{vAcc}, v{vT[0]}
          v_mul_f32 v{vAcc+1}, v{vAcc+1}, v{vT[0]}
          v_cvt_pk_bf16_f32 v{vG4}, v{vAcc}, v{vAcc+1}
          v_mov_b32 v{vG4+1}, s{sTag}
          v_mov_b32 v{vG4+2}, v{vG4}
          v_mov_b32 v{vG4+3}, s{sTag+1}
          v_permlane16_swap_b32 v{vG4}, v{vG4+2}
          s_mov_b32 exec_lo, 0xffff
          s_mov_b32 exec_hi, 0xffff
          buffer_store_dwordx4 v[{vG4}:{vG4+3}], v{vT[1]}, s[16:19], s{sPubO} offen {stf}
          s_mov_b64 exec, -1
          s_nop 0""")
    ret()

    a.label("L_PUBY")
    a(f"""s_lshl_b32 s{sT[0]}, s{sBr}, 11
          v_lshl_add_u32 v{vT[0]}, v{vLane}, 3, s{sT[0]}""")
    for k in range(4): a(f"ds_read_b64 v[{vt+2*k}:{vt+2*k+1}], v{vT[0]} offset:{L_YR + 512*k}")
    a(f"""s_lshl_b32 s{sT[0]}, s{sBr}, 3
          s_add_u32 s{sT[1]}, s{sT[0]}, s{sR}
          s_lshl_b32 s{sT[1]}, s{sT[1]}, 5
          s_add_u32 s{sT[1]}, s{sT[1]}, s{sHA}
          s_lshl_b32 s{sT[1]}, s{sT[1]}, 10
          s_add_u32 s{sT[1]}, s{sT[1]}, {WS_Y}
          v_lshlrev_b32 v{vT[1]}, 4, v{vLane}
          v_mov_b32 v{vG4+1}, s{sTag}
          v_mov_b32 v{vG4+3}, s{sTag+1}
          s_waitcnt lgkmcnt(0)
          v_add_f32 v{vG4}, v{vt}, v{vt+2}
          v_add_f32 v{vG4+2}, v{vt+1}, v{vt+3}
          v_add_f32 v{vt+4}, v{vt+4}, v{vt+6}
          v_add_f32 v{vt+5}, v{vt+5}, v{vt+7}
          v_add_f32 v{vG4}, v{vG4}, v{vt+4}
          v_add_f32 v{vG4+2}, v{vG4+2}, v{vt+5}
          buffer_store_dwordx4 v[{vG4}:{vG4+3}], v{vT[1]}, s[16:19], s{sT[1]} offen {yst}
          s_nop 0""")
    ret()

    a.label("L_QC")
    a(f"""v_lshlrev_b32 v{vO0}, 4, v{vLane}
          v_add_u32 v{vO1}, 0x1000, v{vO0}
          s_add_u32 s{sT[1]}, s{sT[1]}, {WS_QP}
          s_mov_b32 s{sSpin}, {SPIN}
          {"" if bhint else f"s_cmp_eq_u32 s{sBr}, 0"}
          {"" if bhint else "s_cbranch_scc0 L_QC_poll"}
          v_and_b32 v{vT[0]}, 7, v{vLane}
          v_lshlrev_b32 v{vT[0]}, 10, v{vT[0]}""")
    a.label("L_QC_hint")
    if narrow: a("s_mov_b64 exec, 0xff")
    a(f"""buffer_load_dwordx4 v[{vRing}:{vRing+3}], v{vT[0]}, s[16:19], s{sT[1]} offen offset:1008 {hf or ldf}
          s_waitcnt vmcnt(0)""")
    tagcheck([vRing], "L_QC_hint", "L_QC_hok", True, narrow, 24)
    a(f"s_mov_b32 s{sSpin}, {SPIN}")
    a.label("L_QC_poll")
    for p in range(8):
        r = vRing + 4 * p
        if qser and p >= qser: a(f"s_waitcnt vmcnt({qser - 1})")
        a(f"buffer_load_dwordx4 v[{r}:{r+3}], v{vO0 + (p >> 2)}, s[16:19], s{sT[1]} offen offset:{(p & 3) * 1024} {ldf}")
    a("s_waitcnt vmcnt(0)")
    tagcheck([vRing + 4 * p for p in range(8)], "L_QC_poll", "L_QC_ok", patience=24)
    for p in range(1, 8):
        a(f"v_add_f32 v{vRing}, v{vRing}, v{vRing+4*p}\nv_add_f32 v{vRing+2}, v{vRing+2}, v{vRing+4*p+2}")
    a(f"""v_cvt_pk_bf16_f32 v{vT[0]}, v{vRing}, v{vRing+2}
          v_lshl_add_u32 v{vT[1]}, v{vC}, 2, v{vG}
          v_lshlrev_b32 v{vT[1]}, 2, v{vT[1]}
          v_add_u32 v{vT[1]}, s{sT[2]}, v{vT[1]}
          ds_write_b32 v{vT[1]}, v{vT[0]}""")
    ret()

    def kva_block():
        a(f"""s_lshr_b32 s{sT[0]}, s{sI}, 4
              s_lshl_b32 s{sT[0]}, s{sT[0]}, 3
              s_add_u32 s{sT[0]}, s{sT[0]}, s{sX}
              s_lshl_b32 s{sOff}, s{sT[0]}, 21
              s_and_b32 s{sT[0]}, s{sI}, 15
              s_lshl_b32 s{sT[0]}, s{sT[0]}, 15
              s_add_u32 s{sOff}, s{sOff}, s{sT[0]}
              s_add_u32 s{sOff}, s{sOff}, {6144*256}
              s_mov_b32 s14, 0x2000000""")
        addr_setup(pata, wxa)
        a(f"""s_mov_b32 s12, s{K_AK}
              s_mov_b32 s13, s{K_AK+1}
              s_mov_b32 s20, s{K_AV}
              s_mov_b32 s21, s{K_AV+1}
              s_mov_b32 s22, 0x2000000""")
        if kvdelay:
            a(f"s_cmp_eq_u32 s{sW}, 1\ns_cbranch_scc0 L_h_A3")
            qb_consume()
            a.label("L_h_A3")
            lds_wait(16, 1, "L_h_kvw", 2)
        order = [(G, s) for s in range(8) for G in (2, 3)] if kvi else [(G, s) for G in (2, 3) for s in range(8)]
        for G, s in ([] if abl_Akv else order):
            r = slot(G, s)
            if TH: a(f"s_waitcnt vmcnt({TH - 1})")
            va, imm = addr(s, pata)
            a(f"buffer_load_dwordx4 v[{r}:{r+3}], v{va}, s[{12 if G == 2 else 20}:{15 if G == 2 else 23}], s{sOff} offen offset:{imm} nt")
    a.label("L_helper2")
    if aearly: kva_block()
    if aearly == 2: a("s_barrier")
    consts()
    a(f"""s_mov_b32 s{sSel0}, 0x05040100
          s_mov_b32 s{sSel1}, 0x07060302
          v_lshlrev_b32 v{vO0}, 4, v{vLane}""")
    if tlb & 4:
        a(f"""s_cmp_eq_u32 s{sW}, 3
              s_cbranch_scc0 L_h_notlb
              v_mov_b32 v{vU[2]}, 0
              s_lshl_b32 s{sT[0]}, s{sHA}, 17
              s_mov_b32 s22, 0x400000
              s_mov_b64 exec, 1
              s_mov_b32 s20, s{K_AWO}
              s_mov_b32 s21, s{K_AWO+1}
              buffer_load_dword v{vU[3]}, v{vU[2]}, s[20:23], s{sT[0]} offen nt
              s_mov_b32 s20, s{K_BWO}
              s_mov_b32 s21, s{K_BWO+1}
              buffer_load_dword v{vU[3]}, v{vU[2]}, s[20:23], s{sT[0]} offen nt
              s_mov_b32 s{sT[0]}, {WS_PB - 4096}
              buffer_load_dword v{vU[3]}, v{vU[2]}, s[16:19], s{sT[0]} offen nt
              s_mov_b32 s20, s{K_OUT}
              s_mov_b32 s21, s{K_OUT+1}
              s_mov_b32 s22, 4096
              buffer_load_dword v{vU[3]}, v{vU[2]}, s[20:23], 0 offen nt
              s_mov_b64 exec, -1
              L_h_notlb:""")
    epoch_tag()
    if nodup: a(f"s_bitcmp1_b32 s{sW}, 0\ns_cbranch_scc1 L_h_qdone\ns_mov_b32 s{sHH}, 0")
    else: a(f"s_and_b32 s{sHH}, s{sW}, 1")
    a(f"s_waitcnt vmcnt({16 if aearly else 0})")
    stamp(1)
    a.label("L_h_qloop")
    for k in range(8): a(f"v_mov_b32 v{vAcc+k}, 0")
    call("L_WS0"); call("L_WS1"); call("L_RED8")
    a(f"""s_lshr_b32 s{sT[0]}, s{sW}, 1
          s_xor_b32 s{sT[0]}, s{sT[0]}, 1
          s_lshl_b32 s{sT[0]}, s{sT[0]}, 5
          s_add_u32 s{sT[0]}, s{sT[0]}, s{sH}
          s_lshl_b32 s{sT[0]}, s{sT[0]}, 1
          s_add_u32 s{sT[0]}, s{sT[0]}, s{sHH}
          s_lshl_b32 s{sT[0]}, s{sT[0]}, 3
          s_add_u32 s{sT[0]}, s{sT[0]}, s{sR}
          s_lshl_b32 s{sT[0]}, s{sT[0]}, 10
          s_add_u32 s{sT[0]}, s{sT[0]}, {WS_QP}
          v_mov_b32 v{vG4}, v{vAcc}
          v_mov_b32 v{vG4+1}, s{sTag}
          v_mov_b32 v{vG4+2}, v{vAcc+1}
          v_mov_b32 v{vG4+3}, s{sTag+1}
          """)
    if abl_Ast: a(f"s_cmp_eq_u32 s{sW}, 0\ns_cbranch_scc0 L_h_nost")
    a(f"buffer_store_dwordx4 v[{vG4}:{vG4+3}], v{vO0}, s[16:19], s{sT[0]} offen {stf}")
    if abl_dbl:
        a(f"s_add_u32 s{sT[0]}, s{sT[0]}, {8 << 20}\nbuffer_store_dwordx4 v[{vG4}:{vG4+3}], v{vO0}, s[16:19], s{sT[0]} offen {stf}")
    a.label("L_h_nost")
    if nodup:
        a(f"""v_mov_b32 v{vP}, v{vP+1}
              s_add_u32 s{sHH}, s{sHH}, 1
              s_cmp_lt_u32 s{sHH}, 2
              s_cbranch_scc1 L_h_qloop""")
    a.label("L_h_qdone")
    stamp(2)
    def qb_consume():
        a(f"""s_add_u32 s{sT[1]}, s{sHB}, 32
              s_lshl_b32 s{sT[1]}, s{sT[1]}, 1
              s_add_u32 s{sT[1]}, s{sT[1]}, s{sB}
              s_lshl_b32 s{sT[1]}, s{sT[1]}, 13
              s_mov_b32 s{sT[2]}, {L_QB}
              s_mov_b32 s{sBr}, 1""")
        call("L_QC")
        a(f"""v_mov_b32 v{vU[0]}, {L_CNT + 16}
              v_mov_b32 v{vU[1]}, 1
              ds_write_b32 v{vU[0]}, v{vU[1]}""")
    if not nodup or abl_noA:
        a(f"s_cmp_eq_u32 s{sW}, 0\ns_cbranch_scc0 L_h_A")
        qb_consume()
    a.label("L_h_A")
    if not nodup: stamp(3)
    if abl_noA: a(f"s_mov_b32 s{sBr}, 1\ns_branch L_FIN")
    if not aearly: kva_block()
    if late2 and NSTUB > 8:
        for k in range(8, NSTUB): a(f"s_cmp_eq_u32 s{sW}, {(k - 8 + 2) % 4}\ns_cbranch_scc1 L_stub{k}")
        a.label("L_back1")
    if nodup and not kvdelay:
        a(f"s_cmp_eq_u32 s{sW}, 1\ns_cbranch_scc0 L_h_A2")
        qb_consume()
        a.label("L_h_A2")
        stamp(3)
    a(f"""s_mov_b32 s{sBr}, 0
          s_lshl_b32 s{sU}, s{sX}, 2
          s_add_u32 s{sU}, s{sU}, s{sW}
          s_lshl_b32 s{sU}, s{sU}, 1
          s_lshr_b32 s{sT[0]}, s{sI}, 4
          s_add_u32 s{sU}, s{sU}, s{sT[0]}
          s_lshl_b32 s{sT[1]}, s{sU}, 13
          s_lshl_b32 s{sT[2]}, s{sW}, 8
          s_add_u32 s{sT[2]}, s{sT[2]}, {L_QA}""")
    if not abl_Apoll: call("L_QC")
    else: a("s_waitcnt vmcnt(0)")
    helper_sync(0, "L_hs0")
    a(f"s_mov_b32 s{sHH}, 0")
    if abl_Acomp: a("s_branch L_A_done")
    a.label("L_A_loop")
    a(f"""s_lshl_b32 s{sT[0]}, s{sHH}, 8
          v_lshlrev_b32 v{vT[0]}, 4, v{vC}
          v_add_u32 v{vT[0]}, s{sT[0]}, v{vT[0]}
          ds_read_b128 v[{vQ}:{vQ+3}], v{vT[0]} offset:{L_QA}
          s_waitcnt lgkmcnt(0)""")
    call("L_KB2")
    a(f"v_mov_b32 v{vS+1}, v{vZA}\nv_mov_b32 v{vS}, v{vZA}")
    round_scores(vS, vS + 1, vT[0])
    a(f"v_mov_b32 v{vM}, v{vS}")
    wave_allreduce("v_max_f32", vM, vT[0])
    a(f"""v_sub_f32 v{vS}, v{vS}, v{vM}
          v_mul_f32 v{vS}, s{sLog2e}, v{vS}
          v_exp_f32 v{vS}, v{vS}
          v_mul_f32 v{vL}, 0.5, v{vS}
          v_cvt_pk_bf16_f32 v{vP+1}, v{vS}, 0""")
    wave_allreduce("v_add_f32", vL, vT[0])
    for k in range(8): a(f"v_mov_b32 v{vAcc+k}, 0")
    call("L_WS3L"); call("L_RED8")
    a(f"""s_lshl_b32 s{sT[0]}, s{sHH}, 2
          s_add_u32 s{sT[0]}, s{sT[0]}, s{sW}
          s_lshl_b32 s{sT[1]}, s{sT[0]}, 9
          s_lshl_b32 s{sT[0]}, s{sT[0]}, 3
          v_lshlrev_b32 v{vT[0]}, 3, v{vLane}
          v_add_u32 v{vT[0]}, s{sT[1]}, v{vT[0]}
          v_mov_b32 v{vT[1]}, s{sT[0]}
          ds_write_b64 v{vT[0]}, v[{vAcc}:{vAcc+1}] offset:{L_OA}
          s_mov_b64 exec, 1
          ds_write_b64 v{vT[1]}, v[{vM}:{vM+1}] offset:{L_MLA}
          s_mov_b64 exec, -1
          s_add_u32 s{sHH}, s{sHH}, 1
          s_cmp_lt_u32 s{sHH}, 4
          s_cbranch_scc1 L_A_loop""")
    a.label("L_A_done")
    helper_sync(4, "L_hs1")
    a(f"""s_lshl_b32 s{sT[0]}, s{sW}, 5
          v_mov_b32 v{vT[1]}, s{sT[0]}
          s_lshl_b32 s{sT[1]}, s{sW}, 11
          v_lshlrev_b32 v{vT[0]}, 3, v{vLane}
          v_add_u32 v{vT[0]}, s{sT[1]}, v{vT[0]}
          ds_read_b128 v[{R0}:{R0+3}], v{vT[1]} offset:{L_MLA}
          ds_read_b128 v[{R0+4}:{R0+7}], v{vT[1]} offset:{L_MLA+16}""")
    for k in range(4): a(f"ds_read_b64 v[{R0+8+2*k}:{R0+9+2*k}], v{vT[0]} offset:{L_OA + 512*k}")
    a(f"""s_waitcnt lgkmcnt(0)
          v_max3_f32 v{vM}, v{R0}, v{R0+2}, v{R0+4}
          v_max_f32 v{vM}, v{vM}, v{R0+6}""")
    for k in range(4): a(f"v_sub_f32 v{R0+2*k}, v{R0+2*k}, v{vM}")
    for k in range(4): a(f"v_mul_f32 v{R0+2*k}, s{sLog2e}, v{R0+2*k}")
    for k in range(4): a(f"v_exp_f32 v{R0+2*k}, v{R0+2*k}")
    a(f"""v_mul_f32 v{vL}, v{R0}, v{R0+1}
          v_mul_f32 v{vAcc}, v{R0}, v{R0+8}
          v_mul_f32 v{vAcc+1}, v{R0}, v{R0+9}""")
    for k in range(1, 4):
        a(f"""v_fmac_f32 v{vL}, v{R0+2*k}, v{R0+2*k+1}
              v_fmac_f32 v{vAcc}, v{R0+2*k}, v{R0+8+2*k}
              v_fmac_f32 v{vAcc+1}, v{R0+2*k}, v{R0+9+2*k}""")
    a(f"""s_lshl_b32 s{sPub}, s{sU}, 4
          s_and_b32 s{sT[0]}, s{sI}, 15
          s_add_u32 s{sPub}, s{sPub}, s{sT[0]}
          s_mul_i32 s{sPub}, s{sPub}, {REC}
          s_add_u32 s{sPub}, s{sPub}, {WS_PART}
          s_mov_b32 s{sPubO}, s{sPub}
          s_mov_b32 s{sShift}, 4""")
    if not abl_Ast: call("L_PUBPART"); call("L_PUBML")
    stamp(4)

    a.label("L_FIN")
    a(f"""s_cmp_eq_u32 s{sBr}, 0
          s_cselect_b32 s12, s{K_AWO}, s{K_BWO}
          s_cselect_b32 s13, s{K_AWO+1}, s{K_BWO+1}
          s_cselect_b32 s{sH}, s{sHA}, s{sHB}
          s_mov_b32 s14, 0x400000
          v_lshlrev_b32 v{vO0}, 13, v{vG}
          v_lshl_add_u32 v{vO0}, v{vC}, 3, v{vO0}
          v_add_u32 v{vO1}, 0x1000, v{vO0}
          s_lshl_b32 s{sOff}, s{sH}, 2
          s_add_u32 s{sOff}, s{sOff}, s{sW}
          s_lshl_b32 s{sOff}, s{sOff}, 15
          s_lshl_b32 s{sT[0]}, s{sR}, 7
          s_add_u32 s{sOff}, s{sOff}, s{sT[0]}""")
    PB = vRing
    vA0 = vLo
    a(f"""s_lshl_b32 s{sU}, s{sBr}, 5
          s_add_u32 s{sU}, s{sU}, s{sH}
          s_mul_i32 s{sT[1]}, s{sU}, {32 * REC}
          s_add_u32 s{sT[1]}, s{sT[1]}, {WS_PART}
          v_and_b32 v{vT[2]}, 31, v{vLane}
          v_mul_u32_u24 v{vT[3]}, {REC}, v{vT[2]}
          s_mov_b32 s{sSpin}, {SPIN}
          s_cmp_eq_u32 s{sBr}, 0
          s_cbranch_scc0 L_F_addrB
          s_lshl_b32 s{sT[0]}, s{sW}, 6
          s_add_u32 s{sP[0]}, s{sT[1]}, s{sT[0]}
          s_add_u32 s{sP[1]}, s{sP[0]}, 256
          s_add_u32 s{sP[2]}, s{sP[0]}, {16 * REC}
          s_add_u32 s{sP[3]}, s{sP[0]}, {16 * REC + 256}
          v_mul_u32_u24 v{vA0}, {REC}, v{vC}
          v_lshl_add_u32 v{vA0}, v{vG}, 4, v{vA0}""")
    if abl_Apoll: a(f"s_mov_b32 s{sBr}, 1\ns_branch L_FIN")
    a("s_branch L_F_ml0")
    a.label("L_F_addrB")
    a(f"""s_lshl_b32 s{sP[0]}, s{sH}, 14
          s_lshl_b32 s{sT[0]}, s{sW}, 8
          s_add_u32 s{sP[0]}, s{sP[0]}, s{sT[0]}
          s_add_u32 s{sP[0]}, s{sP[0]}, {WS_PB}
          s_add_u32 s{sP[1]}, s{sP[0]}, 1024
          s_add_u32 s{sP[2]}, s{sP[0]}, 8192
          s_add_u32 s{sP[3]}, s{sP[0]}, 9216
          v_lshrrev_b32 v{vA0}, 2, v{vC}
          v_lshlrev_b32 v{vA0}, 11, v{vA0}
          v_and_b32 v{vT[0]}, 3, v{vC}
          v_lshl_add_u32 v{vA0}, v{vT[0]}, 4, v{vA0}
          v_lshl_add_u32 v{vA0}, v{vG}, 6, v{vA0}
          s_waitcnt lgkmcnt(0)""")
    stamp(6)
    a("s_barrier")
    if ya == "mid" and not abl_noA:
        a(f"""s_cmp_eq_u32 s{sW}, 3
              s_cbranch_scc0 L_F_noya
              s_mov_b32 s{sT[3]}, s{sT[1]}
              s_mov_b32 s{sBr}, 0""")
        call("L_PUBY")
        a(f"s_mov_b32 s{sBr}, 1\ns_mov_b32 s{sT[1]}, s{sT[3]}\nL_F_noya:")
    if rank:
        a(f"s_cmp_eq_u32 s{sW}, 0\ns_cbranch_scc0 L_F_ml0")
        if rank == "m":
            a(f"""s_lshl_b32 s{sT[0]}, s{sX}, 12
                  s_add_u32 s{sT[0]}, s{sT[0]}, {WS_MK}
                  v_and_b32 v{vU[0]}, 31, v{vLane}
                  v_lshlrev_b32 v{vU[0]}, 7, v{vU[0]}
                  v_add_u32 v{vU[1]}, {WS_GM}, v{vU[0]}
                  v_add_u32 v{vU[0]}, s{sT[0]}, v{vU[0]}
                  s_lshl_b32 s{sT[3]}, s{sI}, 7
                  s_add_u32 s{sT[3]}, s{sT[3]}, s{sT[0]}
                  v_mov_b32 v{vG4+2}, s{sTag}
                  v_mov_b32 v{vG4+3}, s{sTag+1}""")
            if gw: a(f"s_mov_b32 exec_lo, 0\nv_mov_b32 v{vU[0]}, v{vU[1]}\ns_mov_b32 exec_lo, -1")
            else: a("s_mov_b32 exec_hi, 0")
            if not gdelay: a(f"buffer_load_dword v{vG4}, v{vU[0]}, s[16:19], 0 offen {gld}")
            a(f"""v_lshlrev_b32 v{vU[1]}, 3, v{vLane}
                  s_mov_b64 exec, 0xffff
                  buffer_store_dwordx2 v[{vG4+2}:{vG4+3}], v{vU[1]}, s[16:19], s{sT[3]} offen""")
            if gw or gx:
                a(f"""s_cmp_eq_u32 s{sR}, 5
                      s_cbranch_scc0 L_F_nogm
                      s_lshl_b32 s{sT[3]}, s{sHA}, 7
                      s_add_u32 s{sT[3]}, s{sT[3]}, {WS_GM}
                      buffer_store_dwordx2 v[{vG4+2}:{vG4+3}], v{vU[1]}, s[16:19], s{sT[3]} offen sc1
                      L_F_nogm:""")
            a("s_mov_b64 exec, -1")
            if gdelay: a(f"s_sleep {gdelay}\nbuffer_load_dword v{vG4}, v{vU[0]}, s[16:19], 0 offen {gld}")
            a(f"""s_waitcnt vmcnt(0)
                  v_cmp_eq_u32 vcc, s{sTag}, v{vG4}
                  s_nop 1
                  s_bcnt1_i32_b32 s{sT[0]}, vcc_lo""")
            if gw:
                a(f"s_bcnt1_i32_b32 s{sT[3]}, vcc_hi")
                if diag: a(f"s_mov_b32 s56, s{sT[3]}\ns_mov_b32 s57, 0")
                a(f"""s_mul_i32 s{sT[3]}, s{sT[3]}, {gw}
                      s_mul_i32 s{sT[0]}, s{sT[0]}, {4 - gw}
                      s_add_u32 s{sT[0]}, s{sT[0]}, s{sT[3]}
                      s_lshl_b32 s{sT[0]}, s{sT[0]}, 1
                      s_add_u32 s{sT[0]}, s{sT[0]}, {gbias}
                      s_min_u32 s{sT[0]}, s{sT[0]}, 255""")
            else:
                if gx:
                    a(f"""s_lshl_b32 s98, s{sX}, 7
                          s_add_u32 s98, s98, {WS_XL}
                          s_sub_u32 s{sT[3]}, s{sT[0]}, {glo}
                          s_cmp_le_u32 s{sT[3]}, {ghi - glo}
                          s_cbranch_scc0 L_F_gx1
                          {"s_branch L_F_gx1" if gnoread else ""}
                          v_lshlrev_b32 v{vU[0]}, 7, v{vLane}
                          s_mov_b32 s{sT[3]}, {WS_GM}
                          s_mov_b32 exec_hi, 0
                          buffer_load_dword v{vG4}, v{vU[0]}, s[16:19], s{sT[3]} offen sc1
                          s_mov_b32 exec_hi, -1
                          s_waitcnt vmcnt(0)
                          v_cmp_eq_u32 vcc, s{sTag}, v{vG4}
                          s_nop 1
                          s_bcnt1_i32_b32 s{sT[3]}, vcc_lo
                          v_mov_b32 v{vG4+3}, s{sT[3]}
                          s_mov_b64 exec, 0xffff
                          buffer_store_dwordx2 v[{vG4+2}:{vG4+3}], v{vU[1]}, s[16:19], s98 offen
                          s_mov_b64 exec, -1
                          L_F_gx1:
                          s_mov_b32 s99, {gpoll}
                          v_mov_b32 v{vU[0]}, 0
                          L_F_gx2:
                          s_mov_b64 exec, 1
                          buffer_load_dwordx2 v[{vG4}:{vG4+1}], v{vU[0]}, s[16:19], s98 offen nt
                          s_mov_b64 exec, -1
                          s_waitcnt vmcnt(0)
                          v_readfirstlane_b32 s{sT[3]}, v{vG4}
                          v_readfirstlane_b32 s100, v{vG4+1}
                          s_cmp_eq_u32 s{sT[3]}, s{sTag}
                          s_cbranch_scc1 L_F_gx3
                          s_mov_b32 s100, 20
                          s_sleep 16
                          s_sub_u32 s99, s99, 1
                          s_cbranch_scc0 L_F_gx2
                          L_F_gx3:
                          s_min_u32 s100, s100, 31""")
                    if diag: a(f"s_mov_b32 s56, s100\ns_mov_b32 s57, 0")
                    a(f"""s_and_b32 s100, s100, 28
                          s_lshr_b32 s100, {xtab}, s100
                          s_and_b32 s100, s100, 15""")
                a(f"s_lshl_b32 s{sT[0]}, s{sT[0]}, 3\ns_min_u32 s{sT[0]}, s{sT[0]}, 255")
        elif rank == "s":
            a(f"""s_mov_b32 s{sT[0]}, 1
                  s_atomic_add s{sT[0]}, s[{K_DBG}:{K_DBG+1}], 0 glc
                  s_waitcnt lgkmcnt(0)""")
        else:
            srd(20, K_DBG, 256)
            a(f"""v_mov_b32 v{vU[0]}, 0
                  v_mov_b32 v{vU[1]}, 1
                  s_mov_b64 exec, 1
                  buffer_atomic_add v{vU[1]}, v{vU[0]}, s[20:23], 0 offen sc0
                  s_mov_b64 exec, -1
                  s_waitcnt vmcnt(0)
                  v_readfirstlane_b32 s{sT[0]}, v{vU[1]}""")
        if diag: a(f"s_mov_b32 s58, s{sT[0]}\ns_mov_b32 s59, 0")
        if rtab == "table":
            a(f"s_load_dword s{sT[3]}, s[{K_WS}:{K_WS+1}], 49152\ns_waitcnt lgkmcnt(0)")
        else: a(f"s_mov_b32 s{sT[3]}, {rtab}")
        a(f"""s_lshr_b32 s{sT[0]}, s{sT[0]}, 3
              s_and_b32 s{sT[0]}, s{sT[0]}, 28
              s_lshr_b32 s{sT[0]}, s{sT[3]}, s{sT[0]}
              s_and_b32 s{sT[0]}, s{sT[0]}, 15
              s_add_u32 s{sT[0]}, s{sT[0]}, 16
              s_lshr_b32 s{sT[3]}, s{sX}, 2
              s_mul_i32 s{sT[3]}, s{sT[3]}, {xb}
              s_add_u32 s{sT[0]}, s{sT[0]}, {"s100" if gx else f"s{sT[3]}"}
              v_mov_b32 v{vU[0]}, {L_CNT + 20}
              v_mov_b32 v{vU[1]}, s{sT[0]}
              ds_write_b32 v{vU[0]}, v{vU[1]}""")
    def wo_loads():
        for e in range(8):
            a(f"buffer_load_dwordx2 v[{vRaw+2*e}:{vRaw+2*e+1}], v{vO0 + (e >> 2)}, s[12:15], s{sOff} offen offset:{(e & 3) * 1024} nt")
    def part_loads():
        for k in range(4):
            r = PB + 4 * k
            a(f"buffer_load_dwordx4 v[{r}:{r+3}], v{vA0}, s[16:19], s{sP[k]} offen {pld}")
    def perms():
        for ct in range(4):
            for k, (ea, eb) in enumerate(((0, 1), (4, 5), (2, 3), (6, 7))):
                a(f"v_perm_b32 v{vBop+4*ct+k}, v{vRaw+2*eb+(ct>>1)}, v{vRaw+2*ea+(ct>>1)}, s{sSel0 + (ct & 1)}")
    a.label("L_F_ml0")
    if wo_at == "mid": wo_loads()
    if wo_at == "touch":
        a(f"s_mov_b64 exec, 1\nbuffer_load_dword v{vRaw}, v{vO0}, s[12:15], s{sOff} offen nt\ns_mov_b64 exec, -1")
    a.label("L_F_mlpoll")
    if narrow: a("s_mov_b32 exec_hi, 0")
    a(f"""buffer_load_dwordx4 v[{vG4}:{vG4+3}], v{vT[3]}, s[16:19], s{sT[1]} offen offset:512 {mf or ldf}
          s_waitcnt vmcnt(0)""")
    tagcheck([vG4], "L_F_mlpoll", "L_F_mlok", "always", narrow, 24)
    if wo_at == "mid": perms()
    a(f"v_mov_b32 v{vM}, v{vG4}")
    row_allreduce("v_max_f32", [vM])
    a(f"""v_sub_f32 v{vG4}, v{vG4}, v{vM}
          v_mul_f32 v{vG4}, s{sLog2e}, v{vG4}
          v_exp_f32 v{vG4}, v{vG4}
          v_mul_f32 v{vG4}, v{vG4}, v{vG4+2}
          v_mov_b32 v{vL}, v{vG4}""")
    row_allreduce("v_add_f32", [vL])
    a(f"""v_rcp_f32 v{vL}, v{vL}
          s_lshl_b32 s{sT[0]}, s{sW}, 7
          v_lshl_add_u32 v{vT[0]}, v{vT[2]}, 2, s{sT[0]}
          v_mul_f32 v{vG4}, v{vG4}, v{vL}
          v_lshl_add_u32 v{vT[1]}, v{vG}, 4, s{sT[0]}
          s_mov_b32 exec_hi, 0
          ds_write_b32 v{vT[0]}, v{vG4} offset:{L_WT}
          s_mov_b32 exec_hi, -1
          ds_read_b128 v[{vW}:{vW+3}], v{vT[1]} offset:{L_WT}
          ds_read_b128 v[{vW+4}:{vW+7}], v{vT[1]} offset:{L_WT+64}
          s_lshl_b32 s{sT[0]}, s{sBr}, 2
          s_add_u32 s{sT[0]}, s{sT[0]}, s{sW}
          s_lshl_b32 s{sT[0]}, s{sT[0]}, 9
          v_lshrrev_b32 v{vT[0]}, 1, v{vG}
          v_lshlrev_b32 v{vT[0]}, 5, v{vT[0]}
          v_and_b32 v{vT[1]}, 1, v{vG}
          v_lshl_add_u32 v{vT[1]}, v{vC}, 1, v{vT[1]}
          v_add_lshl_u32 v{vT[0]}, v{vT[0]}, v{vT[1]}, 3
          v_add_u32 v{vT[0]}, s{sT[0]}, v{vT[0]}
          v_mov_b32 v{vHi}, v{vT[0]}
          s_mov_b32 s{sSpin}, {SPIN}
          """)
    if fastf2:
        a(f"""v_mov_b32 v{vS}, {L_CNT + 8}
              v_mov_b32 v{vS+1}, 1
              v_lshlrev_b32 v{vS+2}, 3, v{vLane}
              v_lshlrev_b32 v{vS+3}, 4, v{vLane}
              v_lshrrev_b32 v{vS+5}, 5, v{vLane}
              v_lshlrev_b32 v{vS+4}, 10, v{vT[2]}
              v_lshl_add_u32 v{vS+4}, v{vS+5}, 4, v{vS+4}
              v_lshlrev_b32 v{vS+5}, 2, v{vS+5}
              v_bfe_u32 v{vS+6}, v{vLane}, 3, 1
              v_lshl_add_u32 v{vS+5}, v{vS+6}, 10, v{vS+5}
              v_bfe_u32 v{vS+6}, v{vLane}, 2, 1
              v_lshl_add_u32 v{vS+5}, v{vS+6}, 1, v{vS+5}
              v_mov_b32 v{vQ+1}, s{sTag}
              v_mov_b32 v{vQ+3}, s{sTag+1}
              s_add_u32 s98, s{sR}, 8
              s_lshl_b32 s98, s98, 5
              s_add_u32 s98, s98, s{sHA}
              s_lshl_b32 s98, s98, 10
              s_add_u32 s98, s98, {WS_Y}
              s_lshl_b32 s99, s{sX}, 15
              s_lshl_b32 s{sT[0]}, s{sI}, 5
              s_add_u32 s99, s99, s{sT[0]}
              s_add_u32 s99, s99, {WS_Y}
              s_add_u32 s{sT[3]}, s99, {8 << 15}
              s_lshr_b32 s{sT[2]}, s{sI}, 4
              s_lshl_b32 s{sT[2]}, s{sT[2]}, 11
              s_lshl_b32 s{sT[0]}, s{sX}, 7
              s_add_u32 s{sT[2]}, s{sT[2]}, s{sT[0]}
              s_and_b32 s{sT[0]}, s{sI}, 15
              s_lshl_b32 s{sT[0]}, s{sT[0]}, 3
              s_add_u32 s{sT[2]}, s{sT[2]}, s{sT[0]}""")
        srd(20, K_OUT, 4096)
    a(f"s_cmp_eq_u32 s{sBr}, 0\ns_cbranch_scc1 {'L_F_goA' if aser else 'L_F_go'}")
    if ya == "flag":
        a(f"s_cmp_eq_u32 s{sW}, 3\ns_cbranch_scc0 L_F_b2")
        lds_wait(24, 1, "L_F_yaw", 4)
        a(f"s_mov_b32 s{sBr}, 0")
        call("L_PUBY")
        a(f"s_mov_b32 s{sBr}, 1\ns_mov_b32 s{sSpin}, {SPIN}\nL_F_b2:")
    a("s_barrier")
    tstamp(1)
    if abl_notail: a("s_branch L_exit")
    if ya == "h3" and not abl_noA:
        a(f"""s_cmp_eq_u32 s{sW}, 3
              s_cbranch_scc0 L_F_go
              s_mov_b32 s{sBr}, 0""")
        call("L_PUBY")
        a(f"s_mov_b32 s{sBr}, 1")
    a.label("L_F_go")
    if wo_at == "mid":
        a("s_mov_b64 vcc, -1")
    else:
        wo_loads(); part_loads()
        a("s_waitcnt vmcnt(4)")
        tstamp(2)
        perms()
        a("s_branch L_F_pwait")
    a.label("L_F_ppoll")
    if masked: a("s_mov_b64 exec, vcc")
    part_loads()
    if masked: a("s_mov_b64 exec, -1")
    a.label("L_F_pwait")
    a("s_waitcnt vmcnt(0)")
    tagcheck([PB + 4 * k for k in range(4)], "L_F_ppoll", "L_F_pok", True)
    tstamp(3)
    for b in range(2):
        a(f"v_mov_b32 v{PB+8*b+1}, v{PB+8*b+4}\nv_mov_b32 v{PB+8*b+3}, v{PB+8*b+6}")
    if fastf2:
        D = vRing + 32
        a("s_waitcnt lgkmcnt(0)")
        def fm(k):
            b = k // 4; d = D + 4 * k
            a(f"v_mul_f32 v{vAcc+k}, v{vW+4*b}, v{d}")
            for i in range(1, 4): a(f"v_fmac_f32 v{vAcc+k}, v{vW+4*b+i}, v{d+i}")
        order = [0, 4, 1, 5, 2, 6, 3, 7]
        for n, k in enumerate(order):
            b, ct = k // 4, k % 4; d = D + 4 * k
            a(f"v_mfma_f32_16x16x32_bf16 v[{d}:{d+3}], v[{PB+8*b}:{PB+8*b+3}], v[{vBop+4*ct}:{vBop+4*ct+3}], 0")
            if n >= f2lag: fm(order[n - f2lag])
        for n in range(8 - f2lag, 8): fm(order[n])
        for e in range(4): a(f"v_permlane32_swap_b32 v{vAcc+e}, v{vAcc+e+4}")
        for e in range(4): a(f"v_add_f32 v{vAcc+e}, v{vAcc+e}, v{vAcc+e+4}")
        for e in range(2): a(f"v_permlane16_swap_b32 v{vAcc+e}, v{vAcc+e+2}")
        for e in range(2): a(f"v_add_f32 v{vAcc+e}, v{vAcc+e}, v{vAcc+e+2}")
        a(f"""ds_write_b64 v{vHi}, v[{vAcc}:{vAcc+1}] offset:{L_YR}
              s_cmp_eq_u32 s{sBr}, 0
              s_mov_b32 s{sBr}, 1""")
        if diag:
            a("s_cbranch_scc0 L_F_tail"); stamp(5); a("s_branch L_FIN"); a.label("L_F_tail")
        else:
            a("s_cbranch_scc1 L_FIN")
        a(f"""s_mov_b64 exec, 1
              ds_add_rtn_u32 v{vU[2]}, v{vS}, v{vS+1}
              s_mov_b64 exec, -1""")
        for k in range(4): a(f"ds_read_b64 v[{vt+2*k}:{vt+2*k+1}], v{vS+2} offset:{L_YR + 2048 + 512*k}")
        a(f"""s_mov_b32 s{sSpin}, {SPIN}
              s_mov_b64 vcc, -1
              s_waitcnt lgkmcnt(0)
              v_readfirstlane_b32 s{sT[0]}, v{vU[2]}
              v_add_f32 v{vQ}, v{vt}, v{vt+2}
              v_add_f32 v{vQ+2}, v{vt+1}, v{vt+3}
              v_add_f32 v{vt+4}, v{vt+4}, v{vt+6}
              v_add_f32 v{vt+5}, v{vt+5}, v{vt+7}
              s_cmp_eq_u32 s{sT[0]}, 3
              s_cbranch_scc0 {"L_F_nl" if f3first else "L_exit"}
              v_add_f32 v{vQ}, v{vQ}, v{vt+4}
              v_add_f32 v{vQ+2}, v{vQ+2}, v{vt+5}
              buffer_store_dwordx4 v[{vQ}:{vQ+3}], v{vS+3}, s[16:19], s98 offen {yst}""")
        tstamp(4)
        if f3first:
            a(f"s_branch L_exit\nL_F_nl:\ns_cmp_eq_u32 s{sT[0]}, {f3first - 1}\ns_cbranch_scc0 L_exit")
        a.label("L_F_ypoll")
        a("s_mov_b64 exec, vcc")
        a(f"buffer_load_dwordx4 v[{R0+4}:{R0+7}], v{vS+4}, s[16:19], s{sT[3]} offen {yld}")
        if not abl_noA: a(f"buffer_load_dwordx4 v[{R0}:{R0+3}], v{vS+4}, s[16:19], s99 offen {yld}")
        a("s_mov_b64 exec, -1\ns_waitcnt vmcnt(0)")
        tagcheck([R0 + 4] if abl_noA else [R0, R0 + 4], "L_F_ypoll", "L_F_yok")
        tstamp(5)
        a(f"""v_add_f32_dpp v{R0}, v{R0}, v{R0} row_mirror row_mask:0xf bank_mask:0x3
              v_add_f32_dpp v{R0+2}, v{R0+2}, v{R0+2} row_mirror row_mask:0xf bank_mask:0x3
              v_add_f32_dpp v{R0}, v{R0+4}, v{R0+4} row_mirror row_mask:0xf bank_mask:0xc
              v_add_f32_dpp v{R0+2}, v{R0+6}, v{R0+6} row_mirror row_mask:0xf bank_mask:0xc
              v_add_f32_dpp v{R0}, v{R0}, v{R0} row_half_mirror row_mask:0xf bank_mask:0x5
              v_add_f32_dpp v{R0}, v{R0+2}, v{R0+2} row_half_mirror row_mask:0xf bank_mask:0xa
              v_add_f32_dpp v{R0}, v{R0}, v{R0} quad_perm:[2,3,0,1] row_mask:0xf bank_mask:0xf
              v_add_f32_dpp v{R0}, v{R0}, v{R0} quad_perm:[1,0,3,2] row_mask:0xf bank_mask:0xf
              v_mov_b32 v{R0+1}, v{R0}
              v_permlane16_swap_b32 v{R0}, v{R0+1}
              v_add_f32 v{R0}, v{R0}, v{R0+1}
              v_cvt_pk_bf16_f32 v{R0}, v{R0}, v{R0}
              s_mov_b32 exec_lo, 0x1111
              s_mov_b32 exec_hi, 0x1111
              buffer_store_short v{R0}, v{vS+5}, s[20:23], s{sT[2]} offen
              s_mov_b64 exec, -1""")
    else:
        D = vRing + 32
        for b in range(2):
            for ct in range(4):
                d = D + (b * 4 + ct) * 4
                a(f"v_mfma_f32_16x16x32_bf16 v[{d}:{d+3}], v[{PB+8*b}:{PB+8*b+3}], v[{vBop+4*ct}:{vBop+4*ct+3}], 0")
        a("s_waitcnt lgkmcnt(0)")
        for i in range(4):
            for b in range(2):
                for ct in range(4):
                    d = D + (b * 4 + ct) * 4
                    if i == 0: a(f"v_mul_f32 v{vAcc+b*4+ct}, v{vW+4*b}, v{d}")
                    else: a(f"v_fmac_f32 v{vAcc+b*4+ct}, v{vW+4*b+i}, v{d+i}")
        call("L_RED8")
        a(f"""ds_write_b64 v{vHi}, v[{vAcc}:{vAcc+1}] offset:{L_YR}
              s_cmp_eq_u32 s{sBr}, 0
              s_mov_b32 s{sBr}, 1""")
        if diag:
            a("s_cbranch_scc0 L_F_tail"); stamp(5); a("s_branch L_FIN"); a.label("L_F_tail")
        else:
            a("s_cbranch_scc1 L_FIN")
        a(f"""v_mov_b32 v{vU[0]}, {L_CNT + 8}
              v_mov_b32 v{vU[1]}, 1
              s_mov_b64 exec, 1
              ds_add_rtn_u32 v{vU[2]}, v{vU[0]}, v{vU[1]}
              s_mov_b64 exec, -1
              s_waitcnt lgkmcnt(0)
              v_readfirstlane_b32 s{sT[0]}, v{vU[2]}
              s_cmp_eq_u32 s{sT[0]}, 3
              s_cbranch_scc0 L_exit""")
        call("L_PUBY")
        if ya == "last" and not abl_noA:
            a(f"s_mov_b32 s{sBr}, 0"); call("L_PUBY"); a(f"s_mov_b32 s{sBr}, 1")
        tstamp(4)
        a(f"""s_lshl_b32 s{sT[1]}, s{sX}, 15
              s_lshl_b32 s{sT[0]}, s{sI}, 5
              s_add_u32 s{sT[1]}, s{sT[1]}, s{sT[0]}
              s_add_u32 s{sT[1]}, s{sT[1]}, {WS_Y}
              s_add_u32 s{sT[3]}, s{sT[1]}, {8 << 15}
              v_lshrrev_b32 v{vT[0]}, 5, v{vLane}
              v_lshlrev_b32 v{vT[1]}, 10, v{vT[2]}
              v_lshl_add_u32 v{vT[1]}, v{vT[0]}, 4, v{vT[1]}
              v_lshlrev_b32 v{vT[0]}, 2, v{vT[0]}
              s_lshr_b32 s{sT[2]}, s{sI}, 4
              s_lshl_b32 s{sT[2]}, s{sT[2]}, 11
              s_lshl_b32 s{sT[0]}, s{sX}, 7
              s_add_u32 s{sT[2]}, s{sT[2]}, s{sT[0]}
              s_and_b32 s{sT[0]}, s{sI}, 15
              s_lshl_b32 s{sT[0]}, s{sT[0]}, 3
              s_add_u32 s{sT[2]}, s{sT[2]}, s{sT[0]}
              s_mov_b32 s{sSpin}, {SPIN}""")
        srd(20, K_OUT, 4096)
        if masked: a("s_mov_b64 vcc, -1")
        a.label("L_F_ypoll")
        if masked: a("s_mov_b64 exec, vcc")
        a(f"buffer_load_dwordx4 v[{R0+4}:{R0+7}], v{vT[1]}, s[16:19], s{sT[3]} offen {yld}")
        if not abl_noA: a(f"buffer_load_dwordx4 v[{R0}:{R0+3}], v{vT[1]}, s[16:19], s{sT[1]} offen {yld}")
        if masked: a("s_mov_b64 exec, -1")
        a("s_waitcnt vmcnt(0)")
        tagcheck([R0 + 4] if abl_noA else [R0, R0 + 4], "L_F_ypoll", "L_F_yok")
        tstamp(5)
        row_allreduce("v_add_f32", [R0, R0 + 2, R0 + 4, R0 + 6])
        for k in range(4): a(f"v_mov_b32 v{R0+2*k+1}, v{R0+2*k}")
        for k in range(4): a(f"v_permlane16_swap_b32 v{R0+2*k}, v{R0+2*k+1}")
        for k in range(4): a(f"v_add_f32 v{R0+2*k}, v{R0+2*k}, v{R0+2*k+1}")
        a(f"""v_cvt_pk_bf16_f32 v{R0}, v{R0}, v{R0+2}
              v_cvt_pk_bf16_f32 v{R0+4}, v{R0+4}, v{R0+6}
              s_mov_b32 exec_lo, 1
              s_mov_b32 exec_hi, 1
              buffer_store_dword v{R0}, v{vT[0]}, s[20:23], s{sT[2]} offen
              buffer_store_dword v{R0+4}, v{vT[0]}, s[20:23], s{sT[2]} offen offset:1024
              s_mov_b64 exec, -1""")
    a(f"""s_nop 0
          s_cmp_eq_u32 s2, 0
          s_cbranch_scc0 L_exit
          v_mov_b32 v{vT[0]}, {WS_EPOCH}
          v_mov_b32 v{vT[1]}, s{sEp}
          s_mov_b64 exec, 1
          buffer_store_dword v{vT[1]}, v{vT[0]}, s[16:19], 0 offen sc1
          s_mov_b64 exec, -1""")

    if aser:
        a("s_branch L_exit")
        a.label("L_F_goA")
        for k in range(4):
            r = PB + 4 * k
            a(f"buffer_load_dwordx4 v[{r}:{r+3}], v{vA0}, s[16:19], s{sP[k]} offen {pld}\ns_waitcnt vmcnt({aser - 1})")
        a("s_branch L_F_pwait")
    a.label("L_exit")
    if fixdur:
        a.label("L_fix")
        a(f"""s_memrealtime s[50:51]
              s_waitcnt lgkmcnt(0)
              s_sub_u32 s50, s50, s48
              s_cmp_lt_u32 s50, {fixdur}
              s_cbranch_scc1 L_fix""")
    if diag:
        stamp(7)
        a(f"""s_lshl_b32 s{sT[0]}, s2, 3
              s_add_u32 s{sT[0]}, s{sT[0]}, s{sWave}
              s_lshl_b32 s{sT[0]}, s{sT[0]}, 6
              s_add_u32 s{sT[0]}, s{sT[0]}, {STAMP_OFF}
              s_waitcnt vmcnt(0) lgkmcnt(0)
              v_mov_b32 v{vT[0]}, 0""")
        for k in range(16): a(f"v_mov_b32 v{vRing+k}, s{48+k}")
        a("s_mov_b64 exec, 1")
        for k in range(4): a(f"buffer_store_dwordx4 v[{vRing+4*k}:{vRing+4*k+3}], v{vT[0]}, s[16:19], s{sT[0]} offen offset:{16*k}")
    a.label("L_end")
    a("s_endpgm")

    body, nops = a.render(nstub=NSTUB if stubs else 0, total=NSTUB)
    head = open(f"cdna_kernels/{NAME}.s.ref").read().split("; Override launch")[0]
    txt = head + f"""; Emitted by a hand-written generator script (dev/gen.py). One persistent workgroup per CU, one launch.
;   workgroup j: x = j&7, i = j>>3, head h = 4x + (i>>3), batch (i>>2)&1, key split i&3, column slice r = i&7
;   waves 4-7 stream 2048 keys of branch-B K then V (32-slot register ring, bounded number of loads in flight),
;     exact per-wave softmax (true max), publish a normalised partial o plus (max, sum)
;   waves 0-3: q partials (64 rows of wq per workgroup), branch-A attention (128 keys x 4 heads per workgroup),
;     combination of the partials + output projection (MFMA) and the final sum over heads
;   hand-offs go through d_ws as 16-byte granules carrying a per-launch tag (epoch word in d_ws + 1); a consumer that
;     keeps missing data writes its L2 back, so results do not depend on where workgroups are placed
; @launch grid=(256,1,1) block=(512,1,1) lds={LDS_BYTES}
.amdgcn_target "amdgcn-amd-amdhsa--gfx950"
.text
.globl {NAME}_kernel
.p2align 12
.p2align 8
.type {NAME}_kernel,@function
{body}.section .rodata,"a"
.p2align 6
.amdhsa_kernel {NAME}_kernel
  .amdhsa_next_free_vgpr {NVGPR}
  .amdhsa_next_free_sgpr 102
  .amdhsa_accum_offset {NVGPR}
  .amdhsa_group_segment_fixed_size 0
  .amdhsa_kernarg_size 104
  .amdhsa_user_sgpr_count 2
  .amdhsa_user_sgpr_kernarg_segment_ptr 1
  .amdhsa_system_sgpr_workgroup_id_x 1
  .amdhsa_float_denorm_mode_32 3
.end_amdhsa_kernel
"""
    return txt, nops, a.code_bytes

if __name__ == "__main__":
    out = sys.argv[1]
    kw = json.loads(sys.argv[2]) if len(sys.argv) > 2 else {}
    txt, nops, nb = gen(**kw)
    open(out, "w").write(txt)
    print(out, "lines", txt.count("\n"), "auto nops", nops, "code bytes", nb)
```

```python
import sys, json
sys.path.insert(0, "dev")
from asmlib import Asm
NAME = "concat_heads__sliding_block_cached__mha_block_cached__decode"

WS_EPOCH, WS_Y, WS_QP, WS_PART, WS_PB = 0, 64 << 10, 1 << 20, 2 << 20, (3 << 20) + (512 << 10)
WS_MK = 16 << 10
WS_GM = 8 << 10
WS_XL = 4 << 10
REC = 640
WS_SIZE = 512 << 20
STAMP_OFF = 64 << 20
L_QB, L_QA, L_CNT, L_MLA, L_WT, L_OA, L_YR = 0, 256, 1280, 1408, 1536, 2048, 10240
LDS_BYTES = 16384
vLane, vO0, vO1 = 1, 2, 3
vT = [4, 5, 6, 7]
vQ = 8
vAcc = 12
vt = 20
vZ0, vZ1, vZA = 28, 29, 30
vP = 32
vLo, vHi = 34, 35
vS = 36
vG4 = 44
vM, vL, vC, vG = 48, 49, 50, 51
vU = [52, 53, 54, 55]
vW = 56
vRing = 64
vRaw = 192
vAd = 208
vBop = 208
vRaw2 = 224
NVGPR = 240
sWave, sW, sX, sI, sH, sB, sS, sR = 3, 4, 5, 6, 7, 8, 9, 10
sOff = 24
sT = [25, 26, 27, 11]
sTag = 28
sRet = 30
sEp = 32
sMc1, sMc0 = 34, 36
sScale, sLog2e, sHiMask = 38, 39, 40
sSpin, sBr, sHH = 41, 42, 43
sPub, sU = 44, 45
sSel0, sSel1 = 46, 47
sPubO, sShift = 90, 91
sCnt, sMask = 92, 93
sHA, sHB = 96, 97
sP = [92, 93, 94, 95]
K_AX, K_AK, K_AV, K_AWQ, K_AWO, K_BX, K_BK, K_BV, K_BWQ, K_BWO, K_OUT, K_DBG, K_WS = [64 + 2 * i for i in range(13)]
SPIN = 1 << 18

def slot(G, s): return vRing + (G * 8 + s) * 4

def gen(NSTUB=8, diag=False, bar0=True, asleep=32, stubs=True, abl_noA=False, abl_noq=False, abl_notail=False,
        TK=(5,5,5,5,5,5,5,6), TV=(16,), vfrom=7, TH=0, early_bar=False, masked=True, pre=-1, midbar=2, wo_at="mid", pat=2, pata=2, bperm=None, lag=2, nfast=4, endlag=3, midg=5, fastend=True, fastf2=True, f2lag=3, f3first=True, rank='m', rtab=1412571392, gw=0, gdelay=0, gld='nt', gbias=0, gx=False, glo=15, ghi=17, gpoll=4, xtab=0x33221100, gnoread=False, rfrom=2, rmax=6, nodup=True, bhint=True, hmap=2, ph=1, phm=5, wxa=5, kvi=False, wb=0, phb=(18, 17), aearly=False, g0free=False, table=False, xorph=False, phx=0, phs=0, latefree=0, pld="nt", ya="flag", tsleep=0, local=True, slow=128, perm=0, ldf="nt", yld="sc1", yst="sc1", sprio=0, abl_Apoll=False, abl_Acomp=False, abl_Akv=False, abl_Ast=False, narrow=True, aser=1, qser=4, n0=3, xb=1, lateslots=(), stublate=False, TF=None, kvdelay=0, TQ=0, latemask=0xf0, vboost=0, xt8=(0, 0, 0, 1, 1, 2, 0, 1), latemask2=None, tlb=0, xf='', xlast=False, hf=None, mf=None, preg=-1, qb0=False, ml1=True, wostart=3, acoal=True, abl_wo=False, abl_qca=False, abl_wq=0, yag=15, late2=True, h2early=True, abl_dbl=False, fixdur=0):
    assert max(TK) <= 16 and max(TV) <= 16
    two = tuple(TK) != tuple(TV)
    def iss(c, G): call(f"L_ISS{'V' if (two and c >= vfrom) else 'K'}{G}")
    a = Asm()
    if phm >= 4: xorph = True
    uid = [0]
    in_stream = [False]
    stf = "" if local else "sc1"
    def sstamp(i):
        if diag == 4: a(f"s_memrealtime s[{48+2*i}:{49+2*i}]")
    def tstamp(i):
        if diag == 3: a(f"s_memrealtime s[{48+2*i}:{49+2*i}]")
    def stamp(i):
        if diag == 2 and i in (1, 2): return
        if diag == 4 and in_stream[0] and i in (1, 2, 3, 4, 6): return
        if diag: a(f"s_memrealtime s[{48+2*i}:{49+2*i}]")
        if diag == 2 and i == 0: a("s_memtime s[50:51]")
        if diag == 2 and i == 5: a("s_memtime s[52:53]")
    def srd(base, ptr, size):
        a(f"s_mov_b32 s{base}, s{ptr}\ns_mov_b32 s{base+1}, s{ptr+1}\ns_mov_b32 s{base+2}, {size}\ns_mov_b32 s{base+3}, 0x00020000")
    def addr(s, p):
        if p == 8: return (vAd + (s >> 2), (s & 3) * 1024)
        return (vAd + s // p, (s % p) * 1024)
    def addr_setup(p, wx=-1):
        if wx >= 0: a(f"s_lshr_b32 s{sT[0]}, s2, {wx}\ns_xor_b32 s{sT[0]}, s{sT[0]}, s{sW}\ns_and_b32 s{sT[0]}, s{sT[0]}, 3")
        a(f"""s_lshl_b32 s{sT[0]}, s{sT[0] if wx >= 0 else sW}, {10 + p.bit_length() - 1}
              v_lshlrev_b32 v{vAd}, 4, v{vLane}
              v_add_u32 v{vAd}, s{sT[0]}, v{vAd}""")
        if p == 8: a(f"v_add_u32 v{vAd+1}, 0x1000, v{vAd}")
        else:
            for k in range(1, 8 // p): a(f"v_add_u32 v{vAd+k}, {k * p * 4096}, v{vAd}")
    def issue(G, tp, bar_at=-1):
        for s in range(8):
            if s == bar_at: a("s_barrier")
            if bar_at >= 0 and s == 5: sstamp(2)
            if bar_at >= 0 and s == 5 and stublate: touch([(4, 5), (5, 0), (6, 2), (7, 7)])
            r = slot(G, s)
            t = tp[s % len(tp)]
            if t and tp is TK and s in lateslots:
                uid[0] += 1
                a(f"s_waitcnt vmcnt({t})\ns_cbranch_vccnz L_lt{uid[0]}\ns_waitcnt vmcnt({t - 1})\nL_lt{uid[0]}:")
            elif t: a(f"s_waitcnt vmcnt({t - 1})")
            va, imm = (vAd + s, 0) if bperm else addr(s, pat)
            a(f"buffer_load_dwordx4 v[{r}:{r+3}], v{va}, s[12:15], s{sOff} offen offset:{imm} nt")
        if xorph: a(f"s_add_u32 s{sCnt}, s{sCnt}, 0x8000\ns_and_b32 s{sCnt}, s{sCnt}, 0x7ffff\ns_xor_b32 s{sOff}, s{sCnt}, s{sMask}")
        elif wb:
            hole = 3 << wb
            a(f"s_or_b32 s{sOff}, s{sOff}, {hole}\ns_add_u32 s{sOff}, s{sOff}, 0x2000\ns_and_b32 s{sOff}, s{sOff}, {0x7ffff & ~hole}")
        else: a(f"s_add_u32 s{sOff}, s{sOff}, 0x8000\ns_and_b32 s{sOff}, s{sOff}, 0x7ffff")
    def call(lbl): a(f"s_call_b64 s[{sRet}:{sRet+1}], {lbl}")
    def ret(): a(f"s_setpc_b64 s[{sRet}:{sRet+1}]")
    def row_allreduce(op, regs):
        for m in ("row_mirror", "row_half_mirror", "quad_perm:[2,3,0,1]", "quad_perm:[1,0,3,2]"):
            for x in regs: a(f"{op}_dpp v{x}, v{x}, v{x} {m} row_mask:0xf bank_mask:0xf")
    def xrow(op, x, tmp, which):
        a(f"v_mov_b32 v{tmp}, v{x}\nv_permlane{which}_swap_b32 v{x}, v{tmp}\n{op} v{x}, v{x}, v{tmp}")
    def wave_allreduce(op, x, tmp):
        row_allreduce(op, [x]); xrow(op, x, tmp, 16); xrow(op, x, tmp, 32)
    def round_scores(x, y, t):
        a(f"""v_cvt_pk_bf16_f32 v{t}, v{x}, v{y}
              v_lshlrev_b32 v{x}, 16, v{t}
              v_and_b32 v{y}, s{sHiMask}, v{t}
              v_mul_f32 v{x}, s{sScale}, v{x}
              v_mul_f32 v{y}, s{sScale}, v{y}
              v_cvt_pk_bf16_f32 v{t}, v{x}, v{y}
              v_lshlrev_b32 v{x}, 16, v{t}
              v_and_b32 v{y}, s{sHiMask}, v{t}""")
    def tagcheck(bufs, lbl_retry, lbl_ok, backoff=False, restore=False, patience=None):
        acc = vU[0]
        first = True
        for b in bufs:
            a(f"v_xor_b32 v{vU[1]}, s{sTag}, v{b+1}\nv_xor_b32 v{vU[2]}, s{sTag+1}, v{b+3}")
            if first: a(f"v_or_b32 v{acc}, v{vU[1]}, v{vU[2]}")
            else: a(f"v_or3_b32 v{acc}, v{acc}, v{vU[1]}, v{vU[2]}")
            first = False
        a(f"v_cmp_ne_u32 vcc, 0, v{acc}")
        if restore: a("s_mov_b64 exec, -1")
        a(f"s_cbranch_vccz {lbl_ok}")
        if backoff == "always": a(f"s_sleep {asleep}")
        elif backoff and asleep:
            a(f"s_cmp_eq_u32 s{sBr}, 0\ns_cbranch_scc0 {lbl_ok}_nb\ns_sleep {asleep}\n{lbl_ok}_nb:")
        if tsleep: a(f"s_sleep {tsleep}")
        if local:
            a(f"""s_cmp_gt_u32 s{sSpin}, {SPIN - (patience or slow)}
                  s_cbranch_scc1 {lbl_ok}_fast
                  buffer_wbl2 sc1
                  s_waitcnt vmcnt(0)
                  s_sleep 16
                  {lbl_ok}_fast:""")
        a(f"""s_sub_u32 s{sSpin}, s{sSpin}, 1
              s_cbranch_scc0 {lbl_retry}""")
        a.label(lbl_ok)
    def lds_wait(off, atleast, name, sleep=0):
        a(f"v_mov_b32 v{vU[0]}, {L_CNT + off}\ns_mov_b32 s{sSpin}, {SPIN * 64}")
        a.label(name)
        a(f"""ds_read_b32 v{vU[1]}, v{vU[0]}
              s_waitcnt lgkmcnt(0)
              v_readfirstlane_b32 s{sT[0]}, v{vU[1]}
              s_cmp_ge_u32 s{sT[0]}, {atleast}
              s_cbranch_scc1 {name}_ok""")
        if sleep: a(f"s_sleep {sleep}")
        a(f"""s_sub_u32 s{sSpin}, s{sSpin}, 1
              s_cbranch_scc0 {name}""")
        a.label(name + "_ok")
    def helper_sync(off, name):
        a(f"""v_mov_b32 v{vU[0]}, {L_CNT + off}
              v_mov_b32 v{vU[1]}, 1
              s_mov_b64 exec, 1
              ds_add_u32 v{vU[0]}, v{vU[1]}
              s_mov_b64 exec, -1""")
        lds_wait(off, 4, name, 1)
    def epoch_load():
        a(f"s_load_dwordx2 s[{sEp}:{sEp+1}], s[{K_WS}:{K_WS+1}], {WS_EPOCH}")
    def epoch_tag():
        a(f"""s_waitcnt lgkmcnt(0)
              s_add_u32 s{sEp}, s{sEp}, 1
              s_xor_b32 s{sTag}, s{sEp}, 0x5bd1e995
              s_mul_i32 s{sTag+1}, s{sEp}, 0x9e3779b1
              s_add_u32 s{sTag+1}, s{sTag+1}, s{sEp+1}""")
    def consts():
        a(f"""s_mov_b32 s{sMc1}, 0xcccccccc
              s_mov_b32 s{sMc1+1}, 0xcccccccc
              s_mov_b32 s{sMc0}, 0xaaaaaaaa
              s_mov_b32 s{sMc0+1}, 0xaaaaaaaa
              s_mov_b32 s{sScale}, 0x3db504f3
              s_mov_b32 s{sLog2e}, 0x3fb8aa3b
              s_mov_b32 s{sHiMask}, 0xffff0000""")
        srd(16, K_WS, WS_SIZE)
    R0 = vRing

    a.label(f"{NAME}_kernel")
    a(f"""s_cmp_ge_u32 s2, 256
          s_cbranch_scc1 L_end
          s_load_dwordx16 s[64:79], s[0:1], 0
          s_load_dwordx8 s[80:87], s[0:1], 64
          s_load_dwordx2 s[88:89], s[0:1], 96""")
    stamp(0)
    if fixdur: a("s_memrealtime s[48:49]")
    if perm:
        a(f"s_mul_i32 s2, s2, {perm}\ns_lshr_b32 s{sT[0]}, s2, 8\ns_and_b32 s2, s2, 255")
        a(f"s_lshr_b32 s{sT[0]}, s2, 3\ns_xor_b32 s2, s2, s{sT[0]}")
    if hmap == 0: hb_code = f"s_lshl_b32 s{sHB}, s{sH}, 3\ns_add_u32 s{sHB}, s{sHB}, s{sX}"
    elif hmap == 1: hb_code = (f"s_and_b32 s{sHB}, s{sH}, 1\ns_lshr_b32 s{sH}, s{sH}, 1\ns_lshl_b32 s{sH}, s{sH}, 4\ns_add_u32 s{sHB}, s{sHB}, s{sH}\n"
                               f"s_lshl_b32 s{sT[0]}, s{sX}, 1\ns_add_u32 s{sHB}, s{sHB}, s{sT[0]}")
    elif hmap == 6:
        hb_code = (f"s_and_b32 s{sHB}, s{sH}, 1\ns_lshr_b32 s{sH}, s{sH}, 1\ns_lshl_b32 s{sH}, s{sH}, 3\ns_add_u32 s{sHB}, s{sHB}, s{sH}\n"
                   f"s_and_b32 s{sT[0]}, s{sX}, 3\ns_lshl_b32 s{sT[0]}, s{sT[0]}, 1\ns_add_u32 s{sHB}, s{sHB}, s{sT[0]}\n"
                   f"s_and_b32 s{sT[0]}, s{sX}, 4\ns_lshl_b32 s{sT[0]}, s{sT[0]}, 2\ns_add_u32 s{sHB}, s{sHB}, s{sT[0]}")
    else: hb_code = f"s_mov_b32 s{sHB}, s{sHA}"
    a(f"""v_lshrrev_b32 v{vT[0]}, 6, v0
          v_and_b32 v{vLane}, 63, v0
          v_readfirstlane_b32 s{sWave}, v{vT[0]}
          s_and_b32 s{sX}, s2, 7
          s_lshr_b32 s{sI}, s2, 3
          s_lshr_b32 s{sH}, s{sI}, 3
          s_lshl_b32 s{sT[0]}, s{sX}, 2
          s_add_u32 s{sHA}, s{sH}, s{sT[0]}
          {hb_code}
          s_bfe_u32 s{sB}, s{sI}, 0x10002
          s_and_b32 s{sS}, s{sI}, 3
          s_and_b32 s{sR}, s{sI}, 7
          s_and_b32 s{sW}, s{sWave}, 3
          v_and_b32 v{vC}, 15, v{vLane}
          v_lshrrev_b32 v{vG}, 4, v{vLane}""")
    if table:
        a(f"""s_waitcnt lgkmcnt(0)
              s_lshl_b32 s{sT[0]}, s2, 2
              {f"s_add_u32 s{sT[0]}, s{sT[0]}, s{sW}" if xorph else ""}
              {f"s_lshl_b32 s{sT[0]}, s{sT[0]}, 2" if xorph else ""}
              s_add_u32 s{sT[0]}, s{sT[0]}, 32768
              s_load_dword s98, s[{K_WS}:{K_WS+1}], s{sT[0]}
              s_waitcnt lgkmcnt(0)
              s_lshr_b32 s{sHB}, s98, 8
              s_and_b32 s{sHB}, s{sHB}, 31""")
    def touch(pairs):
        for w_, k_ in pairs:
            uid[0] += 1
            a(f"s_cmp_eq_u32 s{sWave}, {w_}\ns_cbranch_scc0 L_tc{uid[0]}")
            call(f"L_stub{k_}")
            a.label(f"L_tc{uid[0]}")
    if stublate: touch([(1, 6), (3, 1)])
    else: touch([(k, k) for k in range(8)])
    a(f"""s_cmp_lt_u32 s{sWave}, 4
          s_cbranch_scc0 L_stream""")

    a(f"s_cmp_lt_u32 s{sW}, 2\ns_cselect_b32 s{sH}, s{sHB}, s{sHA}")
    if nodup:
        a(f"s_lshl_b32 s{sT[0]}, s{sR}, 6")
    else:
        a(f"""s_and_b32 s{sT[0]}, s{sW}, 1
              s_lshl_b32 s{sT[0]}, s{sT[0]}, 9
              s_lshl_b32 s{sT[1]}, s{sR}, 6
              s_add_u32 s{sT[0]}, s{sT[0]}, s{sT[1]}""")
    a(f"""v_add_lshl_u32 v{vT[0]}, s{sT[0]}, v{vLane}, 1
          v_lshlrev_b32 v{vO0}, 17, v{vG}
          v_lshl_add_u32 v{vO0}, v{vC}, 4, v{vO0}
          s_lshl_b32 s{sOff}, s{sR}, 19
          s_lshl_b32 s{sT[0]}, s{sH}, 8
          s_add_u32 s{sOff}, s{sOff}, s{sT[0]}
          s_mov_b32 s14, 0x400000
          s_mov_b32 s15, 0x00020000
          s_mov_b32 s22, 2048
          s_mov_b32 s23, 0x00020000
          v_lshlrev_b32 v{vU[0]}, 2, v{vC}
          v_mov_b32 v{vU[1]}, 0
          ds_write_b32 v{vU[0]}, v{vU[1]} offset:{L_CNT}
          s_waitcnt lgkmcnt(0)
          s_cmp_lt_u32 s{sW}, 2
          s_cselect_b32 s12, s{K_BWQ}, s{K_AWQ}
          s_cselect_b32 s13, s{K_BWQ+1}, s{K_AWQ+1}
          s_cselect_b32 s20, s{K_BX}, s{K_AX}
          s_cselect_b32 s21, s{K_BX+1}, s{K_AX+1}""")
    epoch_load()
    first = 1 if nodup else 2
    if aearly == 2: pass
    elif h2early: a(f"s_bitcmp0_b32 s{sW}, 0\ns_cbranch_scc1 L_h_go\ns_barrier")
    elif bar0: a(f"s_cmp_lt_u32 s{sW}, {first}\ns_cbranch_scc1 L_h_go\ns_barrier")
    else: a("s_barrier")
    if nodup: a(f"s_bitcmp1_b32 s{sW}, 0\ns_cbranch_scc1 L_helper2")
    a.label("L_h_go")
    def x_loads():
        a(f"buffer_load_ushort v{vP}, v{vT[0]}, s[20:23], 0 offen {xf}")
        if nodup: a(f"buffer_load_ushort v{vP+1}, v{vT[0]}, s[20:23], 0 offen offset:1024 {xf}")
    if not xlast: x_loads()
    if abl_wq: a(f"s_mov_b32 s14, 0")
    for k in range(16):
        r = slot(k & 1, k >> 1)
        if TQ and k == TQ and h2early: a("s_barrier")
        if TQ and k >= TQ: a(f"s_waitcnt vmcnt({TQ - 1})")
        a(f"buffer_load_dwordx4 v[{r}:{r+3}], v{vO0}, s[12:15], s{sOff} offen nt")
        if k < 15: a(f"s_add_u32 s{sOff}, s{sOff}, 0x2000")
    if xlast: x_loads()
    if h2early:
        if not TQ and aearly != 2: a("s_barrier")
        if stublate: touch([(0, 3), (2, 4)])
    elif bar0: a(f"s_cmp_lt_u32 s{sW}, {first}\ns_cbranch_scc0 L_helper2\ns_barrier")
    a("s_branch L_helper2")

    a.label("L_stream")
    in_stream[0] = True
    if vboost: a(f"s_mov_b64 vcc, {0 if vboost == 1 else -1}")
    elif lateslots: a(f"s_lshr_b32 vcc_lo, {latemask}, s{sX}\ns_and_b32 vcc_lo, vcc_lo, 1\ns_mov_b32 vcc_hi, 0")
    if sprio: a(f"s_setprio {sprio}")
    if wb:
        assert pat == 8
        a(f"""s_lshl_b32 s{sT[0]}, s{sW}, {wb}
              v_lshlrev_b32 v{vAd}, 4, v{vLane}
              v_add_u32 v{vAd}, s{sT[0]}, v{vAd}
              v_add_u32 v{vAd+1}, 0x1000, v{vAd}""")
    elif bperm:
        if bperm == "table":
            a(f"s_waitcnt lgkmcnt(0)\ns_load_dwordx8 s[56:63], s[{K_WS}:{K_WS+1}], 49152\ns_waitcnt lgkmcnt(0)")
            sh = [f"s{56+k}" for k in range(7)]
        else: sh = [str(v) for v in bperm]
        a(f"""v_lshlrev_b32 v{vAd}, 4, v{vC}
              v_and_b32 v{vT[0]}, 1, v{vG}
              v_lshl_add_u32 v{vAd}, v{vT[0]}, {sh[0]}, v{vAd}
              v_lshrrev_b32 v{vT[0]}, 1, v{vG}
              v_lshl_add_u32 v{vAd}, v{vT[0]}, {sh[1]}, v{vAd}
              s_and_b32 s{sT[0]}, s{sW}, 1
              s_lshl_b32 s{sT[0]}, s{sT[0]}, {sh[2]}
              s_lshr_b32 s{sT[1]}, s{sW}, 1
              s_lshl_b32 s{sT[1]}, s{sT[1]}, {sh[3]}
              s_add_u32 s{sT[0]}, s{sT[0]}, s{sT[1]}
              v_add_u32 v{vAd}, s{sT[0]}, v{vAd}""")
        for b in range(3):
            a(f"s_lshl_b32 s{sT[0]}, 1, {sh[4+b]}")
            for k in range(1 << b): a(f"v_add_u32 v{vAd + (1 << b) + k}, s{sT[0]}, v{vAd + k}")
    else: addr_setup(pat)
    if table: ph_code = f"s_and_b32 s{sOff}, s98, 15\ns_lshl_b32 s{sOff}, s{sOff}, 15"
    elif phm == 0: ph_code = f"s_and_b32 s{sOff}, s{sI}, 15\ns_lshl_b32 s{sOff}, s{sOff}, 15"
    elif phm == 1: ph_code = f"s_lshl_b32 s{sOff}, s{sB}, 18"
    elif phm == 2: ph_code = f"s_lshl_b32 s{sOff}, s{sB}, {phb[0]}\ns_lshr_b32 s{sT[0]}, s{sI}, 4\ns_lshl_b32 s{sT[0]}, s{sT[0]}, {phb[1]}\ns_add_u32 s{sOff}, s{sOff}, s{sT[0]}"
    elif phm == 3: ph_code = f"s_lshl_b32 s{sOff}, s{sB}, 17"
    else:
        ph_code = (f"s_lshr_b32 s{sT[0]}, s{sI}, 1\ns_xor_b32 s{sT[0]}, s{sT[0]}, s{sI}\ns_and_b32 s{sT[0]}, s{sT[0]}, 1\ns_lshl_b32 s{sMask}, s{sT[0]}, 17\n"
                   + {4: f"s_lshr_b32 s{sT[0]}, s{sI}, 4\ns_xor_b32 s{sT[0]}, s{sT[0]}, s{sI}\ns_and_b32 s{sT[0]}, s{sT[0]}, 1\n",
                      5: f"s_mov_b32 s{sT[0]}, s{sB}\n", 6: f"s_and_b32 s{sT[0]}, s{sI}, 1\n"}[phm]
                   + f"s_lshl_b32 s{sT[0]}, s{sT[0]}, 18\ns_or_b32 s{sMask}, s{sMask}, s{sT[0]}\ns_mov_b32 s{sCnt}, 0\ns_mov_b32 s{sOff}, s{sMask}")
    a(f"""s_mov_b32 s{sH}, s{sHB}
          s_lshl_b32 s{sU}, s{sB}, 5
          s_add_u32 s{sU}, s{sU}, s{sH}
          s_lshl_b32 s{sU}, s{sU}, 2
          s_add_u32 s{sU}, s{sU}, s{sS}
          s_lshl_b32 s{sU}, s{sU}, 19
          {ph_code}
          s_mov_b32 s14, 0x80000
          s_mov_b32 s15, 0x00020000""")
    if xorph and table:
        a(f"""s_and_b32 s{sMask}, s98, 0x3c
              s_lshl_b32 s{sMask}, s{sMask}, 13
              s_mov_b32 s{sCnt}, 0
              s_mov_b32 s{sOff}, s{sMask}
              s_and_b32 s{sT[0]}, s98, 3
              s_lshl_b32 s{sT[0]}, s{sT[0]}, 13""")
        for k in range(8 // pat): a(f"v_xor_b32 v{vAd+k}, s{sT[0]}, v{vAd+k}")
    a(f"""s_waitcnt lgkmcnt(0)
          s_add_u32 s12, s{K_BK}, s{sU}
          s_addc_u32 s13, s{K_BK+1}, 0""")
    epoch_load()
    def touch_v():
        uid[0] += 1
        a(f"""s_cmp_eq_u32 s{sW}, 0
              s_cbranch_scc0 L_tv{uid[0]}
              s_add_u32 s20, s{K_BV}, s{sU}
              s_addc_u32 s21, s{K_BV+1}, 0
              s_mov_b32 s22, 0x80000
              s_mov_b32 s23, 0x00020000
              v_mov_b32 v{vU[2]}, 0
              s_mov_b64 exec, 1
              buffer_load_dword v{vU[3]}, v{vU[2]}, s[20:23], s{sOff} offen nt
              s_mov_b64 exec, -1
              L_tv{uid[0]}:""")
    if tlb & 1: touch_v()
    sstamp(1)
    issue(0, (0,) if g0free else (TF or TK), n0)
    for G in range(1, 4):
        if G < 3: sstamp(2 + G)
        if TF: issue(G, TF)
        elif G <= latefree:
            a(f"s_cmp_lt_u32 s{sX}, 4\ns_cbranch_scc1 L_s_f{G}")
            call(f"L_ISSV{G}")
            a(f"s_branch L_s_g{G}\nL_s_f{G}:")
            iss(0, G)
            a.label(f"L_s_g{G}")
        else: iss(0, G)
    stamp(1); sstamp(6)
    consts()
    epoch_tag()
    if not abl_noq: lds_wait(16, 1, "L_s_qwait", 1)
    a(f"""v_lshlrev_b32 v{vT[0]}, 4, v{vC}
          ds_read_b128 v[{vQ}:{vQ+3}], v{vT[0]} offset:{L_QB}
          s_waitcnt lgkmcnt(0)""")
    stamp(2)
    for c in range(3):
        if tlb & 2 and c == 2: touch_v()
        for G in range(4):
            call(f"L_KB{G}"); iss(c + 1, G)
        a(f"v_mov_b32 v{vS+2*c}, v{vZ0}\nv_mov_b32 v{vS+2*c+1}, v{vZ1}")
    a(f"s_add_u32 s12, s{K_BV}, s{sU}\ns_addc_u32 s13, s{K_BV+1}, 0")
    call("L_KB0"); iss(4, 0); call("L_KB1")
    a("s_waitcnt vmcnt(16)")
    call("L_KB2"); iss(4, 1)
    a("s_waitcnt vmcnt(16)")
    call("L_KB3")
    a(f"v_mov_b32 v{vS+6}, v{vZ0}\nv_mov_b32 v{vS+7}, v{vZ1}")
    stamp(3)
    for k in range(0, 8, 2): round_scores(vS + k, vS + k + 1, vT[0])
    a(f"""v_max3_f32 v{vM}, v{vS}, v{vS+1}, v{vS+2}
          v_max3_f32 v{vM}, v{vM}, v{vS+3}, v{vS+4}
          v_max3_f32 v{vM}, v{vM}, v{vS+5}, v{vS+6}
          v_max_f32 v{vM}, v{vM}, v{vS+7}""")
    wave_allreduce("v_max_f32", vM, vT[0])
    iss(4, 2)
    for k in range(8): a(f"v_sub_f32 v{vS+k}, v{vS+k}, v{vM}")
    for k in range(8): a(f"v_mul_f32 v{vS+k}, s{sLog2e}, v{vS+k}")
    for k in range(8): a(f"v_exp_f32 v{vS+k}, v{vS+k}")
    a(f"v_add_f32 v{vL}, v{vS}, v{vS+1}")
    for k in range(2, 8): a(f"v_add_f32 v{vL}, v{vL}, v{vS+k}")
    if not fastend:
        for k in range(8): a(f"v_cvt_pk_bf16_f32 v{vS+k}, v{vS+k}, 0")
    wave_allreduce("v_add_f32", vL, vT[0])
    if fastend:
        a(f"v_rcp_f32 v{vT[0]}, v{vL}")
        for k in range(8): a(f"v_mul_f32 v{vS+k}, v{vS+k}, v{vT[0]}")
        for k in range(8): a(f"v_cvt_pk_bf16_f32 v{vS+k}, v{vS+k}, 0")
    a(f"""s_add_u32 s{sPub}, s{sH}, 32
          s_lshl_b32 s{sPub}, s{sPub}, 1
          s_add_u32 s{sPub}, s{sPub}, s{sB}
          s_lshl_b32 s{sPub}, s{sPub}, 2
          s_add_u32 s{sPub}, s{sPub}, s{sS}
          s_lshl_b32 s{sPubO}, s{sPub}, 11
          s_add_u32 s{sPubO}, s{sPubO}, {WS_PB - (256 << 11)}
          s_lshl_b32 s{sPub}, s{sPub}, 2
          s_add_u32 s{sPub}, s{sPub}, s{sW}
          s_mul_i32 s{sPub}, s{sPub}, {REC}
          s_add_u32 s{sPub}, s{sPub}, {WS_PART}
          s_mov_b32 s{sShift}, 6""")
    call("L_PUBML")
    iss(4, 3)
    for k in range(8): a(f"v_mov_b32 v{vAcc+k}, 0")
    stamp(4)
    a(f"""s_lshl_b32 s{sT[0]}, s{sW}, 4
          s_add_u32 s{sPubO}, s{sPubO}, s{sT[0]}
          v_lshrrev_b32 v{vU[3]}, 1, v{vG}
          v_lshlrev_b32 v{vU[3]}, 4, v{vU[3]}
          v_add_lshl_u32 v{vU[3]}, v{vU[3]}, v{vC}, 6""")
    if vboost: a(f"s_mov_b64 vcc, {-1 if vboost == 1 else 0}")
    if latemask2 is not None: a(f"s_lshr_b32 vcc_lo, {latemask2}, s{sX}\ns_and_b32 vcc_lo, vcc_lo, 1")
    issued, done = 4, 0
    def ws(k):
        if k % 2 == 0: a(f"v_mov_b32 v{vP + (k % 4) // 2}, v{vS + k // 2}")
        if k == preg:
            assert preg + 2 <= midg
            a(f"""v_not_b32 v{vt+1}, s{sTag}
                  v_not_b32 v{vt+3}, s{sTag+1}
                  s_mul_i32 s{sT[0]}, s{sW}, 496
                  v_lshl_add_u32 v{vT[0]}, v{vLane}, 4, s{sT[0]}
                  s_mov_b32 exec_hi, 0
                  buffer_store_dwordx4 v[{vt}:{vt+3}], v{vT[0]}, s[16:19], s{sPubO} offen {stf}
                  s_mov_b32 exec_hi, -1""")
        if k == midg: a("s_barrier")
        if k == 15:
            call("L_WS3L"); return
        a(f"s_waitcnt vmcnt({8 * (issued - k - 1)})")
        call(f"L_WS{k % 4}")
    while issued < 16:
        fast = issued >= 16 - (rmax if rank else nfast)
        want = (endlag if fast else lag)
        n = 0
        while done <= issued - 4 or (done < issued - want + 1 and n < 2 and done < issued - 1):
            ws(done); done += 1; n += 1
        left = 16 - issued
        if rank and left <= rmax:
            if left == rmax:
                a(f"""v_mov_b32 v{vU[0]}, {L_CNT + 20}
                      ds_read_b32 v{vU[1]}, v{vU[0]}
                      s_waitcnt lgkmcnt(0)
                      v_readfirstlane_b32 s{sHH}, v{vU[1]}
                      s_cmp_eq_u32 s{sHH}, 0
                      s_cselect_b32 s{sHH}, 19, s{sHH}""")
            a(f"s_cmp_ge_u32 s{sHH}, {16 + left}\ns_cbranch_scc1 L_s_v{left}")
            call(f"L_ISSK{issued % 4}")
            a(f"s_branch L_s_w{left}\nL_s_v{left}:")
            call(f"L_ISSV{issued % 4}")
            a.label(f"L_s_w{left}")
        else: call(f"L_ISS{'V' if (fast and two) else 'K'}{issued % 4}")
        issued += 1
        if ya == "flag" and issued == yag:
            a(f"v_mov_b32 v{vU[0]}, {L_CNT + 24}\nv_mov_b32 v{vU[1]}, 1\nds_write_b32 v{vU[0]}, v{vU[1]}")
    if early_bar: a("s_barrier")
    while done < 16:
        ws(done); done += 1
    stamp(5)
    if fastend:
        for e in range(4): a(f"v_permlane32_swap_b32 v{vAcc+e}, v{vAcc+e+4}")
        for e in range(4): a(f"v_add_f32 v{vAcc+e}, v{vAcc+e}, v{vAcc+e+4}")
        for e in range(2): a(f"v_permlane16_swap_b32 v{vAcc+e}, v{vAcc+e+2}")
        for e in range(2): a(f"v_add_f32 v{vAcc+e}, v{vAcc+e}, v{vAcc+e+2}")
        a(f"""v_cvt_pk_bf16_f32 v{vG4}, v{vAcc}, v{vAcc+1}
              v_cvt_pk_bf16_f32 v{vG4+2}, v{vAcc}, v{vAcc+1}
              v_permlane16_swap_b32 v{vG4}, v{vG4+2}
              s_mov_b32 exec_lo, 0xffff
              s_mov_b32 exec_hi, 0xffff
              buffer_store_dwordx4 v[{vG4}:{vG4+3}], v{vU[3]}, s[16:19], s{sPubO} offen {stf}
              s_mov_b64 exec, -1""")
    else:
        call("L_RED8")
        call("L_PUBPART")
    stamp(6)
    if not early_bar: a("s_barrier")
    if ya == "s0" and not abl_noA:
        a(f"""s_cmp_eq_u32 s{sW}, 0
              s_cbranch_scc0 L_exit
              s_mov_b32 s{sBr}, 0""")
        call("L_PUBY")
    a("s_branch L_exit")

    in_stream[0] = False
    for nm, tp in ((("K", TK), ("V", TV)) if two else (("K", TK),)):
        for G in range(4):
            a.label(f"L_ISS{nm}{G}")
            issue(G, tp); ret()

    for G in range(4):
        a.label(f"L_KB{G}")
        for s in range(8): a(f"v_mov_b32 v{vt+s}, 0")
        for j in range(4):
            for s in range(8): a(f"v_dot2c_f32_bf16 v{vt+s}, v{slot(G, s)+j}, v{vQ+j}")
        for k in range(4):
            a(f"v_add_f32_dpp v{vt+k}, v{vt+k}, v{vt+k} row_mirror row_mask:0xf bank_mask:0x3")
        for k in range(4):
            a(f"v_add_f32_dpp v{vt+k}, v{vt+k+4}, v{vt+k+4} row_mirror row_mask:0xf bank_mask:0xc")
        for k in range(2):
            a(f"v_add_f32_dpp v{vt+k}, v{vt+k}, v{vt+k} row_half_mirror row_mask:0xf bank_mask:0x5")
        for k in range(2):
            a(f"v_add_f32_dpp v{vt+k}, v{vt+k+2}, v{vt+k+2} row_half_mirror row_mask:0xf bank_mask:0xa")
        for k in range(2):
            a(f"v_add_f32_dpp v{vt+k}, v{vt+k}, v{vt+k} quad_perm:[2,3,0,1] row_mask:0xf bank_mask:0xf")
        a(f"v_cndmask_b32 v{vt}, v{vt}, v{vt+1}, s[{sMc1}:{sMc1+1}]")
        if G % 2 == 0:
            a(f"v_add_f32_dpp v{vZA}, v{vt}, v{vt} quad_perm:[1,0,3,2] row_mask:0xf bank_mask:0xf")
        else:
            a(f"v_add_f32_dpp v{vt}, v{vt}, v{vt} quad_perm:[1,0,3,2] row_mask:0xf bank_mask:0xf")
            a(f"v_cndmask_b32 v{vZ0 + G // 2}, v{vZA}, v{vt}, s[{sMc0}:{sMc0+1}]")
        ret()

    for G, last in ((0, False), (1, False), (2, False), (3, False), (3, True)):
        a.label(f"L_WS{G}" + ("L" if last else ""))
        a("s_nop 1")
        for s in range(8):
            r = slot(G, s)
            a(f"v_mov_b32_dpp v{vLo}, v{vP + G // 2} row_newbcast:{2*s + (G & 1)} row_mask:0xf bank_mask:0xf")
            a(f"v_lshlrev_b32 v{vHi}, 16, v{vLo}")
            if last: a(f"s_waitcnt vmcnt({7-s})")
            for j in range(4):
                a(f"v_dot2c_f32_bf16 v{vAcc+2*j}, v{r+j}, v{vLo}")
                a(f"v_dot2c_f32_bf16 v{vAcc+2*j+1}, v{r+j}, v{vHi}")
        a("s_nop 1")
        ret()

    a.label("L_RED8")
    a("s_nop 1")
    for e in range(4): a(f"v_permlane32_swap_b32 v{vAcc+e}, v{vAcc+e+4}")
    for e in range(4): a(f"v_add_f32 v{vAcc+e}, v{vAcc+e}, v{vAcc+e+4}")
    for e in range(2): a(f"v_permlane16_swap_b32 v{vAcc+e}, v{vAcc+e+2}")
    for e in range(2): a(f"v_add_f32 v{vAcc+e}, v{vAcc+e}, v{vAcc+e+2}")
    ret()

    a.label("L_PUBML")
    a(f"""v_mov_b32 v{vG4}, v{vM}
          v_mov_b32 v{vG4+1}, s{sTag}
          v_mov_b32 v{vG4+2}, v{vL}
          v_mov_b32 v{vG4+3}, s{sTag+1}
          v_lshlrev_b32 v{vT[0]}, 4, v{vLane}
          s_mov_b64 exec, 0xff
          buffer_store_dwordx4 v[{vG4}:{vG4+3}], v{vT[0]}, s[16:19], s{sPub} offen offset:512 {stf}
          s_mov_b64 exec, -1
          s_nop 0""")
    ret()

    a.label("L_PUBPART")
    a(f"""v_rcp_f32 v{vT[0]}, v{vL}
          v_lshrrev_b32 v{vT[1]}, 1, v{vG}
          v_lshlrev_b32 v{vT[1]}, 4, v{vT[1]}
          v_add_lshl_u32 v{vT[1]}, v{vT[1]}, v{vC}, s{sShift}
          v_mul_f32 v{vAcc}, v{vAcc}, v{vT[0]}
          v_mul_f32 v{vAcc+1}, v{vAcc+1}, v{vT[0]}
          v_cvt_pk_bf16_f32 v{vG4}, v{vAcc}, v{vAcc+1}
          v_mov_b32 v{vG4+1}, s{sTag}
          v_mov_b32 v{vG4+2}, v{vG4}
          v_mov_b32 v{vG4+3}, s{sTag+1}
          v_permlane16_swap_b32 v{vG4}, v{vG4+2}
          s_mov_b32 exec_lo, 0xffff
          s_mov_b32 exec_hi, 0xffff
          buffer_store_dwordx4 v[{vG4}:{vG4+3}], v{vT[1]}, s[16:19], s{sPubO} offen {stf}
          s_mov_b64 exec, -1
          s_nop 0""")
    ret()

    a.label("L_PUBY")
    a(f"""s_lshl_b32 s{sT[0]}, s{sBr}, 11
          v_lshl_add_u32 v{vT[0]}, v{vLane}, 3, s{sT[0]}""")
    for k in range(4): a(f"ds_read_b64 v[{vt+2*k}:{vt+2*k+1}], v{vT[0]} offset:{L_YR + 512*k}")
    a(f"""s_lshl_b32 s{sT[0]}, s{sBr}, 3
          s_add_u32 s{sT[1]}, s{sT[0]}, s{sR}
          s_lshl_b32 s{sT[1]}, s{sT[1]}, 5
          s_add_u32 s{sT[1]}, s{sT[1]}, s{sHA}
          s_lshl_b32 s{sT[1]}, s{sT[1]}, 10
          s_add_u32 s{sT[1]}, s{sT[1]}, {WS_Y}
          v_lshlrev_b32 v{vT[1]}, 4, v{vLane}
          v_mov_b32 v{vG4+1}, s{sTag}
          v_mov_b32 v{vG4+3}, s{sTag+1}
          s_waitcnt lgkmcnt(0)
          v_add_f32 v{vG4}, v{vt}, v{vt+2}
          v_add_f32 v{vG4+2}, v{vt+1}, v{vt+3}
          v_add_f32 v{vt+4}, v{vt+4}, v{vt+6}
          v_add_f32 v{vt+5}, v{vt+5}, v{vt+7}
          v_add_f32 v{vG4}, v{vG4}, v{vt+4}
          v_add_f32 v{vG4+2}, v{vG4+2}, v{vt+5}
          buffer_store_dwordx4 v[{vG4}:{vG4+3}], v{vT[1]}, s[16:19], s{sT[1]} offen {yst}
          s_nop 0""")
    ret()

    a.label("L_QC")
    a(f"""v_lshlrev_b32 v{vO0}, 4, v{vLane}
          v_add_u32 v{vO1}, 0x1000, v{vO0}
          s_add_u32 s{sT[1]}, s{sT[1]}, {WS_QP}
          s_mov_b32 s{sSpin}, {SPIN}
          {"" if bhint else f"s_cmp_eq_u32 s{sBr}, 0"}
          {"" if bhint else "s_cbranch_scc0 L_QC_poll"}
          v_and_b32 v{vT[0]}, 7, v{vLane}
          v_lshlrev_b32 v{vT[0]}, 10, v{vT[0]}""")
    a.label("L_QC_hint")
    if narrow: a("s_mov_b64 exec, 0xff")
    a(f"""buffer_load_dwordx4 v[{vRing}:{vRing+3}], v{vT[0]}, s[16:19], s{sT[1]} offen offset:1008 {hf or ldf}
          s_waitcnt vmcnt(0)""")
    tagcheck([vRing], "L_QC_hint", "L_QC_hok", True, narrow, 24)
    a(f"s_mov_b32 s{sSpin}, {SPIN}")
    a.label("L_QC_poll")
    for p in range(8):
        r = vRing + 4 * p
        if qser and p >= qser: a(f"s_waitcnt vmcnt({qser - 1})")
        a(f"buffer_load_dwordx4 v[{r}:{r+3}], v{vO0 + (p >> 2)}, s[16:19], s{sT[1]} offen offset:{(p & 3) * 1024} {ldf}")
    a("s_waitcnt vmcnt(0)")
    tagcheck([vRing + 4 * p for p in range(8)], "L_QC_poll", "L_QC_ok", patience=24)
    for p in range(1, 8):
        a(f"v_add_f32 v{vRing}, v{vRing}, v{vRing+4*p}\nv_add_f32 v{vRing+2}, v{vRing+2}, v{vRing+4*p+2}")
    a(f"""v_cvt_pk_bf16_f32 v{vT[0]}, v{vRing}, v{vRing+2}
          v_lshl_add_u32 v{vT[1]}, v{vC}, 2, v{vG}
          v_lshlrev_b32 v{vT[1]}, 2, v{vT[1]}
          v_add_u32 v{vT[1]}, s{sT[2]}, v{vT[1]}
          ds_write_b32 v{vT[1]}, v{vT[0]}""")
    ret()

    def kva_block():
        a(f"""s_lshr_b32 s{sT[0]}, s{sI}, 4
              s_lshl_b32 s{sT[0]}, s{sT[0]}, 3
              s_add_u32 s{sT[0]}, s{sT[0]}, s{sX}
              s_lshl_b32 s{sOff}, s{sT[0]}, 21
              s_and_b32 s{sT[0]}, s{sI}, 15
              s_lshl_b32 s{sT[0]}, s{sT[0]}, 15
              s_add_u32 s{sOff}, s{sOff}, s{sT[0]}
              s_add_u32 s{sOff}, s{sOff}, {6144*256}
              s_mov_b32 s14, 0x2000000""")
        addr_setup(pata, wxa)
        a(f"""s_mov_b32 s12, s{K_AK}
              s_mov_b32 s13, s{K_AK+1}
              s_mov_b32 s20, s{K_AV}
              s_mov_b32 s21, s{K_AV+1}
              s_mov_b32 s22, 0x2000000""")
        if kvdelay:
            a(f"s_cmp_eq_u32 s{sW}, 1\ns_cbranch_scc0 L_h_A3")
            qb_consume()
            a.label("L_h_A3")
            lds_wait(16, 1, "L_h_kvw", 2)
        order = [(G, s) for s in range(8) for G in (2, 3)] if kvi else [(G, s) for G in (2, 3) for s in range(8)]
        for G, s in ([] if abl_Akv else order):
            r = slot(G, s)
            if TH: a(f"s_waitcnt vmcnt({TH - 1})")
            va, imm = addr(s, pata)
            a(f"buffer_load_dwordx4 v[{r}:{r+3}], v{va}, s[{12 if G == 2 else 20}:{15 if G == 2 else 23}], s{sOff} offen offset:{imm} nt")
    def wo_early():
        a(f"""v_lshlrev_b32 v{vU[0]}, 13, v{vG}
              v_lshl_add_u32 v{vU[0]}, v{vC}, 3, v{vU[0]}
              v_add_u32 v{vU[1]}, 0x1000, v{vU[0]}
              s_mov_b32 s14, 0x400000""")
        for base, p, hreg in ((vRaw, K_AWO, sHA), (vRaw2, K_BWO, sHB)):
            a(f"""s_lshl_b32 s{sT[1]}, s{hreg}, 2
                  s_add_u32 s{sT[1]}, s{sT[1]}, s{sW}
                  s_lshl_b32 s{sT[1]}, s{sT[1]}, 15
                  s_lshl_b32 s{sT[0]}, s{sR}, 7
                  s_add_u32 s{sT[1]}, s{sT[1]}, s{sT[0]}
                  s_mov_b32 s12, s{p}
                  s_mov_b32 s13, s{p+1}""")
            for e in range(8):
                a(f"buffer_load_dwordx2 v[{base+2*e}:{base+2*e+1}], v{vU[e >> 2]}, s[12:15], s{sT[1]} offen offset:{(e & 3) * 1024} nt")
    a.label("L_helper2")
    if wostart == 1: wo_early()
    if aearly: kva_block()
    if aearly == 2: a("s_barrier")
    consts()
    a(f"""s_mov_b32 s{sSel0}, 0x05040100
          s_mov_b32 s{sSel1}, 0x07060302
          v_lshlrev_b32 v{vO0}, 4, v{vLane}""")
    if tlb & 4:
        a(f"""s_cmp_eq_u32 s{sW}, 3
              s_cbranch_scc0 L_h_notlb
              v_mov_b32 v{vU[2]}, 0
              s_lshl_b32 s{sT[0]}, s{sHA}, 17
              s_mov_b32 s22, 0x400000
              s_mov_b64 exec, 1
              s_mov_b32 s20, s{K_AWO}
              s_mov_b32 s21, s{K_AWO+1}
              buffer_load_dword v{vU[3]}, v{vU[2]}, s[20:23], s{sT[0]} offen nt
              s_mov_b32 s20, s{K_BWO}
              s_mov_b32 s21, s{K_BWO+1}
              buffer_load_dword v{vU[3]}, v{vU[2]}, s[20:23], s{sT[0]} offen nt
              s_mov_b32 s{sT[0]}, {WS_PB - 4096}
              buffer_load_dword v{vU[3]}, v{vU[2]}, s[16:19], s{sT[0]} offen nt
              s_mov_b32 s20, s{K_OUT}
              s_mov_b32 s21, s{K_OUT+1}
              s_mov_b32 s22, 4096
              buffer_load_dword v{vU[3]}, v{vU[2]}, s[20:23], 0 offen nt
              s_mov_b64 exec, -1
              L_h_notlb:""")
    epoch_tag()
    if nodup: a(f"s_bitcmp1_b32 s{sW}, 0\ns_cbranch_scc1 L_h_qdone\ns_mov_b32 s{sHH}, 0")
    else: a(f"s_and_b32 s{sHH}, s{sW}, 1")
    a(f"s_waitcnt vmcnt({(16 if aearly else 0) + (16 if wostart == 1 else 0)})")
    stamp(1)
    a.label("L_h_qloop")
    for k in range(8): a(f"v_mov_b32 v{vAcc+k}, 0")
    call("L_WS0"); call("L_WS1"); call("L_RED8")
    a(f"""s_lshr_b32 s{sT[0]}, s{sW}, 1
          s_xor_b32 s{sT[0]}, s{sT[0]}, 1
          s_lshl_b32 s{sT[0]}, s{sT[0]}, 5
          s_add_u32 s{sT[0]}, s{sT[0]}, s{sH}
          s_lshl_b32 s{sT[0]}, s{sT[0]}, 1
          s_add_u32 s{sT[0]}, s{sT[0]}, s{sHH}
          s_lshl_b32 s{sT[0]}, s{sT[0]}, 3
          s_add_u32 s{sT[0]}, s{sT[0]}, s{sR}
          s_lshl_b32 s{sT[0]}, s{sT[0]}, 10
          s_add_u32 s{sT[0]}, s{sT[0]}, {WS_QP}
          v_mov_b32 v{vG4}, v{vAcc}
          v_mov_b32 v{vG4+1}, s{sTag}
          v_mov_b32 v{vG4+2}, v{vAcc+1}
          v_mov_b32 v{vG4+3}, s{sTag+1}
          """)
    if abl_Ast: a(f"s_cmp_eq_u32 s{sW}, 0\ns_cbranch_scc0 L_h_nost")
    a(f"buffer_store_dwordx4 v[{vG4}:{vG4+3}], v{vO0}, s[16:19], s{sT[0]} offen {stf}")
    if abl_dbl:
        a(f"s_add_u32 s{sT[0]}, s{sT[0]}, {8 << 20}\nbuffer_store_dwordx4 v[{vG4}:{vG4+3}], v{vO0}, s[16:19], s{sT[0]} offen {stf}")
    a.label("L_h_nost")
    if nodup:
        a(f"""v_mov_b32 v{vP}, v{vP+1}
              s_add_u32 s{sHH}, s{sHH}, 1
              s_cmp_lt_u32 s{sHH}, 2
              s_cbranch_scc1 L_h_qloop""")
    a.label("L_h_qdone")
    stamp(2)
    def qb_consume():
        a(f"""s_add_u32 s{sT[1]}, s{sHB}, 32
              s_lshl_b32 s{sT[1]}, s{sT[1]}, 1
              s_add_u32 s{sT[1]}, s{sT[1]}, s{sB}
              s_lshl_b32 s{sT[1]}, s{sT[1]}, 13
              s_mov_b32 s{sT[2]}, {L_QB}
              s_mov_b32 s{sBr}, 1""")
        call("L_QC")
        a(f"""v_mov_b32 v{vU[0]}, {L_CNT + 16}
              v_mov_b32 v{vU[1]}, 1
              ds_write_b32 v{vU[0]}, v{vU[1]}""")
    if not nodup or abl_noA or qb0:
        a(f"s_cmp_eq_u32 s{sW}, 0\ns_cbranch_scc0 L_h_A")
        qb_consume()
    a.label("L_h_A")
    if not nodup: stamp(3)
    if abl_noA: a(f"s_mov_b32 s{sBr}, 1\ns_branch L_FIN")
    if wostart == 2: wo_early()
    if not aearly: kva_block()
    if wostart == 3: wo_early()
    if late2 and NSTUB > 8:
        for k in range(8, NSTUB): a(f"s_cmp_eq_u32 s{sW}, {(k - 8 + 2) % 4}\ns_cbranch_scc1 L_stub{k}")
        a.label("L_back1")
    if nodup and not kvdelay and not qb0:
        a(f"s_cmp_eq_u32 s{sW}, 1\ns_cbranch_scc0 L_h_A2")
        qb_consume()
        a.label("L_h_A2")
        stamp(3)
    a(f"""s_mov_b32 s{sBr}, 0
          s_lshl_b32 s{sU}, s{sX}, 2
          s_add_u32 s{sU}, s{sU}, s{sW}
          s_lshl_b32 s{sU}, s{sU}, 1
          s_lshr_b32 s{sT[0]}, s{sI}, 4
          s_add_u32 s{sU}, s{sU}, s{sT[0]}
          s_lshl_b32 s{sT[1]}, s{sU}, 13
          s_lshl_b32 s{sT[2]}, s{sW}, 8
          s_add_u32 s{sT[2]}, s{sT[2]}, {L_QA}""")
    if not (abl_Apoll or abl_qca): call("L_QC")
    else: a("s_waitcnt vmcnt(0)")
    helper_sync(0, "L_hs0")
    a(f"s_mov_b32 s{sHH}, 0")
    if abl_Acomp: a("s_branch L_A_done")
    a.label("L_A_loop")
    a(f"""s_lshl_b32 s{sT[0]}, s{sHH}, 8
          v_lshlrev_b32 v{vT[0]}, 4, v{vC}
          v_add_u32 v{vT[0]}, s{sT[0]}, v{vT[0]}
          ds_read_b128 v[{vQ}:{vQ+3}], v{vT[0]} offset:{L_QA}
          s_waitcnt lgkmcnt(0)""")
    call("L_KB2")
    a(f"v_mov_b32 v{vS+1}, v{vZA}\nv_mov_b32 v{vS}, v{vZA}")
    round_scores(vS, vS + 1, vT[0])
    a(f"v_mov_b32 v{vM}, v{vS}")
    wave_allreduce("v_max_f32", vM, vT[0])
    a(f"""v_sub_f32 v{vS}, v{vS}, v{vM}
          v_mul_f32 v{vS}, s{sLog2e}, v{vS}
          v_exp_f32 v{vS}, v{vS}
          v_mul_f32 v{vL}, 0.5, v{vS}
          v_cvt_pk_bf16_f32 v{vP+1}, v{vS}, 0""")
    wave_allreduce("v_add_f32", vL, vT[0])
    for k in range(8): a(f"v_mov_b32 v{vAcc+k}, 0")
    call("L_WS3L"); call("L_RED8")
    a(f"""s_lshl_b32 s{sT[0]}, s{sHH}, 2
          s_add_u32 s{sT[0]}, s{sT[0]}, s{sW}
          s_lshl_b32 s{sT[1]}, s{sT[0]}, 9
          s_lshl_b32 s{sT[0]}, s{sT[0]}, 3
          v_lshlrev_b32 v{vT[0]}, 3, v{vLane}
          v_add_u32 v{vT[0]}, s{sT[1]}, v{vT[0]}
          v_mov_b32 v{vT[1]}, s{sT[0]}
          ds_write_b64 v{vT[0]}, v[{vAcc}:{vAcc+1}] offset:{L_OA}
          s_mov_b64 exec, 1
          ds_write_b64 v{vT[1]}, v[{vM}:{vM+1}] offset:{L_MLA}
          s_mov_b64 exec, -1
          s_add_u32 s{sHH}, s{sHH}, 1
          s_cmp_lt_u32 s{sHH}, 4
          s_cbranch_scc1 L_A_loop""")
    a.label("L_A_done")
    helper_sync(4, "L_hs1")
    a(f"""s_lshl_b32 s{sT[0]}, s{sW}, 5
          v_mov_b32 v{vT[1]}, s{sT[0]}
          s_lshl_b32 s{sT[1]}, s{sW}, 11
          v_lshlrev_b32 v{vT[0]}, 3, v{vLane}
          v_add_u32 v{vT[0]}, s{sT[1]}, v{vT[0]}
          ds_read_b128 v[{R0}:{R0+3}], v{vT[1]} offset:{L_MLA}
          ds_read_b128 v[{R0+4}:{R0+7}], v{vT[1]} offset:{L_MLA+16}""")
    for k in range(4): a(f"ds_read_b64 v[{R0+8+2*k}:{R0+9+2*k}], v{vT[0]} offset:{L_OA + 512*k}")
    a(f"""s_waitcnt lgkmcnt(0)
          v_max3_f32 v{vM}, v{R0}, v{R0+2}, v{R0+4}
          v_max_f32 v{vM}, v{vM}, v{R0+6}""")
    for k in range(4): a(f"v_sub_f32 v{R0+2*k}, v{R0+2*k}, v{vM}")
    for k in range(4): a(f"v_mul_f32 v{R0+2*k}, s{sLog2e}, v{R0+2*k}")
    for k in range(4): a(f"v_exp_f32 v{R0+2*k}, v{R0+2*k}")
    a(f"""v_mul_f32 v{vL}, v{R0}, v{R0+1}
          v_mul_f32 v{vAcc}, v{R0}, v{R0+8}
          v_mul_f32 v{vAcc+1}, v{R0}, v{R0+9}""")
    for k in range(1, 4):
        a(f"""v_fmac_f32 v{vL}, v{R0+2*k}, v{R0+2*k+1}
              v_fmac_f32 v{vAcc}, v{R0+2*k}, v{R0+8+2*k}
              v_fmac_f32 v{vAcc+1}, v{R0+2*k}, v{R0+9+2*k}""")
    a(f"""s_lshl_b32 s{sPub}, s{sU}, 4
          s_and_b32 s{sT[0]}, s{sI}, 15
          s_add_u32 s{sPub}, s{sPub}, s{sT[0]}
          s_mul_i32 s{sPub}, s{sPub}, {REC}
          s_add_u32 s{sPub}, s{sPub}, {WS_PART}
          s_mov_b32 s{sPubO}, s{sPub}
          s_mov_b32 s{sShift}, 4""")
    if not abl_Ast: call("L_PUBPART"); call("L_PUBML")
    stamp(4)

    a.label("L_FIN")
    a(f"""s_cmp_eq_u32 s{sBr}, 0
          s_cselect_b32 s12, s{K_AWO}, s{K_BWO}
          s_cselect_b32 s13, s{K_AWO+1}, s{K_BWO+1}
          s_cselect_b32 s{sH}, s{sHA}, s{sHB}
          s_mov_b32 s14, 0x400000
          v_lshlrev_b32 v{vO0}, 13, v{vG}
          v_lshl_add_u32 v{vO0}, v{vC}, 3, v{vO0}
          v_add_u32 v{vO1}, 0x1000, v{vO0}
          s_lshl_b32 s{sOff}, s{sH}, 2
          s_add_u32 s{sOff}, s{sOff}, s{sW}
          s_lshl_b32 s{sOff}, s{sOff}, 15
          s_lshl_b32 s{sT[0]}, s{sR}, 7
          s_add_u32 s{sOff}, s{sOff}, s{sT[0]}""")
    PB = vRing
    vA0 = vLo
    a(f"""s_lshl_b32 s{sU}, s{sBr}, 5
          s_add_u32 s{sU}, s{sU}, s{sH}
          s_mul_i32 s{sT[1]}, s{sU}, {32 * REC}
          s_add_u32 s{sT[1]}, s{sT[1]}, {WS_PART}
          v_and_b32 v{vT[2]}, 31, v{vLane}
          v_mul_u32_u24 v{vT[3]}, {REC}, v{vT[2]}
          s_mov_b32 s{sSpin}, {SPIN}
          s_cmp_eq_u32 s{sBr}, 0
          s_cbranch_scc0 L_F_addrB
          s_lshl_b32 s{sT[0]}, s{sW}, 6
          s_add_u32 s{sP[0]}, s{sT[1]}, s{sT[0]}
          s_add_u32 s{sP[1]}, s{sP[0]}, 256
          s_add_u32 s{sP[2]}, s{sP[0]}, {16 * REC}
          s_add_u32 s{sP[3]}, s{sP[0]}, {16 * REC + 256}
          """)
    if acoal:
        a(f"""v_lshrrev_b32 v{vA0}, 2, v{vLane}
              v_mul_u32_u24 v{vA0}, {REC}, v{vA0}
              v_and_b32 v{vT[0]}, 3, v{vLane}
              v_lshl_add_u32 v{vA0}, v{vT[0]}, 4, v{vA0}""")
    else:
        a(f"""v_mul_u32_u24 v{vA0}, {REC}, v{vC}
              v_lshl_add_u32 v{vA0}, v{vG}, 4, v{vA0}""")
    if abl_Apoll: a(f"s_mov_b32 s{sBr}, 1\ns_branch L_FIN")
    a("s_branch L_F_ml0")
    a.label("L_F_addrB")
    a(f"""s_lshl_b32 s{sP[0]}, s{sH}, 14
          s_lshl_b32 s{sT[0]}, s{sW}, 8
          s_add_u32 s{sP[0]}, s{sP[0]}, s{sT[0]}
          s_add_u32 s{sP[0]}, s{sP[0]}, {WS_PB}
          s_add_u32 s{sP[1]}, s{sP[0]}, 1024
          s_add_u32 s{sP[2]}, s{sP[0]}, 8192
          s_add_u32 s{sP[3]}, s{sP[0]}, 9216
          v_lshrrev_b32 v{vA0}, 2, v{vC}
          v_lshlrev_b32 v{vA0}, 11, v{vA0}
          v_and_b32 v{vT[0]}, 3, v{vC}
          v_lshl_add_u32 v{vA0}, v{vT[0]}, 4, v{vA0}
          v_lshl_add_u32 v{vA0}, v{vG}, 6, v{vA0}
          s_waitcnt lgkmcnt(0)""")
    if wostart:
        for k in range(16): a(f"v_mov_b32 v{vRaw+k}, v{vRaw2+k}")
    stamp(6)
    a("s_barrier")
    if ya == "mid" and not abl_noA:
        a(f"""s_cmp_eq_u32 s{sW}, 3
              s_cbranch_scc0 L_F_noya
              s_mov_b32 s{sT[3]}, s{sT[1]}
              s_mov_b32 s{sBr}, 0""")
        call("L_PUBY")
        a(f"s_mov_b32 s{sBr}, 1\ns_mov_b32 s{sT[1]}, s{sT[3]}\nL_F_noya:")
    if xt8: xb_code = f"s_lshl_b32 s{sT[3]}, s{sX}, 2\ns_lshr_b32 s{sT[3]}, {sum(v << (4 * k) for k, v in enumerate(xt8))}, s{sT[3]}\ns_and_b32 s{sT[3]}, s{sT[3]}, 15"
    else: xb_code = f"s_lshr_b32 s{sT[3]}, s{sX}, 2\ns_mul_i32 s{sT[3]}, s{sT[3]}, {xb}"
    if rank:
        a(f"s_cmp_eq_u32 s{sW}, 0\ns_cbranch_scc0 L_F_ml0")
        if rank == "m":
            a(f"""s_lshl_b32 s{sT[0]}, s{sX}, 12
                  s_add_u32 s{sT[0]}, s{sT[0]}, {WS_MK}
                  v_and_b32 v{vU[0]}, 31, v{vLane}
                  v_lshlrev_b32 v{vU[0]}, 7, v{vU[0]}
                  v_add_u32 v{vU[1]}, {WS_GM}, v{vU[0]}
                  v_add_u32 v{vU[0]}, s{sT[0]}, v{vU[0]}
                  s_lshl_b32 s{sT[3]}, s{sI}, 7
                  s_add_u32 s{sT[3]}, s{sT[3]}, s{sT[0]}
                  v_mov_b32 v{vG4+2}, s{sTag}
                  v_mov_b32 v{vG4+3}, s{sTag+1}""")
            if gw: a(f"s_mov_b32 exec_lo, 0\nv_mov_b32 v{vU[0]}, v{vU[1]}\ns_mov_b32 exec_lo, -1")
            else: a("s_mov_b32 exec_hi, 0")
            if not gdelay: a(f"buffer_load_dword v{vG4}, v{vU[0]}, s[16:19], 0 offen {gld}")
            a(f"""v_lshlrev_b32 v{vU[1]}, 3, v{vLane}
                  s_mov_b64 exec, 0xffff
                  buffer_store_dwordx2 v[{vG4+2}:{vG4+3}], v{vU[1]}, s[16:19], s{sT[3]} offen""")
            if gw or gx:
                a(f"""s_cmp_eq_u32 s{sR}, 5
                      s_cbranch_scc0 L_F_nogm
                      s_lshl_b32 s{sT[3]}, s{sHA}, 7
                      s_add_u32 s{sT[3]}, s{sT[3]}, {WS_GM}
                      buffer_store_dwordx2 v[{vG4+2}:{vG4+3}], v{vU[1]}, s[16:19], s{sT[3]} offen sc1
                      L_F_nogm:""")
            a("s_mov_b64 exec, -1")
            if gdelay: a(f"s_sleep {gdelay}\nbuffer_load_dword v{vG4}, v{vU[0]}, s[16:19], 0 offen {gld}")
            a(f"""s_waitcnt vmcnt(0)
                  v_cmp_eq_u32 vcc, s{sTag}, v{vG4}
                  s_nop 1
                  s_bcnt1_i32_b32 s{sT[0]}, vcc_lo""")
            if gw:
                a(f"s_bcnt1_i32_b32 s{sT[3]}, vcc_hi")
                if diag: a(f"s_mov_b32 s56, s{sT[3]}\ns_mov_b32 s57, 0")
                a(f"""s_mul_i32 s{sT[3]}, s{sT[3]}, {gw}
                      s_mul_i32 s{sT[0]}, s{sT[0]}, {4 - gw}
                      s_add_u32 s{sT[0]}, s{sT[0]}, s{sT[3]}
                      s_lshl_b32 s{sT[0]}, s{sT[0]}, 1
                      s_add_u32 s{sT[0]}, s{sT[0]}, {gbias}
                      s_min_u32 s{sT[0]}, s{sT[0]}, 255""")
            else:
                if gx:
                    a(f"""s_lshl_b32 s98, s{sX}, 7
                          s_add_u32 s98, s98, {WS_XL}
                          s_sub_u32 s{sT[3]}, s{sT[0]}, {glo}
                          s_cmp_le_u32 s{sT[3]}, {ghi - glo}
                          s_cbranch_scc0 L_F_gx1
                          {"s_branch L_F_gx1" if gnoread else ""}
                          v_lshlrev_b32 v{vU[0]}, 7, v{vLane}
                          s_mov_b32 s{sT[3]}, {WS_GM}
                          s_mov_b32 exec_hi, 0
                          buffer_load_dword v{vG4}, v{vU[0]}, s[16:19], s{sT[3]} offen sc1
                          s_mov_b32 exec_hi, -1
                          s_waitcnt vmcnt(0)
                          v_cmp_eq_u32 vcc, s{sTag}, v{vG4}
                          s_nop 1
                          s_bcnt1_i32_b32 s{sT[3]}, vcc_lo
                          v_mov_b32 v{vG4+3}, s{sT[3]}
                          s_mov_b64 exec, 0xffff
                          buffer_store_dwordx2 v[{vG4+2}:{vG4+3}], v{vU[1]}, s[16:19], s98 offen
                          s_mov_b64 exec, -1
                          L_F_gx1:
                          s_mov_b32 s99, {gpoll}
                          v_mov_b32 v{vU[0]}, 0
                          L_F_gx2:
                          s_mov_b64 exec, 1
                          buffer_load_dwordx2 v[{vG4}:{vG4+1}], v{vU[0]}, s[16:19], s98 offen nt
                          s_mov_b64 exec, -1
                          s_waitcnt vmcnt(0)
                          v_readfirstlane_b32 s{sT[3]}, v{vG4}
                          v_readfirstlane_b32 s100, v{vG4+1}
                          s_cmp_eq_u32 s{sT[3]}, s{sTag}
                          s_cbranch_scc1 L_F_gx3
                          s_mov_b32 s100, 20
                          s_sleep 16
                          s_sub_u32 s99, s99, 1
                          s_cbranch_scc0 L_F_gx2
                          L_F_gx3:
                          s_min_u32 s100, s100, 31""")
                    if diag: a(f"s_mov_b32 s56, s100\ns_mov_b32 s57, 0")
                    a(f"""s_and_b32 s100, s100, 28
                          s_lshr_b32 s100, {xtab}, s100
                          s_and_b32 s100, s100, 15""")
                a(f"s_lshl_b32 s{sT[0]}, s{sT[0]}, 3\ns_min_u32 s{sT[0]}, s{sT[0]}, 255")
        elif rank == "s":
            a(f"""s_mov_b32 s{sT[0]}, 1
                  s_atomic_add s{sT[0]}, s[{K_DBG}:{K_DBG+1}], 0 glc
                  s_waitcnt lgkmcnt(0)""")
        else:
            srd(20, K_DBG, 256)
            a(f"""v_mov_b32 v{vU[0]}, 0
                  v_mov_b32 v{vU[1]}, 1
                  s_mov_b64 exec, 1
                  buffer_atomic_add v{vU[1]}, v{vU[0]}, s[20:23], 0 offen sc0
                  s_mov_b64 exec, -1
                  s_waitcnt vmcnt(0)
                  v_readfirstlane_b32 s{sT[0]}, v{vU[1]}""")
        if diag: a(f"s_mov_b32 s58, s{sT[0]}\ns_mov_b32 s59, 0")
        if rtab == "table":
            a(f"s_load_dword s{sT[3]}, s[{K_WS}:{K_WS+1}], 49152\ns_waitcnt lgkmcnt(0)")
        else: a(f"s_mov_b32 s{sT[3]}, {rtab}")
        a(f"""s_lshr_b32 s{sT[0]}, s{sT[0]}, 3
              s_and_b32 s{sT[0]}, s{sT[0]}, 28
              s_lshr_b32 s{sT[0]}, s{sT[3]}, s{sT[0]}
              s_and_b32 s{sT[0]}, s{sT[0]}, 15
              s_add_u32 s{sT[0]}, s{sT[0]}, 16
              {xb_code}
              s_add_u32 s{sT[0]}, s{sT[0]}, {"s100" if gx else f"s{sT[3]}"}
              v_mov_b32 v{vU[0]}, {L_CNT + 20}
              v_mov_b32 v{vU[1]}, s{sT[0]}
              ds_write_b32 v{vU[0]}, v{vU[1]}""")
    def wo_loads():
        for e in range(0 if abl_wo else 8):
            a(f"buffer_load_dwordx2 v[{vRaw+2*e}:{vRaw+2*e+1}], v{vO0 + (e >> 2)}, s[12:15], s{sOff} offen offset:{(e & 3) * 1024} nt")
    def part_loads():
        for k in range(4):
            r = PB + 4 * k
            a(f"buffer_load_dwordx4 v[{r}:{r+3}], v{vA0}, s[16:19], s{sP[k]} offen {pld}")
    def perms():
        for ct in range(4):
            for k, (ea, eb) in enumerate(((0, 1), (4, 5), (2, 3), (6, 7))):
                a(f"v_perm_b32 v{vBop+4*ct+k}, v{vRaw+2*eb+(ct>>1)}, v{vRaw+2*ea+(ct>>1)}, s{sSel0 + (ct & 1)}")
    a.label("L_F_ml0")
    if wo_at == "mid" and not wostart: wo_loads()
    if wo_at == "touch":
        a(f"s_mov_b64 exec, 1\nbuffer_load_dword v{vRaw}, v{vO0}, s[12:15], s{sOff} offen nt\ns_mov_b64 exec, -1")
    if ml1: a(f"s_cmp_eq_u32 s{sW}, 1\ns_cbranch_scc0 L_F_wwait")
    a.label("L_F_mlpoll")
    if narrow: a("s_mov_b32 exec_hi, 0")
    a(f"""buffer_load_dwordx4 v[{vG4}:{vG4+3}], v{vT[3]}, s[16:19], s{sT[1]} offen offset:512 {mf or ldf}
          s_waitcnt vmcnt(0)""")
    tagcheck([vG4], "L_F_mlpoll", "L_F_mlok", "always", narrow, 24)
    if wo_at == "mid" and not ml1: perms()
    a(f"v_mov_b32 v{vM}, v{vG4}")
    row_allreduce("v_max_f32", [vM])
    a(f"""v_sub_f32 v{vG4}, v{vG4}, v{vM}
          v_mul_f32 v{vG4}, s{sLog2e}, v{vG4}
          v_exp_f32 v{vG4}, v{vG4}
          v_mul_f32 v{vG4}, v{vG4}, v{vG4+2}
          v_mov_b32 v{vL}, v{vG4}""")
    row_allreduce("v_add_f32", [vL])
    a(f"""v_rcp_f32 v{vL}, v{vL}
          s_lshl_b32 s{sT[0]}, s{sBr if ml1 else sW}, 7
          v_lshl_add_u32 v{vT[0]}, v{vT[2]}, 2, s{sT[0]}
          v_mul_f32 v{vG4}, v{vG4}, v{vL}
          s_mov_b32 exec_hi, 0
          ds_write_b32 v{vT[0]}, v{vG4} offset:{L_WT}
          s_mov_b32 exec_hi, -1""")
    if ml1:
        a(f"""s_add_u32 s{sT[0]}, s{sBr}, 1
              v_mov_b32 v{vU[0]}, {L_CNT + 28}
              v_mov_b32 v{vU[1]}, s{sT[0]}
              ds_write_b32 v{vU[0]}, v{vU[1]}""")
        a.label("L_F_wwait")
        a(f"s_add_u32 s{sT[3]}, s{sBr}, 1")
        lds_wait(28, f"s{sT[3]}", "L_F_ww", 4)
        a("s_waitcnt vmcnt(0)")
        if wo_at == "mid": perms()
    a(f"""s_lshl_b32 s{sT[0]}, s{sBr if ml1 else sW}, 7
          v_lshl_add_u32 v{vT[1]}, v{vG}, 4, s{sT[0]}
          ds_read_b128 v[{vW}:{vW+3}], v{vT[1]} offset:{L_WT}
          ds_read_b128 v[{vW+4}:{vW+7}], v{vT[1]} offset:{L_WT+64}
          s_lshl_b32 s{sT[0]}, s{sBr}, 2
          s_add_u32 s{sT[0]}, s{sT[0]}, s{sW}
          s_lshl_b32 s{sT[0]}, s{sT[0]}, 9
          v_lshrrev_b32 v{vT[0]}, 1, v{vG}
          v_lshlrev_b32 v{vT[0]}, 5, v{vT[0]}
          v_and_b32 v{vT[1]}, 1, v{vG}
          v_lshl_add_u32 v{vT[1]}, v{vC}, 1, v{vT[1]}
          v_add_lshl_u32 v{vT[0]}, v{vT[0]}, v{vT[1]}, 3
          v_add_u32 v{vT[0]}, s{sT[0]}, v{vT[0]}
          v_mov_b32 v{vHi}, v{vT[0]}
          s_mov_b32 s{sSpin}, {SPIN}
          """)
    if fastf2:
        a(f"""v_mov_b32 v{vS}, {L_CNT + 8}
              v_mov_b32 v{vS+1}, 1
              v_lshlrev_b32 v{vS+2}, 3, v{vLane}
              v_lshlrev_b32 v{vS+3}, 4, v{vLane}
              v_lshrrev_b32 v{vS+5}, 5, v{vLane}
              v_lshlrev_b32 v{vS+4}, 10, v{vT[2]}
              v_lshl_add_u32 v{vS+4}, v{vS+5}, 4, v{vS+4}
              v_lshlrev_b32 v{vS+5}, 2, v{vS+5}
              v_bfe_u32 v{vS+6}, v{vLane}, 3, 1
              v_lshl_add_u32 v{vS+5}, v{vS+6}, 10, v{vS+5}
              v_bfe_u32 v{vS+6}, v{vLane}, 2, 1
              v_lshl_add_u32 v{vS+5}, v{vS+6}, 1, v{vS+5}
              v_mov_b32 v{vQ+1}, s{sTag}
              v_mov_b32 v{vQ+3}, s{sTag+1}
              s_add_u32 s98, s{sR}, 8
              s_lshl_b32 s98, s98, 5
              s_add_u32 s98, s98, s{sHA}
              s_lshl_b32 s98, s98, 10
              s_add_u32 s98, s98, {WS_Y}
              s_lshl_b32 s99, s{sX}, 15
              s_lshl_b32 s{sT[0]}, s{sI}, 5
              s_add_u32 s99, s99, s{sT[0]}
              s_add_u32 s99, s99, {WS_Y}
              s_add_u32 s{sT[3]}, s99, {8 << 15}
              s_lshr_b32 s{sT[2]}, s{sI}, 4
              s_lshl_b32 s{sT[2]}, s{sT[2]}, 11
              s_lshl_b32 s{sT[0]}, s{sX}, 7
              s_add_u32 s{sT[2]}, s{sT[2]}, s{sT[0]}
              s_and_b32 s{sT[0]}, s{sI}, 15
              s_lshl_b32 s{sT[0]}, s{sT[0]}, 3
              s_add_u32 s{sT[2]}, s{sT[2]}, s{sT[0]}""")
        srd(20, K_OUT, 4096)
    a(f"s_cmp_eq_u32 s{sBr}, 0\ns_cbranch_scc1 {'L_F_goA' if aser else 'L_F_go'}")
    if ya == "flag":
        a(f"s_cmp_eq_u32 s{sW}, 3\ns_cbranch_scc0 L_F_b2")
        lds_wait(24, 1, "L_F_yaw", 4)
        a(f"s_mov_b32 s{sBr}, 0")
        call("L_PUBY")
        a(f"s_mov_b32 s{sBr}, 1\ns_mov_b32 s{sSpin}, {SPIN}\nL_F_b2:")
    a("s_barrier")
    tstamp(1)
    if abl_notail: a("s_branch L_exit")
    if ya == "h3" and not abl_noA:
        a(f"""s_cmp_eq_u32 s{sW}, 3
              s_cbranch_scc0 L_F_go
              s_mov_b32 s{sBr}, 0""")
        call("L_PUBY")
        a(f"s_mov_b32 s{sBr}, 1")
    a.label("L_F_go")
    if wo_at == "mid":
        a("s_mov_b64 vcc, -1")
    else:
        wo_loads(); part_loads()
        a("s_waitcnt vmcnt(4)")
        tstamp(2)
        perms()
        a("s_branch L_F_pwait")
    a.label("L_F_ppoll")
    if masked: a("s_mov_b64 exec, vcc")
    part_loads()
    if masked: a("s_mov_b64 exec, -1")
    a.label("L_F_pwait")
    a("s_waitcnt vmcnt(0)")
    tagcheck([PB + 4 * k for k in range(4)], "L_F_ppoll", "L_F_pok", not acoal)
    tstamp(3)
    for b in range(2):
        a(f"v_mov_b32 v{PB+8*b+1}, v{PB+8*b+4}\nv_mov_b32 v{PB+8*b+3}, v{PB+8*b+6}")
    if fastf2:
        D = vRing + 32
        a.label("L_F_mm")
        a("s_waitcnt lgkmcnt(0)")
        def fm(k):
            b = k // 4; d = D + 4 * k
            a(f"v_mul_f32 v{vAcc+k}, v{vW+4*b}, v{d}")
            for i in range(1, 4): a(f"v_fmac_f32 v{vAcc+k}, v{vW+4*b+i}, v{d+i}")
        order = [0, 4, 1, 5, 2, 6, 3, 7]
        for n, k in enumerate(order):
            b, ct = k // 4, k % 4; d = D + 4 * k
            a(f"v_mfma_f32_16x16x32_bf16 v[{d}:{d+3}], v[{PB+8*b}:{PB+8*b+3}], v[{vBop+4*ct}:{vBop+4*ct+3}], 0")
            if n >= f2lag: fm(order[n - f2lag])
        for n in range(8 - f2lag, 8): fm(order[n])
        for e in range(4): a(f"v_permlane32_swap_b32 v{vAcc+e}, v{vAcc+e+4}")
        for e in range(4): a(f"v_add_f32 v{vAcc+e}, v{vAcc+e}, v{vAcc+e+4}")
        for e in range(2): a(f"v_permlane16_swap_b32 v{vAcc+e}, v{vAcc+e+2}")
        for e in range(2): a(f"v_add_f32 v{vAcc+e}, v{vAcc+e}, v{vAcc+e+2}")
        a(f"""ds_write_b64 v{vHi}, v[{vAcc}:{vAcc+1}] offset:{L_YR}
              s_cmp_eq_u32 s{sBr}, 0
              s_mov_b32 s{sBr}, 1""")
        if diag:
            a("s_cbranch_scc0 L_F_tail"); stamp(5); a("s_branch L_FIN"); a.label("L_F_tail")
        else:
            a("s_cbranch_scc1 L_FIN")
        a(f"""s_mov_b64 exec, 1
              ds_add_rtn_u32 v{vU[2]}, v{vS}, v{vS+1}
              s_mov_b64 exec, -1""")
        for k in range(4): a(f"ds_read_b64 v[{vt+2*k}:{vt+2*k+1}], v{vS+2} offset:{L_YR + 2048 + 512*k}")
        a(f"""s_mov_b32 s{sSpin}, {SPIN}
              s_mov_b64 vcc, -1
              s_waitcnt lgkmcnt(0)
              v_readfirstlane_b32 s{sT[0]}, v{vU[2]}
              v_add_f32 v{vQ}, v{vt}, v{vt+2}
              v_add_f32 v{vQ+2}, v{vt+1}, v{vt+3}
              v_add_f32 v{vt+4}, v{vt+4}, v{vt+6}
              v_add_f32 v{vt+5}, v{vt+5}, v{vt+7}
              s_cmp_eq_u32 s{sT[0]}, 3
              s_cbranch_scc0 {"L_F_nl" if f3first else "L_exit"}
              v_add_f32 v{vQ}, v{vQ}, v{vt+4}
              v_add_f32 v{vQ+2}, v{vQ+2}, v{vt+5}
              buffer_store_dwordx4 v[{vQ}:{vQ+3}], v{vS+3}, s[16:19], s98 offen {yst}""")
        tstamp(4)
        if f3first:
            a(f"s_branch L_exit\nL_F_nl:\ns_cmp_eq_u32 s{sT[0]}, {f3first - 1}\ns_cbranch_scc0 L_exit")
        a.label("L_F_ypoll")
        a("s_mov_b64 exec, vcc")
        a(f"buffer_load_dwordx4 v[{R0+4}:{R0+7}], v{vS+4}, s[16:19], s{sT[3]} offen {yld}")
        if not abl_noA: a(f"buffer_load_dwordx4 v[{R0}:{R0+3}], v{vS+4}, s[16:19], s99 offen {yld}")
        a("s_mov_b64 exec, -1\ns_waitcnt vmcnt(0)")
        tagcheck([R0 + 4] if abl_noA else [R0, R0 + 4], "L_F_ypoll", "L_F_yok")
        tstamp(5)
        a(f"""v_add_f32_dpp v{R0}, v{R0}, v{R0} row_mirror row_mask:0xf bank_mask:0x3
              v_add_f32_dpp v{R0+2}, v{R0+2}, v{R0+2} row_mirror row_mask:0xf bank_mask:0x3
              v_add_f32_dpp v{R0}, v{R0+4}, v{R0+4} row_mirror row_mask:0xf bank_mask:0xc
              v_add_f32_dpp v{R0+2}, v{R0+6}, v{R0+6} row_mirror row_mask:0xf bank_mask:0xc
              v_add_f32_dpp v{R0}, v{R0}, v{R0} row_half_mirror row_mask:0xf bank_mask:0x5
              v_add_f32_dpp v{R0}, v{R0+2}, v{R0+2} row_half_mirror row_mask:0xf bank_mask:0xa
              v_add_f32_dpp v{R0}, v{R0}, v{R0} quad_perm:[2,3,0,1] row_mask:0xf bank_mask:0xf
              v_add_f32_dpp v{R0}, v{R0}, v{R0} quad_perm:[1,0,3,2] row_mask:0xf bank_mask:0xf
              v_mov_b32 v{R0+1}, v{R0}
              v_permlane16_swap_b32 v{R0}, v{R0+1}
              v_add_f32 v{R0}, v{R0}, v{R0+1}
              v_cvt_pk_bf16_f32 v{R0}, v{R0}, v{R0}
              s_mov_b32 exec_lo, 0x1111
              s_mov_b32 exec_hi, 0x1111
              buffer_store_short v{R0}, v{vS+5}, s[20:23], s{sT[2]} offen
              s_mov_b64 exec, -1""")
    else:
        D = vRing + 32
        for b in range(2):
            for ct in range(4):
                d = D + (b * 4 + ct) * 4
                a(f"v_mfma_f32_16x16x32_bf16 v[{d}:{d+3}], v[{PB+8*b}:{PB+8*b+3}], v[{vBop+4*ct}:{vBop+4*ct+3}], 0")
        a("s_waitcnt lgkmcnt(0)")
        for i in range(4):
            for b in range(2):
                for ct in range(4):
                    d = D + (b * 4 + ct) * 4
                    if i == 0: a(f"v_mul_f32 v{vAcc+b*4+ct}, v{vW+4*b}, v{d}")
                    else: a(f"v_fmac_f32 v{vAcc+b*4+ct}, v{vW+4*b+i}, v{d+i}")
        call("L_RED8")
        a(f"""ds_write_b64 v{vHi}, v[{vAcc}:{vAcc+1}] offset:{L_YR}
              s_cmp_eq_u32 s{sBr}, 0
              s_mov_b32 s{sBr}, 1""")
        if diag:
            a("s_cbranch_scc0 L_F_tail"); stamp(5); a("s_branch L_FIN"); a.label("L_F_tail")
        else:
            a("s_cbranch_scc1 L_FIN")
        a(f"""v_mov_b32 v{vU[0]}, {L_CNT + 8}
              v_mov_b32 v{vU[1]}, 1
              s_mov_b64 exec, 1
              ds_add_rtn_u32 v{vU[2]}, v{vU[0]}, v{vU[1]}
              s_mov_b64 exec, -1
              s_waitcnt lgkmcnt(0)
              v_readfirstlane_b32 s{sT[0]}, v{vU[2]}
              s_cmp_eq_u32 s{sT[0]}, 3
              s_cbranch_scc0 L_exit""")
        call("L_PUBY")
        if ya == "last" and not abl_noA:
            a(f"s_mov_b32 s{sBr}, 0"); call("L_PUBY"); a(f"s_mov_b32 s{sBr}, 1")
        tstamp(4)
        a(f"""s_lshl_b32 s{sT[1]}, s{sX}, 15
              s_lshl_b32 s{sT[0]}, s{sI}, 5
              s_add_u32 s{sT[1]}, s{sT[1]}, s{sT[0]}
              s_add_u32 s{sT[1]}, s{sT[1]}, {WS_Y}
              s_add_u32 s{sT[3]}, s{sT[1]}, {8 << 15}
              v_lshrrev_b32 v{vT[0]}, 5, v{vLane}
              v_lshlrev_b32 v{vT[1]}, 10, v{vT[2]}
              v_lshl_add_u32 v{vT[1]}, v{vT[0]}, 4, v{vT[1]}
              v_lshlrev_b32 v{vT[0]}, 2, v{vT[0]}
              s_lshr_b32 s{sT[2]}, s{sI}, 4
              s_lshl_b32 s{sT[2]}, s{sT[2]}, 11
              s_lshl_b32 s{sT[0]}, s{sX}, 7
              s_add_u32 s{sT[2]}, s{sT[2]}, s{sT[0]}
              s_and_b32 s{sT[0]}, s{sI}, 15
              s_lshl_b32 s{sT[0]}, s{sT[0]}, 3
              s_add_u32 s{sT[2]}, s{sT[2]}, s{sT[0]}
              s_mov_b32 s{sSpin}, {SPIN}""")
        srd(20, K_OUT, 4096)
        if masked: a("s_mov_b64 vcc, -1")
        a.label("L_F_ypoll")
        if masked: a("s_mov_b64 exec, vcc")
        a(f"buffer_load_dwordx4 v[{R0+4}:{R0+7}], v{vT[1]}, s[16:19], s{sT[3]} offen {yld}")
        if not abl_noA: a(f"buffer_load_dwordx4 v[{R0}:{R0+3}], v{vT[1]}, s[16:19], s{sT[1]} offen {yld}")
        if masked: a("s_mov_b64 exec, -1")
        a("s_waitcnt vmcnt(0)")
        tagcheck([R0 + 4] if abl_noA else [R0, R0 + 4], "L_F_ypoll", "L_F_yok")
        tstamp(5)
        row_allreduce("v_add_f32", [R0, R0 + 2, R0 + 4, R0 + 6])
        for k in range(4): a(f"v_mov_b32 v{R0+2*k+1}, v{R0+2*k}")
        for k in range(4): a(f"v_permlane16_swap_b32 v{R0+2*k}, v{R0+2*k+1}")
        for k in range(4): a(f"v_add_f32 v{R0+2*k}, v{R0+2*k}, v{R0+2*k+1}")
        a(f"""v_cvt_pk_bf16_f32 v{R0}, v{R0}, v{R0+2}
              v_cvt_pk_bf16_f32 v{R0+4}, v{R0+4}, v{R0+6}
              s_mov_b32 exec_lo, 1
              s_mov_b32 exec_hi, 1
              buffer_store_dword v{R0}, v{vT[0]}, s[20:23], s{sT[2]} offen
              buffer_store_dword v{R0+4}, v{vT[0]}, s[20:23], s{sT[2]} offen offset:1024
              s_mov_b64 exec, -1""")
    a(f"""s_nop 0
          s_cmp_eq_u32 s2, 0
          s_cbranch_scc0 L_exit
          v_mov_b32 v{vT[0]}, {WS_EPOCH}
          v_mov_b32 v{vT[1]}, s{sEp}
          s_mov_b64 exec, 1
          buffer_store_dword v{vT[1]}, v{vT[0]}, s[16:19], 0 offen sc1
          s_mov_b64 exec, -1""")

    if aser:
        a("s_branch L_exit")
        a.label("L_F_goA")
        for k in range(4):
            r = PB + 4 * k
            a(f"buffer_load_dwordx4 v[{r}:{r+3}], v{vA0}, s[16:19], s{sP[k]} offen {pld}\ns_waitcnt vmcnt({aser - 1})")
        if acoal:
            a("s_waitcnt vmcnt(0)")
            tagcheck([PB + 4 * k for k in range(4)], "L_F_goA", "L_F_okA", "always", False, 24)
            a(f"v_lshl_add_u32 v{vT[0]}, v{vC}, 2, v{vG}\nv_lshlrev_b32 v{vT[0]}, 2, v{vT[0]}")
            for b in range(2):
                for dst, src in ((1, 4), (3, 6), (0, 0), (2, 2)):
                    a(f"ds_bpermute_b32 v{PB+8*b+dst}, v{vT[0]}, v{PB+8*b+src}")
            a("s_branch L_F_mm")
        else: a("s_branch L_F_pwait")
    a.label("L_exit")
    if fixdur:
        a.label("L_fix")
        a(f"""s_memrealtime s[50:51]
              s_waitcnt lgkmcnt(0)
              s_sub_u32 s50, s50, s48
              s_cmp_lt_u32 s50, {fixdur}
              s_cbranch_scc1 L_fix""")
    if diag:
        stamp(7)
        a(f"""s_lshl_b32 s{sT[0]}, s2, 3
              s_add_u32 s{sT[0]}, s{sT[0]}, s{sWave}
              s_lshl_b32 s{sT[0]}, s{sT[0]}, 6
              s_add_u32 s{sT[0]}, s{sT[0]}, {STAMP_OFF}
              s_waitcnt vmcnt(0) lgkmcnt(0)
              v_mov_b32 v{vT[0]}, 0""")
        for k in range(16): a(f"v_mov_b32 v{vRing+k}, s{48+k}")
        a("s_mov_b64 exec, 1")
        for k in range(4): a(f"buffer_store_dwordx4 v[{vRing+4*k}:{vRing+4*k+3}], v{vT[0]}, s[16:19], s{sT[0]} offen offset:{16*k}")
    a.label("L_end")
    a("s_endpgm")

    body, nops = a.render(nstub=NSTUB if stubs else 0, total=NSTUB)
    head = open(f"cdna_kernels/{NAME}.s.ref").read().split("; Override launch")[0]
    txt = head + f"""; Emitted by a hand-written generator script (dev/gen.py). One persistent workgroup per CU, one launch.
;   workgroup j: x = j&7, i = j>>3, head h = 4x + (i>>3), batch (i>>2)&1, key split i&3, column slice r = i&7
;   waves 4-7 stream 2048 keys of branch-B K then V (32-slot register ring, bounded number of loads in flight),
;     exact per-wave softmax (true max), publish a normalised partial o plus (max, sum)
;   waves 0-3: q partials (64 rows of wq per workgroup), branch-A attention (128 keys x 4 heads per workgroup),
;     combination of the partials + output projection (MFMA) and the final sum over heads
;   hand-offs go through d_ws as 16-byte granules carrying a per-launch tag (epoch word in d_ws + 1); a consumer that
;     keeps missing data writes its L2 back, so results do not depend on where workgroups are placed
; @launch grid=(256,1,1) block=(512,1,1) lds={LDS_BYTES}
.amdgcn_target "amdgcn-amd-amdhsa--gfx950"
.text
.globl {NAME}_kernel
.p2align 12
.p2align 8
.type {NAME}_kernel,@function
{body}.section .rodata,"a"
.p2align 6
.amdhsa_kernel {NAME}_kernel
  .amdhsa_next_free_vgpr {NVGPR}
  .amdhsa_next_free_sgpr 102
  .amdhsa_accum_offset {NVGPR}
  .amdhsa_group_segment_fixed_size 0
  .amdhsa_kernarg_size 104
  .amdhsa_user_sgpr_count 2
  .amdhsa_user_sgpr_kernarg_segment_ptr 1
  .amdhsa_system_sgpr_workgroup_id_x 1
  .amdhsa_float_denorm_mode_32 3
.end_amdhsa_kernel
"""
    return txt, nops, a.code_bytes

if __name__ == "__main__":
    out = sys.argv[1]
    kw = json.loads(sys.argv[2]) if len(sys.argv) > 2 else {}
    txt, nops, nb = gen(**kw)
    open(out, "w").write(txt)
    print(out, "lines", txt.count("\n"), "auto nops", nops, "code bytes", nb)
```
